```python
import torch

def _softmax(x, axis=-1):
    return torch.softmax(x, dim=axis)
def _gelu(x):
    return torch.nn.functional.gelu(x, approximate="tanh")
def _silu(x):
    return torch.nn.functional.silu(x)
def _sigmoid(x):
    return torch.sigmoid(x)
def _layernorm(x, axis=-1, eps=1e-5):
    m = x.mean(dim=axis, keepdim=True)
    v = x.var(dim=axis, keepdim=True, unbiased=False)
    return (x - m) / torch.sqrt(v + eps)
def _scatter_add(tgt, idx, src, axis=0):
    return tgt.clone().index_add_(axis, idx, src)
def _segment_sum(src, seg, n):
    out = torch.zeros((n,) + src.shape[1:], dtype=src.dtype)
    return out.index_add_(0, seg, src)
def _pad(x, pw):
    flat = tuple(v for pair in reversed(pw) for v in pair)
    return torch.nn.functional.pad(x, flat)

kernel_name = 'gated_mix__mha_block_cached__dense_activation_squared_relu__decode'

def setup_inputs():

    _w = (lambda a: (lambda t: t.to(torch.bfloat16) if t.is_floating_point() else t)(torch.as_tensor(a)))
    def _A_setup():
        B, Sq, D = 4, 1, 512
        H, Sk, Dh = 32, 8192, 128
        return {
            "x": _w((lambda *s: torch.randn(*s, dtype=torch.bfloat16) * 0.05)(B, Sq, D)),
            "k_cache": _w((lambda *s: torch.randn(*s, dtype=torch.bfloat16) * 6.4)(B, H, Sk, Dh)),
            "v_cache": _w((lambda *s: torch.randn(*s, dtype=torch.bfloat16) * 0.4)(B, H, Sk, Dh)),
            "wq": _w((lambda *s: torch.randn(*s, dtype=torch.bfloat16) * 6.4)(D, H * Dh) * (D ** -0.5)),
            "wo": _w((lambda *s: torch.randn(*s, dtype=torch.bfloat16) * 0.4)(H * Dh, D) * ((H * Dh) ** -0.5)),
        }
    _A_in = _A_setup()

    def _B_setup():
        B, S, D, F = 4, 1, 512, 1792
        return {
            "x": _w((lambda *s: torch.randn(*s, dtype=torch.bfloat16) * 0.05)(B, S, D)),
            "w1": _w((lambda *s: torch.randn(*s, dtype=torch.bfloat16) * 0.05)(D, F)),
            "b1": _w((lambda *s: torch.randn(*s, dtype=torch.bfloat16) * 0.05)(F)),
            "w2": _w((lambda *s: torch.randn(*s, dtype=torch.bfloat16) * 0.05)(F, D)),
            "b2": _w((lambda *s: torch.randn(*s, dtype=torch.bfloat16) * 0.05)(D)),
        }
    _B_in = _B_setup()

    return {
        "A_x": _A_in["x"],
        "A_k_cache": _A_in["k_cache"],
        "A_v_cache": _A_in["v_cache"],
        "A_wq": _A_in["wq"],
        "A_wo": _A_in["wo"],
        "B_x": _B_in["x"],
        "B_w1": _B_in["w1"],
        "B_b1": _B_in["b1"],
        "B_w2": _B_in["w2"],
        "B_b2": _B_in["b2"],
        "gate_w": _w((lambda *s: torch.randn(*s, dtype=torch.bfloat16) * 0.05)(512) * 16.0),
    }

def reference(A_x, A_k_cache, A_v_cache, A_wq, A_wo, B_x, B_w1, B_b1, B_w2, B_b2, gate_w):
    def _A_ref(x, k_cache, v_cache, wq, wo):
        B, Sq, D = x.shape
        H, Dh = 32, 128
        q = (lambda x, *d: x.permute(*d))((x @ wq).reshape(B, Sq, H, Dh), 0, 2, 1, 3)
        scores = torch.einsum("bhqd,bhkd->bhqk", q, k_cache) * (Dh ** -0.5)
        p = _softmax(scores, axis=-1)
        o = torch.einsum("bhqk,bhkd->bhqd", p, v_cache)
        return (lambda x, *d: x.permute(*d))(o, 0, 2, 1, 3).reshape(B, Sq, H * Dh) @ wo

    def _B_ref(x, w1, b1, w2, b2):
        h = torch.einsum("bsd,df->bsf", x, w1) + b1
        zero = torch.zeros_like(h)
        r = torch.where(h > zero, h, zero)
        h = r * r
        out = torch.einsum("bsf,fd->bsd", h, w2) + b2
        return out

    x = A_x
    g = _sigmoid((x * gate_w).sum(-1, keepdims=True))
    a = _A_ref(x, A_k_cache, A_v_cache, A_wq, A_wo)
    b = _B_ref(x, B_w1, B_b1, B_w2, B_b2)
    return g * a + (1 - g) * b
```

```python
import re

TRANS = ("v_exp_f32", "v_log_f32", "v_rcp_f32", "v_rsq_f32", "v_sqrt_f32", "v_sin_f32", "v_cos_f32", "v_rcp_iflag_f32")
NO_DST_S = ("s_cmp", "s_waitcnt", "s_barrier", "s_branch", "s_cbranch", "s_nop", "s_endpgm", "s_setprio",
            "s_sleep", "s_setpc", "s_bitcmp", "s_sendmsg", "s_setreg", "s_sethalt", "s_trap")

def regs_of(tok):
    tok = tok.strip()
    tok = tok.lstrip("-")
    m = re.fullmatch(r"abs\((.*)\)", tok) or re.fullmatch(r"\|(.*)\|", tok)
    if m: tok = m.group(1)
    m = re.fullmatch(r"([vsa])(\d+)", tok)
    if m: return {(m.group(1), int(m.group(2)))}
    m = re.fullmatch(r"([vsa])\[(\d+):(\d+)\]", tok)
    if m: return {(m.group(1), i) for i in range(int(m.group(2)), int(m.group(3)) + 1)}
    if tok in ("vcc", "vcc_lo", "vcc_hi"): return {("x", "vcc")}
    if tok in ("exec", "exec_lo", "exec_hi"): return {("x", "exec")}
    if tok == "m0": return {("x", "m0")}
    return set()

class Ins:
    def __init__(self, text):
        self.text = text
        t = text.split(";")[0].strip()
        self.is_label = t.endswith(":")
        self.empty = (t == "") or t.startswith(".")
        self.op = ""; self.rd = set(); self.wr = set(); self.kind = ""
        self.dpp_rd = set(); self.A = set(); self.B = set(); self.C = set(); self.states = 1
        self.target = None
        if self.is_label:
            self.label = t[:-1]; self.states = 0; return
        if self.empty:
            self.states = 0; return
        parts = t.split(None, 1)
        op = parts[0]; self.op = op
        rest = parts[1] if len(parts) > 1 else ""
        toks = [x.strip() for x in re.split(r",(?![^\[]*\])", rest)] if rest else []
        mods = ""
        if toks:
            last = toks[-1].split()
            if len(last) > 1:
                toks[-1] = last[0]; mods = " ".join(last[1:])
        self.mods = mods
        R = [regs_of(x) for x in toks]
        allr = lambda l: set().union(*l) if l else set()
        if op == "s_nop":
            self.kind = "salu"; self.states = int(toks[0], 0) + 1
        elif op.startswith("v_mfma"):
            self.kind = "mfma"; self.wr = R[0]; self.A, self.B, self.C = R[1], R[2], R[3]
            self.rd = R[1] | R[2] | R[3]
        elif op.startswith("v_"):
            self.kind = "valu"
            if op.startswith("v_permlane") and "swap" in op:
                self.wr = R[0] | R[1]; self.rd = R[0] | R[1]
            elif op.startswith(("v_add_co", "v_addc_co", "v_sub_co", "v_subb_co")):
                self.wr = R[0] | R[1]; self.rd = allr(R[2:])
            elif op.startswith("v_cmp"):
                self.wr = R[0]; self.rd = allr(R[1:])
                if op.startswith("v_cmpx"): self.wr |= {("x", "exec")}
            else:
                self.wr = R[0]; self.rd = allr(R[1:])
                if op.startswith(("v_fmac", "v_dot2c", "v_writelane", "v_pk_fmac")): self.rd |= R[0]
            isdpp = "dpp" in op or re.search(r"(quad_perm|row_|wave_)", mods)
            if isdpp:
                self.dpp_rd = R[1]
                if "bank_mask:0xf" not in mods or "row_mask:0xf" not in mods: self.rd |= R[0]
            self.trans = op.replace("_e32", "").replace("_e64", "") in TRANS
        elif op.startswith("buffer_load"):
            self.kind = "vmem"
            if "lds" in mods.split():
                self.rd = allr(R) | {("x", "m0")}
            else:
                self.wr = R[0]; self.rd = allr(R[1:])
        elif op.startswith(("buffer_store", "buffer_atomic")):
            self.kind = "vmem"; self.rd = allr(R); self.store_data = R[0]
            self.wide = op.endswith(("x3", "x4"))
        elif op.startswith(("buffer_wbl2", "buffer_inv")):
            self.kind = "vmem"
        elif op.startswith("global_load"):
            self.kind = "vmem"; self.wr = R[0]; self.rd = allr(R[1:])
        elif op.startswith("global_store"):
            self.kind = "vmem"; self.rd = allr(R); self.store_data = R[1]
            self.wide = op.endswith(("x3", "x4"))
        elif op.startswith("global_atomic"):
            self.kind = "vmem"
            if "sc0" in mods.split(): self.wr = R[0]; self.rd = allr(R[1:])
            else: self.rd = allr(R)
        elif op.startswith("ds_"):
            self.kind = "ds"
            if op.startswith(("ds_read", "ds_bpermute", "ds_permute", "ds_swizzle")):
                self.wr = R[0]; self.rd = allr(R[1:])
            else:
                self.rd = allr(R)
        elif op.startswith("s_"):
            self.kind = "salu"
            if op.startswith(("s_branch", "s_cbranch")):
                self.target = toks[0]
                if "vcc" in op: self.rd = {("x", "vcc")}
                if "exec" in op: self.rd = {("x", "exec")}
            elif op.startswith(NO_DST_S):
                self.rd = allr(R)
            elif op.startswith(("s_load", "s_memrealtime", "s_memtime")):
                self.kind = "smem"; self.wr = R[0]; self.rd = allr(R[1:])
            else:
                self.wr = R[0]; self.rd = allr(R[1:])
                if "saveexec" in op: self.wr |= {("x", "exec")}
        else:
            raise ValueError("unparsed: " + text)

def need(prod, cons):
    n = 0
    pv = {r for r in prod.wr if r[0] in "va"}
    ps = {r for r in prod.wr if r[0] == "s" or r == ("x", "vcc")}
    if prod.kind == "valu":
        if cons.kind == "mfma" and pv & cons.rd: n = max(n, 2)
        if cons.kind == "valu":
            if pv & cons.dpp_rd: n = max(n, 2)
            if cons.op.startswith(("v_readlane", "v_readfirstlane")) and pv & cons.rd: n = max(n, 1)
            if cons.op.startswith("v_permlane") and pv & cons.rd: n = max(n, 2)
            if getattr(prod, "trans", False) and pv & cons.rd: n = max(n, 1)
            if prod.op.startswith("v_dot2") and pv & (cons.rd | cons.wr):
                same = cons.op == prod.op
                n = max(n, 0 if (same and not (pv & (cons.rd - cons.wr))) else 3)
            if ps & cons.rd:
                n = max(n, 4 if cons.op.startswith(("v_readlane", "v_writelane")) else 2)
            if ("x", "exec") in prod.wr: n = max(n, 5 if cons.dpp_rd else 4)
        if cons.kind in ("vmem", "ds") and prod.op.startswith("v_dot2") and pv & cons.rd: n = max(n, 3)
        if cons.kind == "mfma" and prod.op.startswith("v_dot2") and pv & cons.rd: n = max(n, 3)
        if cons.kind == "vmem" and ps & cons.rd: n = max(n, 5)
        if cons.kind == "mfma" and ("x", "exec") in prod.wr: n = max(n, 4)
    if prod.kind == "mfma":
        big = "32x32" in prod.op
        raw, ovl, war = (12, 10, 7) if big else (8, 6, 3)
        if cons.kind == "mfma":
            if pv & (cons.A | cons.B): n = max(n, raw)
            if pv & cons.C and not (cons.C == prod.wr and cons.op == prod.op): n = max(n, ovl)
            if pv & cons.wr and not (cons.wr == prod.wr and cons.C == prod.wr): n = max(n, ovl)
        elif cons.kind in ("valu", "vmem", "ds"):
            if pv & (cons.rd | cons.wr): n = max(n, raw)
            if cons.kind == "valu" and prod.C & cons.wr: n = max(n, war)
    if prod.kind == "vmem" and getattr(prod, "wide", False):
        if cons.kind == "valu" and prod.store_data & cons.wr: n = max(n, 2)
        elif cons.kind in ("vmem", "ds") and prod.store_data & cons.wr: n = max(n, 1)
    if prod.kind == "salu" and ("x", "m0") in prod.wr and ("x", "m0") in cons.rd: n = max(n, 1)
    return n

WINDOW = 16

def scan(ins_list, start=0, fix=True):
    out = []
    for ins in ins_list:
        if ins.states and ins.op != "s_nop":
            dist = 0; pad = 0
            for p in reversed(out):
                if dist >= WINDOW: break
                if p.states and p.op:
                    k = need(p, ins)
                    if k > dist: pad = max(pad, k - dist)
                dist += p.states
            if pad:
                if not fix: raise AssertionError("hazard before: %s (need %d)" % (ins.text, pad))
                while pad:
                    k = min(pad, 16); out.append(Ins("s_nop %d" % (k - 1))); pad -= k
        out.append(ins)
    return out

def check_branches(ins_list):
    pos = {i.label: n for n, i in enumerate(ins_list) if i.is_label}
    bad = []
    for n, ins in enumerate(ins_list):
        if ins.target and ins.target in pos:
            tail = [x for x in ins_list[max(0, n - 40):n + 1]]
            for k in range(len(tail) - 2, -1, -1):
                if tail[k].op in ("s_branch", "s_endpgm") or tail[k].op.startswith("s_setpc"):
                    tail = tail[k + 1:]; break
            head = ins_list[pos[ins.target]:pos[ins.target] + 40]
            for k, h in enumerate(head):
                if k and h.op in ("s_branch", "s_endpgm"):
                    head = head[:k + 1]; break
            seq = tail + head
            for ci in range(len(tail), len(seq)):
                c = seq[ci]
                if not c.states or c.op == "s_nop": continue
                dist = 0
                for pi in range(ci - 1, -1, -1):
                    p = seq[pi]
                    if dist >= WINDOW: break
                    if pi < len(tail) and p.states and p.op:
                        k = need(p, c)
                        if k > dist: bad.append((p.text, ins.text, c.text, k, dist))
                    dist += p.states
    return bad

class Asm:
    def __init__(self):
        self.lines = []
    def __call__(self, s):
        for l in s.split("\n"):
            self.lines.append(l.strip())
    def finish(self):
        ins = [Ins(l) for l in self.lines]
        ins = scan(ins)
        bad = check_branches(ins)
        if bad:
            for b in bad: print("BRANCH HAZARD:", b)
            raise AssertionError("branch hazards")
        out = []
        for i in ins:
            t = i.text
            out.append(t if (i.is_label or t.startswith(".") or t == "") else "    " + t)
        return "\n".join(out) + "\n"

class VmQueue:
    def __init__(self, a):
        self.a = a; self.q = []
    def issue(self, tag, text):
        self.a(text); self.q.append(tag)
    def note(self, tag, n=1):
        self.q += [tag] * n
    def count(self, tag):
        idx = [i for i, t in enumerate(self.q) if t == tag]
        if not idx: return None
        return len(self.q) - 1 - idx[-1]
    def wait(self, tag):
        n = self.count(tag)
        if n is None: return None
        assert n <= 63, n
        self.a("s_waitcnt vmcnt(%d)" % n)
        self.q = self.q[len(self.q) - n:] if n else []
        return n
```

```python
import sys, os, struct
sys.path.insert(0, os.path.dirname(os.path.abspath(__file__)))
from asmlib import Asm, VmQueue

NAME = "gated_mix__mha_block_cached__dense_activation_squared_relu__decode"
K1 = NAME + "_kernel"
K2 = "final_reduce_kernel"

def fbits(x): return "0x%08x" % struct.unpack("<I", struct.pack("<f", x))[0]
LOG2E = 1.4426950408889634
CSCALE = LOG2E * (128 ** -0.5)

WS_Y, WS_YF, WS_ML = 0, 0x80000, 0xA0000
WS_STAMP = 0x20000000
L_QP, L_HP, L_PRIV, L_EP, L_ML, L_END = 0, 4096, 8192, 12288, 16384, 16512

def vr(b, n=4): return "v[%d:%d]" % (b, b + n - 1)
def sr(b, n=2): return "s[%d:%d]" % (b, b + n - 1)

def gen(D=2, kvpol="nt", wpol="", stpol="", stamps=False, W=8):
    NT = 4096 // 16 // W
    a = Asm()
    vTid, vLane, vG, vI = 0, 1, 2, 3
    vKoff, vVoff, vL, vM, vMC, vW2off = 4, 5, 6, 7, 8, 9
    vPriv, vTmpA = 10, 11
    vMask = 12
    vQ = 16; vS = 32; vP = 36; vA = [40, 44]; vO = 48; vT = 52
    vB1 = 60; vB2 = 62
    vKV = 64
    vWA = vKV + 32 * D; vWB = vWA + 64
    NV = vWB + 64
    assert NV <= 256
    Kb = lambda d: vKV + 32 * d
    Vb = lambda d: vKV + 32 * d + 16
    vHP = vWB
    sX, sK, sV, sWq, sWo, sBx, sW1, sB1 = 4, 6, 8, 10, 12, 14, 16, 18
    sW2, sB2, sGw, sOut, sWs = 20, 22, 24, 26, 28
    sH, sB, sSp, sWave = 30, 31, 32, 3
    sFfn, sSig = 33, 34
    rK, rV, rWq, rW1, rW2, rWo = 36, 40, 44, 48, 52, 56
    sOff, sCnt, sC, sGate = 60, 61, 62, 63
    sT = 64
    sRet, sRare = 76, 78
    sU = [80, 81, 82]
    sStamp = 84
    vm = VmQueue(a)

    a("%s:" % K1)
    a("s_cmp_ge_u32 s2, 256")
    a("s_cbranch_scc1 L_done")
    a("s_load_dwordx16 s[4:19], s[0:1], 0")
    a("s_load_dwordx8 s[20:27], s[0:1], 64")
    a("s_load_dwordx2 s[28:29], s[0:1], 104")
    if stamps: a("s_memrealtime s[%d:%d]" % (sStamp, sStamp + 1))
    a("v_lshrrev_b32 v%d, 6, v0" % vTmpA)
    a("v_and_b32 v%d, 63, v0" % vLane)
    a("v_readfirstlane_b32 s%d, v%d" % (sWave, vTmpA))
    a("v_lshrrev_b32 v%d, 4, v%d" % (vG, vLane))
    a("v_and_b32 v%d, 15, v%d" % (vI, vLane))
    a("s_and_b32 s%d, s2, 7" % sT)
    a("s_lshr_b32 s%d, s2, 3" % (sT + 1))
    a("s_and_b32 s%d, s%d, 3" % (sT + 2, sT + 1))
    a("s_lshl_b32 s%d, s%d, 2" % (sH, sT))
    a("s_add_u32 s%d, s%d, s%d" % (sH, sH, sT + 2))
    a("s_lshr_b32 s%d, s%d, 3" % (sB, sT + 1))
    a("s_bfe_u32 s%d, s%d, 0x10002" % (sSp, sT + 1))
    a("s_and_b32 s%d, s%d, 1" % (sT + 2, sT + 1))
    a("s_lshl_b32 s%d, s%d, 3" % (sT + 2, sT + 2))
    a("s_add_u32 s%d, s%d, s%d" % (sSig, sT, sT + 2))
    a("s_and_b32 s%d, s%d, 7" % (sT + 2, sT + 1))
    a("s_cmp_lt_u32 s%d, 2" % (sT + 2))
    a("s_cselect_b32 s%d, 1, 0" % sFfn)
    a("s_cmp_lt_u32 s%d, 14" % sSig)
    a("s_cselect_b32 s%d, s%d, 0" % (sFfn, sFfn))
    a("s_cselect_b32 s%d, s%d, 0" % (sSig, sSig))
    a("s_lshl_b32 s%d, s%d, 12" % (sT + 2, sWave))
    a("v_lshlrev_b32 v%d, 8, v%d" % (vKoff, vI))
    a("v_lshl_add_u32 v%d, v%d, 4, v%d" % (vKoff, vG, vKoff))
    a("v_add_u32 v%d, s%d, v%d" % (vKoff, sT + 2, vKoff))
    a("v_lshlrev_b32 v%d, 10, v%d" % (vVoff, vG))
    a("v_lshl_add_u32 v%d, v%d, 4, v%d" % (vVoff, vI, vVoff))
    a("v_add_u32 v%d, s%d, v%d" % (vVoff, sT + 2, vVoff))
    a("s_lshl_b32 s%d, s%d, 7" % (sT + 2, sWave))
    a("v_lshlrev_b32 v%d, 3, v%d" % (vT, vG))
    a("v_add_u32 v%d, s%d, v%d" % (vTmpA, sT + 2, vT))
    a("v_lshlrev_b32 v%d, 4, v%d" % (vPriv, vLane))
    a("s_lshl_b32 s%d, s%d, 5" % (sT + 2, sB))
    a("s_add_u32 s%d, s%d, s%d" % (sT + 2, sT + 2, sH))
    a("s_lshl_b32 s%d, s%d, 1" % (sT + 2, sT + 2))
    a("s_add_u32 s%d, s%d, s%d" % (sT + 2, sT + 2, sSp))
    a("s_lshl_b32 s%d, s%d, 20" % (sT + 3, sT + 2))
    a("s_lshl_b32 s%d, s%d, 10" % (sT + 4, sB))
    a("s_lshl_b32 s%d, s%d, 8" % (sT + 5, sH))
    a("s_lshl_b32 s%d, s%d, 17" % (sT + 6, sH))
    a("s_lshl_b32 s%d, s%d, 8" % (sT + 7, sSig))
    a("s_lshl_b32 s%d, s%d, 17" % (sT + 8, sSig))
    a("s_waitcnt lgkmcnt(0)")
    a("s_add_u32 s%d, s%d, s%d" % (sX, sX, sT + 4)); a("s_addc_u32 s%d, s%d, 0" % (sX + 1, sX + 1))
    for u in range(4):
        vm.issue("x", "global_load_dwordx2 v[%d:%d], v%d, s[%d:%d] offset:%d" % (vT + 2 * u, vT + 2 * u + 1, vTmpA, sX, sX + 1, 32 * u))
    vm.issue("gate", "global_load_dwordx4 %s, v%d, s[%d:%d]" % (vr(vS), vPriv, sX, sX + 1))
    vm.issue("gate", "global_load_dwordx4 %s, v%d, s[%d:%d]" % (vr(vP), vPriv, sGw, sGw + 1))
    def srd(r, base, off, nrec, nrec_sub=None):
        a("s_add_u32 s%d, s%d, s%d" % (r, base, off)); a("s_addc_u32 s%d, s%d, 0" % (r + 1, base + 1))
        if nrec_sub is None: a("s_mov_b32 s%d, 0x%x" % (r + 2, nrec))
        else: a("s_sub_u32 s%d, 0x%x, s%d" % (r + 2, nrec, nrec_sub))
        a("s_mov_b32 s%d, 0x20000" % (r + 3))
    srd(rWq, sWq, sT + 5, 4194304, sT + 5)
    srd(rW1, sW1, sT + 7, 1835008, sT + 7)
    srd(rK, sK, sT + 3, 0x100000)
    srd(rV, sV, sT + 3, 0x100000)
    srd(rW2, sW2, sT + 8, 131072)
    srd(rWo, sWo, sT + 6, 131072)
    vRow = vA[0]
    a("s_lshl_b32 s%d, s%d, 6" % (sT + 9, sWave))
    a("v_lshl_add_u32 v%d, v%d, 2, s%d" % (vRow, vG, sT + 9))
    a("s_cmp_eq_u32 s%d, 0" % sFfn)
    a("s_cbranch_scc1 L_noffn1")
    a("s_movk_i32 s%d, 3584" % (sT + 10))
    a("v_mul_lo_u32 v%d, v%d, s%d" % (vA[0] + 1, vRow, sT + 10))
    a("v_lshl_add_u32 v%d, v%d, 4, v%d" % (vA[0] + 1, vI, vA[0] + 1))
    a("s_add_u32 s%d, s%d, s%d" % (sB1, sB1, sT + 7)); a("s_addc_u32 s%d, s%d, 0" % (sB1 + 1, sB1 + 1))
    a("v_lshlrev_b32 v%d, 1, v%d" % (vA[0] + 2, vLane))
    a("global_load_ushort v%d, v%d, s[%d:%d]" % (vB1, vA[0] + 2, sB1, sB1 + 1))
    a("global_load_ushort v%d, v%d, s[%d:%d] offset:128" % (vB1 + 1, vA[0] + 2, sB1, sB1 + 1))
    a("v_and_b32 v%d, 7, v%d" % (vA[0] + 2, vI))
    a("v_lshlrev_b32 v%d, 4, v%d" % (vA[0] + 2, vA[0] + 2))
    a("v_and_b32 v%d, 1, v%d" % (vA[0] + 3, vG))
    a("v_lshl_add_u32 v%d, v%d, 3, v%d" % (vA[0] + 2, vA[0] + 3, vA[0] + 2))
    a("s_lshl_b32 s%d, s%d, 7" % (sT + 11, sWave))
    a("v_add_u32 v%d, s%d, v%d" % (vA[0] + 2, sT + 11, vA[0] + 2))
    a("global_load_dwordx2 v[%d:%d], v%d, s[%d:%d]" % (vB2, vB2 + 1, vA[0] + 2, sB2, sB2 + 1))
    for n in range(16):
        u, t = divmod(n, 4)
        a("s_mov_b32 s%d, %d" % (sT + 11, (16 * u + t) * 3584))
        a("buffer_load_dwordx4 %s, v%d, s[%d:%d], s%d offen%s" % (vr(vWB + 4 * n), vA[0] + 1, rW1, rW1 + 3, sT + 11, (" " + wpol) if wpol else ""))
    a("L_noffn1:")
    a("v_lshlrev_b32 v%d, 13, v%d" % (vA[1], vRow))
    a("v_lshl_add_u32 v%d, v%d, 4, v%d" % (vA[1], vI, vA[1]))
    for n in range(16):
        u, t = divmod(n, 4)
        a("s_mov_b32 s%d, %d" % (sT + 11, (16 * u + t) * 8192))
        vm.issue("wq%d" % u, "buffer_load_dwordx4 %s, v%d, s[%d:%d], s%d offen%s" % (vr(vWA + 4 * n), vA[1], rWq, rWq + 3, sT + 11, (" " + wpol) if wpol else ""))
    pol = (" " + kvpol) if kvpol else ""
    def kload(d, tag):
        for t in range(4):
            vm.issue(tag, "buffer_load_dwordx4 %s, v%d, s[%d:%d], s%d offen offset:%d%s" % (vr(Kb(d) + 4 * t), vKoff, rK, rK + 3, sOff, 64 * t, pol))
    def vload(d, tag):
        for t in range(4):
            vm.issue(tag, "buffer_load_dwordx4 %s, v%d, s[%d:%d], s%d offen offset:%d%s" % (vr(Vb(d) + 4 * t), vVoff, rV, rV + 3, sOff, 256 * t, pol))
    a("s_mov_b32 s%d, 0" % sOff)
    for d in range(D):
        kload(d, "K%d" % d); vload(d, "V%d" % d)
        a("s_add_u32 s%d, s%d, %d" % (sOff, sOff, 4096 * W))
    a("s_mov_b32 s%d, %s" % (sC, fbits(CSCALE)))
    for k in range(3): a("s_mov_b32 s%d, %d" % (sU[k], 16384 * (k + 1)))
    a("s_getpc_b64 s[%d:%d]" % (sRare, sRare + 1))
    a("L_pc:")
    a("s_add_u32 s%d, s%d, L_rare-L_pc" % (sRare, sRare))
    a("s_addc_u32 s%d, s%d, 0" % (sRare + 1, sRare + 1))
    a("v_and_b32 v%d, 7, v%d" % (vTmpA, vI))
    a("v_lshrrev_b32 v%d, 1, v%d" % (vA[1] + 1, vTmpA))
    a("v_and_b32 v%d, 1, v%d" % (vTmpA, vTmpA))
    a("v_lshlrev_b32 v%d, 4, v%d" % (vTmpA, vTmpA))
    a("v_mov_b32 v%d, 0xffff" % (vA[1] + 2))
    a("v_lshlrev_b32 v%d, v%d, v%d" % (vA[1] + 2, vTmpA, vA[1] + 2))
    for r in range(4):
        a("v_cmp_eq_u32 vcc, %d, v%d" % (r, vA[1] + 1))
        a("v_cndmask_b32 v%d, 0, v%d, vcc" % (vMask + r, vA[1] + 2))
    a("v_lshrrev_b32 v%d, 3, v%d" % (vW2off, vI))
    a("v_lshlrev_b32 v%d, 16, v%d" % (vW2off, vW2off))
    a("v_lshl_add_u32 v%d, v%d, 12, v%d" % (vW2off, vG, vW2off))
    a("v_and_b32 v%d, 7, v%d" % (vTmpA, vI))
    a("v_lshl_add_u32 v%d, v%d, 4, v%d" % (vW2off, vTmpA, vW2off))
    a("s_lshl_b32 s%d, s%d, 7" % (sT + 11, sWave))
    a("v_add_u32 v%d, s%d, v%d" % (vW2off, sT + 11, vW2off))
    a("v_mov_b32 v%d, %s" % (vM, fbits(-3.0e38)))
    a("v_mul_f32 v%d, s%d, v%d" % (vMC, sC, vM))
    a("v_mov_b32 v%d, 0" % vL)
    for r in range(4): a("v_mov_b32 v%d, 0" % (vO + r))
    vm.wait("gate")
    a("v_mov_b32 v%d, 0" % vTmpA)
    for r in range(4): a("v_dot2c_f32_bf16 v%d, v%d, v%d" % (vTmpA, vS + r, vP + r))
    def wave_sum(v, sdst):
        for m in ("quad_perm:[1,0,3,2]", "quad_perm:[2,3,0,1]", "row_half_mirror", "row_mirror"):
            a("v_add_f32_dpp v%d, v%d, v%d %s row_mask:0xf bank_mask:0xf" % (v, v, v, m))
        for k in range(4): a("v_readlane_b32 s%d, v%d, %d" % (sdst + k, v, 16 * k))
        a("v_mov_b32 v%d, s%d" % (v, sdst))
        for k in range(1, 4): a("v_add_f32 v%d, s%d, v%d" % (v, sdst + k, v))
    wave_sum(vTmpA, sT)
    a("v_mul_f32 v%d, %s, v%d" % (vTmpA, fbits(-LOG2E), vTmpA))
    a("v_exp_f32 v%d, v%d" % (vTmpA, vTmpA))
    a("v_add_f32 v%d, 1.0, v%d" % (vTmpA, vTmpA))
    a("v_rcp_f32 v%d, v%d" % (vTmpA, vTmpA))
    a("v_readfirstlane_b32 s%d, v%d" % (sGate, vTmpA))
    a("s_mov_b32 s%d, 0x01000100" % sT); a("s_mov_b32 s%d, 0x03020302" % (sT + 1))
    for u in range(4):
        for t in range(4):
            a("v_perm_b32 v%d, v%d, v%d, s%d" % (vQ + 4 * u + t, vT + 2 * u + t // 2, vT + 2 * u + t // 2, sT + (t & 1)))
    def gemv64(Wb, Pb, acc, waits=None):
        def ands(n):
            for r in range(4): a("v_and_b32 v%d, v%d, v%d" % (vA[n & 1] + r, vPsel(n), vMask + r))
        vPsel = lambda n: Pb + n
        ands(0)
        for n in range(16):
            if waits and n % 4 == 0: waits(n // 4)
            if n + 1 < 16: ands(n + 1)
            a("v_mfma_f32_16x16x32_bf16 %s, %s, %s, %s" % (vr(acc), vr(vA[n & 1]), vr(Wb + 4 * n), "0" if n == 0 else vr(acc)))
    vPA = vTmpA
    gemv64(vWA, vQ, vS, waits=lambda u: vm.wait("wq%d" % u))
    a("v_lshlrev_b32 v%d, 5, v%d" % (vPA, vI))
    a("v_lshl_add_u32 v%d, v%d, 4, v%d" % (vPA, vG, vPA))
    a("s_lshl_b32 s%d, s%d, 9" % (sT + 11, sWave))
    a("v_add_u32 v%d, s%d, v%d" % (vPA, sT + 11, vPA))
    a("s_mov_b32 exec_hi, 0")
    a("ds_write_b128 v%d, %s offset:%d" % (vPA, vr(vS), L_QP))
    a("s_mov_b32 exec_hi, -1")
    a("s_cmp_eq_u32 s%d, 0" % sFfn)
    a("s_cbranch_scc1 L_noffn2")
    gemv64(vWB, vQ, vP)
    a("s_mov_b32 exec_hi, 0")
    a("ds_write_b128 v%d, %s offset:%d" % (vPA, vr(vP), L_HP))
    a("s_mov_b32 exec_hi, -1")
    a("L_noffn2:")
    a("s_cmp_eq_u32 s%d, 0" % sFfn)
    for k in range(3): a("s_cselect_b32 s%d, s%d, s%d" % (sT + k, rWo + k, rW2 + k))
    a("s_mov_b32 s%d, s%d" % (sT + 4, sT)); a("s_mov_b32 s%d, s%d" % (sT + 5, sT + 1)); a("s_mov_b32 s%d, s%d" % (sT + 6, sT + 2))
    a("s_mov_b32 s%d, 0x20000" % (sT + 7))
    def w2load(r, tag):
        for n in range(16):
            u, t = divmod(n, 4)
            so = "0" if u == 0 else "s%d" % sU[u - 1]
            vm.issue(tag, "buffer_load_dwordx4 %s, v%d, s[%d:%d], %s offen offset:%d%s" % (vr(vWA + 4 * n), vW2off, r, r + 3, so, 1024 * t, (" " + wpol) if wpol else ""))
    w2load(sT + 4, "wa2")
    a("s_lshl_b32 s%d, s%d, 9" % (sT + 11, sWave))
    a("s_add_u32 s%d, s%d, %d" % (sT + 11, sT + 11, L_PRIV))
    a("s_waitcnt lgkmcnt(0)")
    a("s_barrier")
    a("v_lshlrev_b32 v%d, 3, v%d" % (vTmpA, vLane))
    tq = vQ
    for w in range(8):
        a("ds_read_b64 v[%d:%d], v%d offset:%d" % (tq + 2 * w, tq + 2 * w + 1, vTmpA, L_QP + 512 * w))
    a("v_lshlrev_b32 v%d, 2, v%d" % (vPriv, vLane))
    a("v_add_u32 v%d, s%d, v%d" % (vPriv, sT + 11, vPriv))
    a("s_waitcnt lgkmcnt(0)")
    for step in (4, 2, 1):
        for w in range(step):
            for k in range(2):
                a("v_add_f32 v%d, v%d, v%d" % (tq + 2 * w + k, tq + 2 * w + k, tq + 2 * (w + step) + k))
    a("v_cvt_pk_bf16_f32 v%d, v%d, v%d" % (vTmpA, tq, tq + 1))
    a("ds_write_b32 v%d, v%d" % (vPriv, vTmpA))
    a("v_lshl_add_u32 v%d, v%d, 4, s%d" % (vTmpA, vG, sT + 11))
    a("s_waitcnt lgkmcnt(0)")
    for t in range(4):
        a("ds_read_b128 %s, v%d offset:%d" % (vr(vQ + 4 * t), vTmpA, 64 * t))
    a("s_cmp_eq_u32 s%d, 0" % sFfn)
    a("s_cbranch_scc1 L_noffn3")
    th = vWB + 16
    a("v_lshlrev_b32 v%d, 2, v%d" % (vA[0], vLane))
    for w in range(8):
        a("ds_read2st64_b32 v[%d:%d], v%d offset0:%d offset1:%d" % (th + 2 * w, th + 2 * w + 1, vA[0], L_HP // 256 + 2 * w, L_HP // 256 + 2 * w + 1))
    a("s_waitcnt lgkmcnt(0)")
    for step in (4, 2, 1):
        for w in range(step):
            for k in range(2):
                a("v_add_f32 v%d, v%d, v%d" % (th + 2 * w + k, th + 2 * w + k, th + 2 * (w + step) + k))
    for k in range(2):
        a("v_cvt_pk_bf16_f32 v%d, v%d, v%d" % (th + k, th + k, th + k))
        a("v_and_b32 v%d, 0xffff0000, v%d" % (th + k, th + k))
        a("v_lshlrev_b32 v%d, 16, v%d" % (vB1 + k, vB1 + k))
        a("v_add_f32 v%d, v%d, v%d" % (th + k, th + k, vB1 + k))
        a("v_cvt_pk_bf16_f32 v%d, v%d, v%d" % (th + k, th + k, th + k))
        a("v_and_b32 v%d, 0xffff0000, v%d" % (th + k, th + k))
        a("v_max_f32 v%d, 0, v%d" % (th + k, th + k))
        a("v_mul_f32 v%d, v%d, v%d" % (th + k, th + k, th + k))
        a("v_cvt_pk_bf16_f32 v%d, v%d, v%d" % (th + k, th + k, th + k))
    a("ds_write2st64_b32 v%d, v%d, v%d offset0:0 offset1:1" % (vPriv, th, th + 1))
    a("v_lshrrev_b32 v%d, 3, v%d" % (vA[0], vI))
    a("v_lshlrev_b32 v%d, 8, v%d" % (vA[0], vA[0]))
    a("v_lshl_add_u32 v%d, v%d, 4, v%d" % (vA[0], vG, vA[0]))
    a("v_add_u32 v%d, s%d, v%d" % (vA[0], sT + 11, vA[0]))
    a("s_waitcnt lgkmcnt(0)")
    for u in range(4):
        a("ds_read_b128 %s, v%d offset:%d" % (vr(vHP + 4 * u), vA[0], 64 * u))
    a("L_noffn3:")
    a("s_waitcnt lgkmcnt(0)")

    ntr = [0]
    tramps = []
    def tile(d, prefetch, extra=None):
        vm.wait("K%d" % d)
        for t in range(4):
            a("v_mfma_f32_16x16x32_bf16 %s, %s, %s, %s" % (vr(vS), vr(Kb(d) + 4 * t), vr(vQ + 4 * t), "0" if t == 0 else vr(vS)))
        if prefetch: kload(d, "K%d" % d)
        a("v_max3_f32 v%d, v%d, v%d, v%d" % (vT, vS, vS + 1, vS + 2))
        a("v_max_f32 v%d, v%d, v%d" % (vT, vT, vS + 3))
        a("v_cmp_gt_f32 vcc, v%d, v%d" % (vT, vM))
        k = ntr[0]; ntr[0] += 1
        a("s_cbranch_vccnz L_tr%d" % k)
        a("L_back%d:" % k)
        tramps.append(k)
        for t in range(4): a("v_fma_f32 v%d, v%d, s%d, -v%d" % (vS + t, vS + t, sC, vMC))
        for t in range(4): a("v_exp_f32 v%d, v%d" % (vS + t, vS + t))
        a("v_add_f32 v%d, v%d, v%d" % (vT, vS, vS + 1))
        a("v_add_f32 v%d, v%d, v%d" % (vT + 1, vS + 2, vS + 3))
        for t in range(4): a("v_cvt_pk_bf16_f32 v%d, v%d, v%d" % (vP + t, vS + t, vS + t))
        a("v_add_f32 v%d, v%d, v%d" % (vT, vT, vT + 1))
        a("v_add_f32 v%d, v%d, v%d" % (vL, vL, vT))
        def ands(t):
            for r in range(4): a("v_and_b32 v%d, v%d, v%d" % (vA[t & 1] + r, vP + t, vMask + r))
        ands(0); ands(1)
        vm.wait("V%d" % d)
        for t in range(4):
            a("v_mfma_f32_16x16x32_bf16 %s, %s, %s, %s" % (vr(vO), vr(vA[t & 1]), vr(Vb(d) + 4 * t), vr(vO)))
            if t + 2 < 4: ands(t + 2)
        if prefetch:
            vload(d, "V%d" % d)
            a("s_add_u32 s%d, s%d, %d" % (sOff, sOff, 4096 * W))

    def rho_combine(acc):
        a("v_add_u32 v%d, 40, v%d" % (vT + 4, vLane))
        a("v_and_b32 v%d, 63, v%d" % (vT + 4, vT + 4))
        a("v_lshlrev_b32 v%d, 2, v%d" % (vT + 4, vT + 4))
        for r in range(4): a("ds_bpermute_b32 v%d, v%d, v%d" % (vT + r, vT + 4, acc + r))
        a("s_waitcnt lgkmcnt(0)")
        for r in range(4): a("v_add_f32 v%d, v%d, v%d" % (acc + r, acc + r, vT + r))
    def ystore_off(v):
        a("v_and_b32 v%d, 7, v%d" % (v, vI))
        a("v_lshlrev_b32 v%d, 5, v%d" % (v, v))
        a("v_and_b32 v%d, 1, v%d" % (vT + 5, vG))
        a("v_lshl_add_u32 v%d, v%d, 4, v%d" % (v, vT + 5, v))
        a("s_lshl_b32 s%d, s%d, 8" % (sT, sWave))
        a("v_add_u32 v%d, s%d, v%d" % (v, sT, v))

    for it in range(D): tile(it % D, True)
    base_q = list(vm.q)
    a("s_cmp_eq_u32 s%d, 0" % sFfn)
    a("s_cbranch_scc1 L_noffn4")
    vm.wait("wa2")
    gemv64(vWA, vHP, vS)
    w2load(rWo, "wo")
    rho_combine(vS)
    a("s_cmp_eq_u32 s%d, 0" % sSig)
    a("s_cselect_b32 s%d, 1.0, 0" % (sT + 1))
    a("v_lshlrev_b32 v%d, 16, v%d" % (vT, vB2)); a("v_and_b32 v%d, 0xffff0000, v%d" % (vT + 1, vB2))
    a("v_lshlrev_b32 v%d, 16, v%d" % (vT + 2, vB2 + 1)); a("v_and_b32 v%d, 0xffff0000, v%d" % (vT + 3, vB2 + 1))
    for r in range(4): a("v_fma_f32 v%d, v%d, s%d, v%d" % (vS + r, vT + r, sT + 1, vS + r))
    a("v_mov_b32 v%d, s%d" % (vT, sGate))
    a("v_sub_f32 v%d, 1.0, v%d" % (vT, vT))
    for r in range(4): a("v_mul_f32 v%d, v%d, v%d" % (vS + r, vS + r, vT))
    ystore_off(vT + 6)
    a("s_mul_i32 s%d, s%d, 14" % (sT + 1, sB)); a("s_add_u32 s%d, s%d, s%d" % (sT + 1, sT + 1, sSig))
    a("s_lshl_b32 s%d, s%d, 11" % (sT + 1, sT + 1)); a("s_add_u32 s%d, s%d, 0x%x" % (sT + 1, sT + 1, WS_YF))
    a("s_add_u32 s%d, s%d, s%d" % (sT + 2, sWs, sT + 1)); a("s_addc_u32 s%d, s%d, 0" % (sT + 3, sWs + 1))
    a("s_mov_b64 exec, 0x00ff00ff")
    vm.issue("st", "global_store_dwordx4 v%d, %s, s[%d:%d]%s" % (vT + 6, vr(vS), sT + 2, sT + 3, (" " + stpol) if stpol else ""))
    a("s_mov_b64 exec, -1")
    for it in range(D, 2 * D): tile(it % D, True)
    q_ffn = list(vm.q)
    nloop_total = (NT - 2 * D) // D
    rem = (NT - 2 * D) - nloop_total * D
    a("s_mov_b32 s%d, %d" % (sCnt, nloop_total - 1))
    a("s_branch L_loop")
    a("L_noffn4:")
    a("s_mov_b32 s%d, %d" % (sCnt, nloop_total))
    vm.q = list(base_q)
    a("L_loop:")
    q0 = [t for t in vm.q]
    for it in range(D): tile(it, True)
    steady = list(vm.q)
    assert [t for t in steady] == [t for t in q_ffn if t[0] in "KV"][-len(steady):], (steady, q_ffn)
    a("s_sub_u32 s%d, s%d, 1" % (sCnt, sCnt))
    a("s_cmp_lg_u32 s%d, 0" % sCnt)
    a("s_cbranch_scc1 L_loop")
    for it in range(rem): tile(it % D, True)
    for it in range(D): tile((rem + it) % D, False)

    if stamps: a("s_memrealtime s[%d:%d]" % (sStamp + 4, sStamp + 5))
    for k in range(4): a("v_readlane_b32 s%d, v%d, %d" % (sT + k, vL, 16 * k))
    a("v_mov_b32 v%d, s%d" % (vT + 1, sT))
    for k in range(1, 4): a("v_add_f32 v%d, s%d, v%d" % (vT + 1, sT + k, vT + 1))
    a("v_mov_b32 v%d, v%d" % (vT, vM))
    a("s_lshl_b32 s%d, s%d, 3" % (sT + 4, sWave))
    a("v_mov_b32 v%d, s%d" % (vT + 2, sT + 4))
    a("v_lshlrev_b32 v%d, 5, v%d" % (vT + 3, vI))
    a("v_lshl_add_u32 v%d, v%d, 4, v%d" % (vT + 3, vG, vT + 3))
    a("s_lshl_b32 s%d, s%d, 9" % (sT + 5, sWave))
    a("v_add_u32 v%d, s%d, v%d" % (vT + 3, sT + 5, vT + 3))
    a("s_mov_b32 exec_hi, 0")
    a("ds_write_b128 v%d, %s offset:%d" % (vT + 3, vr(vO), L_EP))
    a("s_mov_b32 exec_lo, 1")
    a("ds_write_b64 v%d, v[%d:%d] offset:%d" % (vT + 2, vT, vT + 1, L_ML))
    a("s_mov_b64 exec, -1")
    a("s_waitcnt lgkmcnt(0)")
    a("s_barrier")
    tm = Kb(0)
    to = Kb(0) + 16
    a("v_mov_b32 v%d, 0" % vT)
    for k in range(4): a("ds_read_b128 %s, v%d offset:%d" % (vr(tm + 4 * k), vT, L_ML + 16 * k))
    a("v_lshlrev_b32 v%d, 2, v%d" % (vT + 1, vLane))
    for w in range(8):
        a("ds_read2st64_b32 v[%d:%d], v%d offset0:%d offset1:%d" % (to + 2 * w, to + 2 * w + 1, vT + 1, L_EP // 256 + 2 * w, L_EP // 256 + 2 * w + 1))
    a("s_waitcnt lgkmcnt(8)")
    a("v_max3_f32 v%d, v%d, v%d, v%d" % (vM, tm, tm + 2, tm + 4))
    a("v_max3_f32 v%d, v%d, v%d, v%d" % (vM, vM, tm + 6, tm + 8))
    a("v_max3_f32 v%d, v%d, v%d, v%d" % (vM, vM, tm + 10, tm + 12))
    a("v_max_f32 v%d, v%d, v%d" % (vM, vM, tm + 14))
    a("v_mul_f32 v%d, s%d, v%d" % (vMC, sC, vM))
    for w in range(8): a("v_fma_f32 v%d, v%d, s%d, -v%d" % (tm + 2 * w, tm + 2 * w, sC, vMC))
    for w in range(8): a("v_exp_f32 v%d, v%d" % (tm + 2 * w, tm + 2 * w))
    a("v_mul_f32 v%d, v%d, v%d" % (vL, tm, tm + 1))
    for w in range(1, 8): a("v_fmac_f32 v%d, v%d, v%d" % (vL, tm + 2 * w, tm + 2 * w + 1))
    a("s_waitcnt lgkmcnt(0)")
    for k in range(2): a("v_mul_f32 v%d, v%d, v%d" % (vT + 2 + k, tm, to + k))
    for w in range(1, 8):
        for k in range(2): a("v_fmac_f32 v%d, v%d, v%d" % (vT + 2 + k, tm + 2 * w, to + 2 * w + k))
    for k in range(2): a("v_cvt_pk_bf16_f32 v%d, v%d, v%d" % (vT + 2 + k, vT + 2 + k, vT + 2 + k))
    a("ds_write2st64_b32 v%d, v%d, v%d offset0:0 offset1:1" % (vPriv, vT + 2, vT + 3))
    a("s_lshl_b32 s%d, s%d, 9" % (sT, sWave)); a("s_add_u32 s%d, s%d, %d" % (sT, sT, L_PRIV))
    a("v_lshrrev_b32 v%d, 3, v%d" % (vT, vI))
    a("v_lshlrev_b32 v%d, 8, v%d" % (vT, vT))
    a("v_lshl_add_u32 v%d, v%d, 4, v%d" % (vT, vG, vT))
    a("v_add_u32 v%d, s%d, v%d" % (vT, sT, vT))
    a("s_waitcnt lgkmcnt(0)")
    for u in range(4): a("ds_read_b128 %s, v%d offset:%d" % (vr(vQ + 4 * u), vT, 64 * u))
    a("s_waitcnt lgkmcnt(0)")
    gemv64(vWA, vQ, vS)
    rho_combine(vS)
    ystore_off(vT + 6)
    a("s_lshl_b32 s%d, s%d, 5" % (sT + 1, sB)); a("s_add_u32 s%d, s%d, s%d" % (sT + 1, sT + 1, sH))
    a("s_lshl_b32 s%d, s%d, 1" % (sT + 1, sT + 1)); a("s_add_u32 s%d, s%d, s%d" % (sT + 1, sT + 1, sSp))
    a("s_lshl_b32 s%d, s%d, 11" % (sT + 2, sT + 1))
    a("s_add_u32 s%d, s%d, s%d" % (sT + 2, sWs, sT + 2)); a("s_addc_u32 s%d, s%d, 0" % (sT + 3, sWs + 1))
    a("s_mov_b64 exec, 0x00ff00ff")
    a("global_store_dwordx4 v%d, %s, s[%d:%d]%s" % (vT + 6, vr(vS), sT + 2, sT + 3, (" " + stpol) if stpol else ""))
    a("s_mov_b64 exec, -1")
    a("s_cmp_lg_u32 s%d, 0" % sWave)
    a("s_cbranch_scc1 L_fin")
    a("v_mov_b32 v%d, s%d" % (vT, sGate))
    a("v_rcp_f32 v%d, v%d" % (vT, vT))
    a("v_mul_f32 v%d, v%d, v%d" % (vT + 1, vL, vT))
    a("v_mov_b32 v%d, v%d" % (vT, vMC))
    a("s_lshl_b32 s%d, s%d, 3" % (sT + 2, sT + 1)); a("s_add_u32 s%d, s%d, 0x%x" % (sT + 2, sT + 2, WS_ML))
    a("v_mov_b32 v%d, s%d" % (vT + 2, sT + 2))
    a("s_mov_b64 exec, 1")
    a("global_store_dwordx2 v%d, v[%d:%d], s[%d:%d]%s" % (vT + 2, vT, vT + 1, sWs, sWs + 1, (" " + stpol) if stpol else ""))
    if stamps:
        a("s_waitcnt vmcnt(0)")
        a("s_memrealtime s[%d:%d]" % (sStamp + 2, sStamp + 3))
        a("s_waitcnt lgkmcnt(0)")
        for k in range(6): a("v_mov_b32 v%d, s%d" % (vKV + k, sStamp + k))
        a("s_lshl_b32 s%d, s2, 4" % sT); a("s_add_u32 s%d, s%d, 0x%x" % (sT, sT, WS_STAMP))
        a("v_mov_b32 v%d, s%d" % (vT + 2, sT))
        a("global_store_dwordx4 v%d, %s, s[%d:%d]" % (vT + 2, vr(vKV), sWs, sWs + 1))
        a("s_lshl_b32 s%d, s2, 3" % sT); a("s_add_u32 s%d, s%d, 0x%x" % (sT, sT, WS_STAMP + 0x10000))
        a("v_mov_b32 v%d, s%d" % (vT + 2, sT))
        a("global_store_dwordx2 v%d, v[%d:%d], s[%d:%d]" % (vT + 2, vKV + 4, vKV + 5, sWs, sWs + 1))
    a("L_fin:")
    a("L_done:")
    a("s_endpgm")
    for k in tramps:
        a("L_tr%d:" % k)
        a("s_swappc_b64 s[%d:%d], s[%d:%d]" % (sRet, sRet + 1, sRare, sRare + 1))
        a("s_branch L_back%d" % k)
    a("L_rare:")
    for k in range(4): a("v_readlane_b32 s%d, v%d, %d" % (sT + k, vT, 16 * k))
    a("v_mov_b32 v%d, s%d" % (vT + 1, sT))
    for k in range(1, 4): a("v_max_f32 v%d, s%d, v%d" % (vT + 1, sT + k, vT + 1))
    a("v_max_f32 v%d, v%d, v%d" % (vT + 1, vT + 1, vM))
    a("v_sub_f32 v%d, v%d, v%d" % (vT + 2, vM, vT + 1))
    a("v_mul_f32 v%d, s%d, v%d" % (vT + 2, sC, vT + 2))
    a("v_exp_f32 v%d, v%d" % (vT + 2, vT + 2))
    a("v_mov_b32 v%d, v%d" % (vM, vT + 1))
    a("v_mul_f32 v%d, s%d, v%d" % (vMC, sC, vT + 1))
    for r in range(4): a("v_mul_f32 v%d, v%d, v%d" % (vO + r, vO + r, vT + 2))
    a("v_mul_f32 v%d, v%d, v%d" % (vL, vL, vT + 2))
    a("s_nop 1")
    a("s_setpc_b64 s[%d:%d]" % (sRet, sRet + 1))
    body1 = a.finish()

    c = Asm()
    c("%s:" % K2)
    c("s_cmp_ge_u32 s2, 64")
    c("s_cbranch_scc1 L2_done")
    c("s_load_dwordx2 s[4:5], s[0:1], 88")
    c("s_load_dwordx2 s[6:7], s[0:1], 104")
    c("s_lshr_b32 s8, s2, 4")
    c("s_and_b32 s9, s2, 15")
    c("v_lshrrev_b32 v1, 3, v0")
    c("v_and_b32 v2, 7, v0")
    c("v_lshlrev_b32 v3, 14, v1")
    c("v_lshl_add_u32 v3, v2, 4, v3")
    c("v_lshlrev_b32 v4, 11, v1")
    c("v_lshl_add_u32 v4, v2, 4, v4")
    c("v_lshlrev_b32 v5, 6, v1")
    c("s_lshl_b32 s10, s8, 17"); c("s_lshl_b32 s11, s9, 7"); c("s_add_u32 s10, s10, s11")
    c("s_mul_i32 s12, s8, 28672"); c("s_add_u32 s12, s12, s11"); c("s_add_u32 s12, s12, 0x%x" % WS_YF)
    c("s_lshl_b32 s13, s8, 9"); c("s_add_u32 s13, s13, 0x%x" % WS_ML)
    c("s_movk_i32 s24, 4096"); c("s_movk_i32 s25, 8192"); c("s_movk_i32 s26, 12288"); c("s_movk_i32 s27, 16384")
    c("s_waitcnt lgkmcnt(0)")
    c("s_add_u32 s16, s6, s10"); c("s_addc_u32 s17, s7, 0"); c("s_mov_b32 s18, 0x20000"); c("s_mov_b32 s19, 0x20000")
    c("s_add_u32 s20, s6, s12"); c("s_addc_u32 s21, s7, 0"); c("s_sub_u32 s22, 28672, s11"); c("s_mov_b32 s23, 0x20000")
    c("s_add_u32 s14, s6, s13"); c("s_addc_u32 s15, s7, 0")
    for k in range(4): c("global_load_dwordx4 %s, v5, s[14:15] offset:%d" % (vr(8 + 4 * k), 16 * k))
    for j in range(8):
        so = "0" if j < 2 else "s%d" % (24 + j // 2 - 1)
        c("buffer_load_dwordx4 %s, v3, s[16:19], %s offen offset:%d" % (vr(24 + 4 * j), so, 2048 * (j & 1)))
    c("buffer_load_dwordx4 v[56:59], v4, s[20:23], 0 offen")
    c("buffer_load_dwordx4 v[60:63], v4, s[20:23], s27 offen")
    c("s_lshl_b32 s28, s8, 10"); c("s_lshl_b32 s29, s9, 6"); c("s_add_u32 s28, s28, s29")
    c("s_add_u32 s4, s4, s28"); c("s_addc_u32 s5, s5, 0")
    c("v_lshlrev_b32 v6, 3, v2")
    c("s_waitcnt vmcnt(10)")
    for p in range(4):
        r = 8 + 4 * p
        c("v_max_f32 v64, v%d, v%d" % (r, r + 2))
        c("v_sub_f32 v%d, v%d, v64" % (r, r)); c("v_sub_f32 v%d, v%d, v64" % (r + 2, r + 2))
        c("v_exp_f32 v%d, v%d" % (r, r)); c("v_exp_f32 v%d, v%d" % (r + 2, r + 2))
        c("v_mul_f32 v%d, v%d, v%d" % (r + 1, r + 1, r))
        c("v_fmac_f32 v%d, v%d, v%d" % (r + 1, r + 3, r + 2))
        c("v_rcp_f32 v%d, v%d" % (r + 1, r + 1))
        c("v_mul_f32 v%d, v%d, v%d" % (r, r, r + 1)); c("v_mul_f32 v%d, v%d, v%d" % (r + 2, r + 2, r + 1))
    c("s_waitcnt vmcnt(0)")
    for r in range(4): c("v_add_f32 v%d, v%d, v%d" % (56 + r, 56 + r, 60 + r))
    for j in range(8):
        sc = 8 + 4 * (j // 2) + 2 * (j & 1)
        for r in range(4): c("v_fmac_f32 v%d, v%d, v%d" % (56 + r, sc, 24 + 4 * j + r))
    for r in range(4): c("v_add_f32_dpp v%d, v%d, v%d row_ror:8 row_mask:0xf bank_mask:0xf" % (56 + r, 56 + r, 56 + r))
    for sw in ("v_permlane16_swap_b32", "v_permlane32_swap_b32"):
        for r in range(4): c("v_mov_b32 v%d, v%d" % (60 + r, 56 + r))
        for r in range(4): c("%s v%d, v%d" % (sw, 56 + r, 60 + r))
        for r in range(4): c("v_add_f32 v%d, v%d, v%d" % (56 + r, 56 + r, 60 + r))
    c("v_cvt_pk_bf16_f32 v56, v56, v57")
    c("v_cvt_pk_bf16_f32 v57, v58, v59")
    c("s_mov_b64 exec, 0xff")
    c("global_store_dwordx2 v6, v[56:57], s[4:5]")
    c("L2_done:")
    c("s_endpgm")
    body2 = c.finish()

    hdr = open("cdna_kernels/%s.s.ref" % NAME).read().split("; Override launch")[0]
    out = hdr
    out += "; @launch kernel=%s grid=(256,1,1) block=(%d,1,1) lds=%d\n" % (K1, 64 * W, L_END)
    out += "; @launch kernel=%s grid=(64,1,1) block=(64,1,1) lds=0\n" % K2
    out += '.amdgcn_target "amdgcn-amd-amdhsa--gfx950"\n.text\n'
    for k, body in ((K1, body1), (K2, body2)):
        out += ".globl %s\n.p2align 8\n.type %s,@function\n" % (k, k) + body
    out += '.section .rodata,"a"\n'
    for k, nv, ns in ((K1, NV, 96), (K2, 72, 40)):
        out += ".p2align 6\n.amdhsa_kernel %s\n" % k
        out += "  .amdhsa_next_free_vgpr %d\n  .amdhsa_next_free_sgpr %d\n  .amdhsa_accum_offset %d\n" % (nv, ns, (nv + 3) // 4 * 4)
        out += "  .amdhsa_group_segment_fixed_size 0\n  .amdhsa_kernarg_size 112\n  .amdhsa_user_sgpr_count 2\n"
        out += "  .amdhsa_user_sgpr_kernarg_segment_ptr 1\n  .amdhsa_system_sgpr_workgroup_id_x 1\n"
        out += "  .amdhsa_float_denorm_mode_32 3\n"
        out += ".end_amdhsa_kernel\n"
    return out

if __name__ == "__main__":
    import argparse
    ap = argparse.ArgumentParser()
    ap.add_argument("-o", default="cdna_kernels/%s.s" % NAME)
    ap.add_argument("--D", type=int, default=2)
    ap.add_argument("--kvpol", default="nt")
    ap.add_argument("--wpol", default="")
    ap.add_argument("--stpol", default="")
    ap.add_argument("--stamps", action="store_true")
    x = ap.parse_args()
    open(x.o, "w").write(gen(D=x.D, kvpol=x.kvpol, wpol=x.wpol, stpol=x.stpol, stamps=x.stamps))
    print("wrote", x.o)
```

```python
import sys, os, struct
sys.path.insert(0, os.path.dirname(os.path.abspath(__file__)))
from asmlib import Asm, VmQueue

NAME = "gated_mix__mha_block_cached__dense_activation_squared_relu__decode"
K1 = NAME + "_kernel"
K2 = "final_reduce_kernel"

def fbits(x): return "0x%08x" % struct.unpack("<I", struct.pack("<f", x))[0]
LOG2E = 1.4426950408889634
CSCALE = LOG2E * (128 ** -0.5)

WS_Y, WS_YF, WS_ML = 0, 0x80000, 0x100000
WS_STAMP = 0x20000000
L_QP, L_PRIV, L_EP, L_ML, L_CNT, L_HP, L_END = 0, 4096, 8192, 12288, 12416, 12544, 13056
NFF = 56

def vr(b, n=4): return "v[%d:%d]" % (b, b + n - 1)
def sp(b): return "s[%d:%d]" % (b, b + 1)
def sq(b): return "s[%d:%d]" % (b, b + 3)

def gen(D=2, kvpol="nt", wqpol="nt", wopol="nt", fpol="nt", stpol="", stamps=False, W=8, wo_it="head", kpat="r16", barrier1=True, rot=True, ffn=True, early="split", prio=0, mixr=1, stag=4, wot=(32, 5)):
    NT = 4096 // 16 // W
    a = Asm()
    P = lambda p: (" " + p) if p else ""
    vLane, vG, vI = 1, 2, 3
    vKoff, vVoff, vL, vM, vMC, vW2off = 4, 5, 6, 7, 8, 9
    vPriv, vTmpA = 10, 11
    vMask = 12
    vQ = 16; vS = 32; vP = 36; vA = [40, 44]; vO = 48; vT = 52
    vKV = 64
    vWA = vKV + 32 * D
    NV = vWA + 64
    assert NV <= 256
    Kb = lambda d: vKV + 32 * d
    Vb = lambda d: vKV + 32 * d + 16
    sX, sK, sV, sWq, sWo, sBx, sW1, sB1 = 4, 6, 8, 10, 12, 14, 16, 18
    sW2, sB2, sGw, sOut, sWs = 20, 22, 24, 26, 28
    sH, sB, sSp, sWave = 30, 31, 32, 3
    sFfn, sSig, sRot = 33, 34, 35
    rK, rV, rWq, rWo = 36, 40, 44, 48
    rW1, rW2 = 52, 56
    sOff, sCnt, sC, sGate = 60, 61, 62, 63
    sT = 64
    sRet, sRare = 76, 78
    sU = [80, 81, 82]
    sWoT, sRow = 83, 84
    sNext, sPre, sPriv = 61, 100, 101
    sIdx = [44, 45, 46, 47]
    vGrab, vCnt, vOne = 60, 61, 62
    sStamp = 86
    sXS = 90
    NXS = 5
    vm = VmQueue(a)
    def xs(k):
        if stamps: a("s_memrealtime %s" % sp(sXS + 2 * k))
    def srd(r, base, off, nrec, nrec_sub=None):
        a("s_add_u32 s%d, s%d, s%d" % (r, base, off)); a("s_addc_u32 s%d, s%d, 0" % (r + 1, base + 1))
        if nrec_sub is None: a("s_mov_b32 s%d, 0x%x" % (r + 2, nrec))
        else: a("s_sub_u32 s%d, 0x%x, s%d" % (r + 2, nrec, nrec_sub))
        a("s_mov_b32 s%d, 0x20000" % (r + 3))

    a("%s:" % K1)
    a("s_cmp_ge_u32 s2, 256")
    a("s_cbranch_scc1 L_done")
    a("s_load_dwordx16 s[4:19], s[0:1], 0")
    if prio: a("s_setprio %d" % prio)
    a("s_load_dwordx8 s[20:27], s[0:1], 64")
    a("s_load_dwordx2 s[28:29], s[0:1], 104")
    if stamps: a("s_memrealtime %s" % sp(sStamp))
    a("v_lshrrev_b32 v%d, 6, v0" % vTmpA)
    a("v_and_b32 v%d, 63, v0" % vLane)
    a("v_readfirstlane_b32 s%d, v%d" % (sWave, vTmpA))
    a("v_lshrrev_b32 v%d, 4, v%d" % (vG, vLane))
    a("v_and_b32 v%d, 15, v%d" % (vI, vLane))
    a("s_and_b32 s%d, s2, 7" % sT)
    a("s_lshr_b32 s%d, s2, 3" % (sT + 1))
    a("s_and_b32 s%d, s%d, 3" % (sT + 2, sT + 1))
    a("s_lshl_b32 s%d, s%d, 2" % (sH, sT))
    a("s_add_u32 s%d, s%d, s%d" % (sH, sH, sT + 2))
    a("s_lshr_b32 s%d, s%d, 2" % (sRot, sT + 1))
    a("s_lshr_b32 s%d, s%d, 3" % (sB, sT + 1))
    a("s_and_b32 s%d, s%d, 1" % (sSp, sRot))
    if rot:
        a("s_add_u32 s%d, s%d, s%d" % (sT + 3, sWave, sRot)); a("s_and_b32 s%d, s%d, 7" % (sT + 3, sT + 3))
    else:
        a("s_mov_b32 s%d, s%d" % (sT + 3, sWave))
    a("s_lshl_b32 s%d, s%d, 6" % (sT + 4, sT + 3))
    a("v_lshl_add_u32 v%d, v%d, 2, s%d" % (vA[0], vG, sT + 4))
    a("v_lshlrev_b32 v%d, 13, v%d" % (vA[1], vA[0]))
    a("v_lshl_add_u32 v%d, v%d, 4, v%d" % (vA[1], vI, vA[1]))
    a("v_lshlrev_b32 v%d, 1, v%d" % (vTmpA, vA[0]))
    a("v_lshlrev_b32 v%d, 4, v%d" % (vPriv, vLane))
    a("s_lshl_b32 s%d, s%d, 8" % (sT + 5, sH))
    a("s_lshl_b32 s%d, s%d, 10" % (sT + 6, sB))
    a("s_mov_b32 s%d, 8192" % (sT + 7))
    a("s_waitcnt lgkmcnt(0)")
    srd(rWq, sWq, sT + 5, 4194304, sT + 5)
    a("s_add_u32 s%d, s%d, s%d" % (sX, sX, sT + 6)); a("s_addc_u32 s%d, s%d, 0" % (sX + 1, sX + 1))
    for u in range(4):
        vm.issue("x", "global_load_dwordx2 v[%d:%d], v%d, %s offset:%d" % (vT + 2 * u, vT + 2 * u + 1, vTmpA, sp(sX), 32 * u))
    vm.issue("gate", "global_load_dwordx4 %s, v%d, %s" % (vr(vS), vPriv, sp(sX)))
    vm.issue("gate", "global_load_dwordx4 %s, v%d, %s" % (vr(vP), vPriv, sp(sGw)))
    def wq_load(n):
        u, t = divmod(n, 4)
        if n == 0: a("s_mov_b32 s%d, 0" % (sT + 8))
        vm.issue("wq%d" % u, "buffer_load_dwordx4 %s, v%d, %s, s%d offen%s" % (vr(vWA + 4 * n), vA[1], sq(rWq), sT + 8, P(wqpol)))
        if n < 15: a("s_add_u32 s%d, s%d, %d" % (sT + 8, sT + 8, 8192 if t < 3 else 13 * 8192))
    a("s_lshl_b32 s%d, s%d, 12" % (sT + 2, sWave))
    if kpat == "r16":
        a("v_lshlrev_b32 v%d, 8, v%d" % (vKoff, vI))
        a("v_lshl_add_u32 v%d, v%d, 4, v%d" % (vKoff, vG, vKoff))
    a("v_lshlrev_b32 v%d, 10, v%d" % (vVoff, vG))
    a("v_lshl_add_u32 v%d, v%d, 4, v%d" % (vVoff, vI, vVoff))
    a("s_lshl_b32 s%d, s%d, 5" % (sRow, sB))
    a("s_add_u32 s%d, s%d, s%d" % (sRow, sRow, sH))
    a("s_lshl_b32 s%d, s%d, 1" % (sRow, sRow))
    a("s_add_u32 s%d, s%d, s%d" % (sRow, sRow, sSp))
    a("s_lshl_b32 s%d, s%d, 20" % (sT + 3, sRow))
    srd(rK, sK, sT + 3, 0x100000)
    srd(rV, sV, sT + 3, 0x100000)
    pol = P(kvpol)
    def kload(d, tag):
        for t in range(4):
            vm.issue(tag, "buffer_load_dwordx4 %s, v%d, %s, s%d offen offset:%d%s" % (vr(Kb(d) + 4 * t), vKoff, sq(rK), sOff, 64 * t, pol))
    def vload(d, tag):
        for t in range(4):
            vm.issue(tag, "buffer_load_dwordx4 %s, v%d, %s, s%d offen offset:%d%s" % (vr(Vb(d) + 4 * t), vVoff, sq(rV), sOff, 256 * t, pol))
    def pre_tile(d):
        a("s_lshl_b32 s%d, s%d, 12" % (sOff, sWave))
        if d: a("s_add_u32 s%d, s%d, %d" % (sOff, sOff, 4096 * W * d))
        save = list(vm.q)
        kload(d, "K%d" % d); vload(d, "V%d" % d)
        vm.q = save
    if stag > 1:
        a("s_lshr_b32 s%d, s%d, %d" % (sPre, sRot, {2: 2, 4: 1}[stag]))
        if stag == 2: a("s_lshl_b32 s%d, s%d, 1" % (sPre, sPre))
    else:
        a("s_mov_b32 s%d, 0" % sPre)
    npre = 0 if stag == 1 else min(D, 3)
    for d in range(npre):
        a("s_cmp_le_u32 s%d, %d" % (sPre, d))
        a("s_cbranch_scc1 L_pre%d" % d)
        pre_tile(d)
        a("L_pre%d:" % d)
    for n in range(16): wq_load(n)
    a("s_barrier")
    xs(0)
    a("s_lshl_b32 s%d, s%d, 17" % (sT + 6, sH))
    srd(rWo, sWo, sT + 6, 131072)
    a("s_and_b32 s%d, s2, 7" % sT)
    a("s_bfe_u32 s%d, s2, 0x30003" % (sT + 1))
    a("s_mul_i32 s%d, s%d, 7" % (sSig, sT)); a("s_add_u32 s%d, s%d, s%d" % (sSig, sSig, sT + 1))
    a("s_cmp_lt_u32 s%d, 7" % (sT + 1))
    a("s_cselect_b32 s%d, 1, 0" % sFfn)
    a("s_cselect_b32 s%d, s%d, 0" % (sSig, sSig))
    if not ffn: a("s_mov_b32 s%d, 0" % sFfn)
    nl_ = (NT - D) // D
    m = 1
    while 2 * m <= nl_ - 2: m *= 2
    if wo_it == "head":
        a("s_mul_i32 s%d, s%d, 3" % (sWoT, sH)); a("s_and_b32 s%d, s%d, %d" % (sWoT, sWoT, m - 1)); a("s_add_u32 s%d, s%d, 1" % (sWoT, sWoT))
    else:
        a("s_mov_b32 s%d, %d" % (sWoT, int(wo_it)))
    a("s_mov_b32 s%d, %s" % (sC, fbits(CSCALE)))
    for k in range(3): a("s_mov_b32 s%d, %d" % (sU[k], 16384 * (k + 1)))
    a("s_getpc_b64 %s" % sp(sRare))
    a("L_pc:")
    a("s_add_u32 s%d, s%d, L_rare-L_pc" % (sRare, sRare))
    a("s_addc_u32 s%d, s%d, 0" % (sRare + 1, sRare + 1))
    a("v_and_b32 v%d, 7, v%d" % (vTmpA, vI))
    a("v_lshrrev_b32 v%d, 1, v%d" % (vA[1] + 1, vTmpA))
    a("v_and_b32 v%d, 1, v%d" % (vTmpA, vTmpA))
    a("v_lshlrev_b32 v%d, 4, v%d" % (vTmpA, vTmpA))
    a("v_mov_b32 v%d, 0xffff" % (vA[1] + 2))
    a("v_lshlrev_b32 v%d, v%d, v%d" % (vA[1] + 2, vTmpA, vA[1] + 2))
    for r in range(4):
        a("v_cmp_eq_u32 vcc, %d, v%d" % (r, vA[1] + 1))
        a("v_cndmask_b32 v%d, 0, v%d, vcc" % (vMask + r, vA[1] + 2))
    sCb = 85
    a("s_add_u32 s%d, s%d, s%d" % (sCb, sWave, sRot)); a("s_and_b32 s%d, s%d, 3" % (sCb, sCb))
    a("s_and_b32 s%d, s%d, 4" % (sT, sWave)); a("s_or_b32 s%d, s%d, s%d" % (sCb, sCb, sT))
    if not rot: a("s_mov_b32 s%d, s%d" % (sCb, sWave))
    a("v_lshrrev_b32 v%d, 3, v%d" % (vW2off, vI))
    a("v_lshlrev_b32 v%d, 16, v%d" % (vW2off, vW2off))
    a("v_lshl_add_u32 v%d, v%d, 12, v%d" % (vW2off, vG, vW2off))
    a("v_and_b32 v%d, 7, v%d" % (vTmpA, vI))
    a("v_lshl_add_u32 v%d, v%d, 4, v%d" % (vW2off, vTmpA, vW2off))
    a("s_lshl_b32 s%d, s%d, 7" % (sT + 11, sCb))
    a("v_add_u32 v%d, s%d, v%d" % (vW2off, sT + 11, vW2off))
    a("v_mov_b32 v%d, %s" % (vM, fbits(-3.0e38)))
    a("v_mul_f32 v%d, s%d, v%d" % (vMC, sC, vM))
    a("v_mov_b32 v%d, 0" % vL)
    for r in range(4): a("v_mov_b32 v%d, 0" % (vO + r))
    vm.wait("gate")
    a("v_mov_b32 v%d, 0" % vTmpA)
    for r in range(4): a("v_dot2c_f32_bf16 v%d, v%d, v%d" % (vTmpA, vS + r, vP + r))
    for m in ("quad_perm:[1,0,3,2]", "quad_perm:[2,3,0,1]", "row_half_mirror", "row_mirror"):
        a("v_add_f32_dpp v%d, v%d, v%d %s row_mask:0xf bank_mask:0xf" % (vTmpA, vTmpA, vTmpA, m))
    for k in range(4): a("v_readlane_b32 s%d, v%d, %d" % (sT + k, vTmpA, 16 * k))
    a("v_mov_b32 v%d, s%d" % (vTmpA, sT))
    for k in range(1, 4): a("v_add_f32 v%d, s%d, v%d" % (vTmpA, sT + k, vTmpA))
    a("v_mul_f32 v%d, %s, v%d" % (vTmpA, fbits(-LOG2E), vTmpA))
    a("v_exp_f32 v%d, v%d" % (vTmpA, vTmpA))
    a("v_add_f32 v%d, 1.0, v%d" % (vTmpA, vTmpA))
    a("v_rcp_f32 v%d, v%d" % (vTmpA, vTmpA))
    a("v_readfirstlane_b32 s%d, v%d" % (sGate, vTmpA))
    a("s_mov_b32 s%d, 0x01000100" % sT); a("s_mov_b32 s%d, 0x03020302" % (sT + 1))
    for u in range(4):
        for t in range(4):
            a("v_perm_b32 v%d, v%d, v%d, s%d" % (vQ + 4 * u + t, vT + 2 * u + t // 2, vT + 2 * u + t // 2, sT + (t & 1)))
    def gemv64(Wb, Pb, acc, waits=None):
        def ands(n):
            for r in range(4): a("v_and_b32 v%d, v%d, v%d" % (vA[n & 1] + r, Pb + n, vMask + r))
        ands(0)
        for n in range(16):
            if waits and n % 4 == 0: waits(n // 4)
            if n + 1 < 16: ands(n + 1)
            a("v_mfma_f32_16x16x32_bf16 %s, %s, %s, %s" % (vr(acc), vr(vA[n & 1]), vr(Wb + 4 * n), "0" if n == 0 else vr(acc)))
    gemv64(vWA, vQ, vS, waits=lambda u: vm.wait("wq%d" % u))
    a("v_lshlrev_b32 v%d, 5, v%d" % (vTmpA, vI))
    a("v_lshl_add_u32 v%d, v%d, 4, v%d" % (vTmpA, vG, vTmpA))
    a("s_lshl_b32 s%d, s%d, 9" % (sT + 11, sWave))
    a("v_add_u32 v%d, s%d, v%d" % (vTmpA, sT + 11, vTmpA))
    a("s_mov_b32 exec_hi, 0")
    a("ds_write_b128 v%d, %s offset:%d" % (vTmpA, vr(vS), L_QP))
    a("s_mov_b32 exec_hi, -1")
    a("s_add_u32 s%d, s%d, %d" % (sPriv, sT + 11, L_PRIV))
    nlab = [0]
    def kv_rest():
        for d in range(D):
            if d < npre:
                lab = "L_rest%d" % nlab[0]; nlab[0] += 1
                a("s_cmp_gt_u32 s%d, %d" % (sPre, d))
                a("s_cbranch_scc1 %s" % lab)
                pre_tile(d)
                a("%s:" % lab)
            else:
                pre_tile(d)
    a("s_cmp_ge_u32 s%d, 4" % sWave)
    a("s_cbranch_scc1 L_pf1")
    kv_rest()
    a("L_pf1:")
    a("v_mov_b32 v%d, %d" % (vCnt, L_CNT))
    a("v_mov_b32 v%d, 0" % vGrab)
    a("s_mov_b64 exec, 1")
    a("ds_write_b32 v%d, v%d" % (vCnt, vGrab))
    a("s_mov_b64 exec, -1")
    a("s_waitcnt lgkmcnt(0)")
    a("s_barrier")
    a("s_cmp_lt_u32 s%d, 4" % sWave)
    a("s_cbranch_scc1 L_pf2")
    kv_rest()
    a("L_pf2:")
    vm.q = []
    for d in range(D): vm.note("K%d" % d, 4); vm.note("V%d" % d, 4)
    a("v_lshlrev_b32 v%d, 3, v%d" % (vTmpA, vLane))
    tq = vQ
    for w in range(8):
        a("ds_read_b64 v[%d:%d], v%d offset:%d" % (tq + 2 * w, tq + 2 * w + 1, vTmpA, L_QP + 512 * w))
    a("v_lshlrev_b32 v%d, 2, v%d" % (vPriv, vLane))
    a("v_add_u32 v%d, s%d, v%d" % (vPriv, sPriv, vPriv))
    a("s_waitcnt lgkmcnt(0)")
    for step in (4, 2, 1):
        for w in range(step):
            for k in range(2):
                a("v_add_f32 v%d, v%d, v%d" % (tq + 2 * w + k, tq + 2 * w + k, tq + 2 * (w + step) + k))
    a("v_cvt_pk_bf16_f32 v%d, v%d, v%d" % (vTmpA, tq, tq + 1))
    a("ds_write_b32 v%d, v%d" % (vPriv, vTmpA))
    a("v_lshl_add_u32 v%d, v%d, 4, s%d" % (vTmpA, vG, sPriv))
    a("s_waitcnt lgkmcnt(0)")
    for t in range(4):
        a("ds_read_b128 %s, v%d offset:%d" % (vr(vQ + 4 * t), vTmpA, 64 * t))
    a("s_waitcnt lgkmcnt(0)")
    a("s_lshl_b32 s%d, s%d, 12" % (sOff, sWave))
    a("s_add_u32 s%d, s%d, %d" % (sOff, sOff, 4096 * W * D))
    xs(1)

    ntr = [0]; tramps = []
    def tile(d, prefetch):
        vm.wait("K%d" % d)
        for t in range(4):
            a("v_mfma_f32_16x16x32_bf16 %s, %s, %s, %s" % (vr(vS), vr(Kb(d) + 4 * t), vr(vQ + 4 * t), "0" if t == 0 else vr(vS)))
        if prefetch: kload(d, "K%d" % d)
        a("v_max3_f32 v%d, v%d, v%d, v%d" % (vT, vS, vS + 1, vS + 2))
        a("v_max_f32 v%d, v%d, v%d" % (vT, vT, vS + 3))
        a("v_cmp_gt_f32 vcc, v%d, v%d" % (vT, vM))
        k = ntr[0]; ntr[0] += 1
        a("s_cbranch_vccnz L_tr%d" % k)
        a("L_back%d:" % k)
        tramps.append(k)
        for t in range(4): a("v_fma_f32 v%d, v%d, s%d, -v%d" % (vS + t, vS + t, sC, vMC))
        for t in range(4): a("v_exp_f32 v%d, v%d" % (vS + t, vS + t))
        a("v_add_f32 v%d, v%d, v%d" % (vT, vS, vS + 1))
        a("v_add_f32 v%d, v%d, v%d" % (vT + 1, vS + 2, vS + 3))
        for t in range(4): a("v_cvt_pk_bf16_f32 v%d, v%d, v%d" % (vP + t, vS + t, vS + t))
        a("v_add_f32 v%d, v%d, v%d" % (vT, vT, vT + 1))
        a("v_add_f32 v%d, v%d, v%d" % (vL, vL, vT))
        def ands(t):
            for r in range(4): a("v_and_b32 v%d, v%d, v%d" % (vA[t & 1] + r, vP + t, vMask + r))
        ands(0); ands(1)
        vm.wait("V%d" % d)
        for t in range(4):
            a("v_mfma_f32_16x16x32_bf16 %s, %s, %s, %s" % (vr(vO), vr(vA[t & 1]), vr(Vb(d) + 4 * t), vr(vO)))
            if t + 2 < 4: ands(t + 2)
        if prefetch:
            vload(d, "V%d" % d)
            a("s_add_u32 s%d, s%d, %d" % (sOff, sOff, 4096 * W))

    nl = (NT - D) // D
    rem = (NT - D) - nl * D
    a("s_mov_b32 s%d, 0" % sNext)
    a("L_loop:")
    for it in range(D): tile(it, True)
    a("s_cmp_lg_u32 s%d, s%d" % (sNext, sWoT))
    a("s_cbranch_scc1 L_nowo")
    for n in range(16):
        u, t = divmod(n, 4)
        so = "0" if u == 0 else "s%d" % sU[u - 1]
        a("buffer_load_dwordx4 %s, v%d, %s, %s offen offset:%d%s" % (vr(vWA + 4 * n), vW2off, sq(rWo), so, 1024 * t, P(wopol)))
    a("L_nowo:")
    a("s_add_u32 s%d, s%d, 1" % (sNext, sNext))
    a("s_cmp_lg_u32 s%d, %d" % (sNext, nl))
    a("s_cbranch_scc1 L_loop")
    for it in range(rem): tile(it % D, True)
    for it in range(D): tile((rem + it) % D, False)
    xs(3)
    if stamps:
        a("s_waitcnt lgkmcnt(0)")
        a("s_lshl_b32 s%d, s2, 3" % sT); a("s_add_u32 s%d, s%d, s%d" % (sT, sT, sWave)); a("s_lshl_b32 s%d, s%d, 3" % (sT, sT))
        a("s_add_u32 s%d, s%d, 0x%x" % (sT, sT, WS_STAMP + 0x20000))
        a("v_mov_b32 v%d, s%d" % (vT + 2, sT))
        a("v_mov_b32 v%d, s%d" % (vT, sXS + 6)); a("v_mov_b32 v%d, s%d" % (vT + 1, sXS + 7))
        a("s_mov_b64 exec, 1")
        a("global_store_dwordx2 v%d, v[%d:%d], %s" % (vT + 2, vT, vT + 1, sp(sWs)))
        a("s_mov_b64 exec, -1")
        a("s_nop 1")

    for k in range(4): a("v_readlane_b32 s%d, v%d, %d" % (sT + k, vL, 16 * k))
    a("v_mov_b32 v%d, s%d" % (vT + 1, sT))
    for k in range(1, 4): a("v_add_f32 v%d, s%d, v%d" % (vT + 1, sT + k, vT + 1))
    a("v_mov_b32 v%d, v%d" % (vT, vM))
    a("s_lshl_b32 s%d, s%d, 3" % (sT + 4, sWave))
    a("v_mov_b32 v%d, s%d" % (vT + 2, sT + 4))
    a("v_lshlrev_b32 v%d, 5, v%d" % (vT + 3, vI))
    a("v_lshl_add_u32 v%d, v%d, 4, v%d" % (vT + 3, vG, vT + 3))
    a("s_lshl_b32 s%d, s%d, 9" % (sT + 5, sWave))
    a("v_add_u32 v%d, s%d, v%d" % (vT + 3, sT + 5, vT + 3))
    a("s_mov_b32 exec_hi, 0")
    a("ds_write_b128 v%d, %s offset:%d" % (vT + 3, vr(vO), L_EP))
    a("s_mov_b32 exec_lo, 1")
    a("ds_write_b64 v%d, v[%d:%d] offset:%d" % (vT + 2, vT, vT + 1, L_ML))
    a("s_mov_b64 exec, -1")

    a("s_cmp_ge_u32 s%d, 4" % sWave)
    a("s_cbranch_scc1 L_noffn")
    a("s_cmp_eq_u32 s%d, 0" % sFfn)
    a("s_cbranch_scc1 L_noffn")
    fR = [vKV + 4 * n for n in range(16)]
    fAcc = vS; fX = vA[0]; fB = vA[1]; fOff = vT; fXL = vT + 1; fXH = vT + 2; fT = vT + 3; fOf2 = vT + 4; fY = vQ; ftmp = vQ + 8
    a("s_lshl_b32 s%d, s%d, 6" % (sT, sSig))
    srd(rW1, sW1, sT, 1835008, sT)
    a("s_lshl_b32 s%d, s%d, 15" % (sT + 1, sSig))
    srd(rW2, sW2, sT + 1, 32768)
    a("s_add_u32 s%d, s%d, s%d" % (sB1, sB1, sT)); a("s_addc_u32 s%d, s%d, 0" % (sB1 + 1, sB1 + 1))
    a("v_lshrrev_b32 v%d, 2, v%d" % (fT, vLane))
    a("v_and_b32 v%d, 3, v%d" % (fXL, vLane))
    a("s_lshl_b32 s%d, s%d, 4" % (sT + 2, sWave))
    a("v_add_u32 v%d, s%d, v%d" % (fT, sT + 2, fT))
    a("s_mov_b32 s%d, %d" % (sT + 2, 8 * 3584))
    a("v_mul_lo_u32 v%d, v%d, s%d" % (fOff, fT, sT + 2))
    a("v_lshl_add_u32 v%d, v%d, 4, v%d" % (fOff, fXL, fOff))
    a("v_lshlrev_b32 v%d, 4, v%d" % (fT, fT))
    a("global_load_dwordx4 %s, v%d, %s" % (vr(fX), fT, sp(sX)))
    a("s_mov_b32 s%d, 0" % (sT + 3))
    for n in range(8):
        a("buffer_load_dwordx4 %s, v%d, %s, s%d offen%s" % (vr(fR[n]), fOff, sq(rW1), sT + 3, P(fpol)))
        if n < 7: a("s_add_u32 s%d, s%d, 3584" % (sT + 3, sT + 3))
    a("v_lshlrev_b32 v%d, 10, v%d" % (fOf2, vG))
    a("v_lshl_add_u32 v%d, v%d, 4, v%d" % (fOf2, vI, fOf2))
    a("s_lshl_b32 s%d, s%d, 8" % (sT + 2, sWave))
    a("v_add_u32 v%d, s%d, v%d" % (fOf2, sT + 2, fOf2))
    a("s_mov_b32 s%d, 0" % (sT + 3))
    for n in range(8):
        a("buffer_load_dwordx4 %s, v%d, %s, s%d offen%s" % (vr(fR[8 + n]), fOf2, sq(rW2), sT + 3, P(fpol)))
        if n < 7: a("s_add_u32 s%d, s%d, 4096" % (sT + 3, sT + 3))
    a("v_and_b32 v%d, 31, v%d" % (fT, vLane))
    a("v_lshlrev_b32 v%d, 1, v%d" % (fT, fT))
    a("global_load_ushort v%d, v%d, %s" % (vT + 5, fT, sp(sB1)))
    a("v_lshlrev_b32 v%d, 4, v%d" % (fT, vI))
    a("v_add_u32 v%d, s%d, v%d" % (fT, sT + 2, fT))
    a("global_load_dwordx4 %s, v%d, %s" % (vr(fB), fT, sp(sB2)))
    for e in range(8): a("v_mov_b32 v%d, 0" % (fAcc + e))
    for n in range(8):
        a("s_waitcnt vmcnt(%d)" % (17 - n))
        if n % 2 == 0:
            a("v_and_b32 v%d, 0xffff, v%d" % (fXL, fX + n // 2)); a("v_lshlrev_b32 v%d, 16, v%d" % (fXH, fX + n // 2))
        else:
            a("v_lshrrev_b32 v%d, 16, v%d" % (fXL, fX + n // 2)); a("v_and_b32 v%d, 0xffff0000, v%d" % (fXH, fX + n // 2))
        for k in range(4):
            a("v_dot2c_f32_bf16 v%d, v%d, v%d" % (fAcc + 2 * k, fXL, fR[n] + k))
            a("v_dot2c_f32_bf16 v%d, v%d, v%d" % (fAcc + 2 * k + 1, fXH, fR[n] + k))
    a("s_nop 2")
    for m_ in ("row_ror:4", "row_ror:8"):
        for e in range(8): a("v_add_f32_dpp v%d, v%d, v%d %s row_mask:0xf bank_mask:0xf" % (fAcc + e, fAcc + e, fAcc + e, m_))
    for sw in ("v_permlane16_swap_b32", "v_permlane32_swap_b32"):
        for e in range(8): a("v_mov_b32 v%d, v%d" % (ftmp + e, fAcc + e))
        for e in range(8): a("%s v%d, v%d" % (sw, fAcc + e, ftmp + e))
        for e in range(8): a("v_add_f32 v%d, v%d, v%d" % (fAcc + e, fAcc + e, ftmp + e))
    a("v_and_b32 v%d, 3, v%d" % (fT, vLane))
    a("v_lshlrev_b32 v%d, 5, v%d" % (fT, fT))
    a("s_lshl_b32 s%d, s%d, 7" % (sT + 2, sWave))
    a("v_add_u32 v%d, s%d, v%d" % (fT, sT + 2, fT))
    a("v_mov_b32 v%d, 1" % fXL)
    a("s_mov_b64 exec, 0xf")
    a("ds_write_b128 v%d, %s offset:%d" % (fT, vr(fAcc), L_HP))
    a("ds_write_b128 v%d, %s offset:%d" % (fT, vr(fAcc + 4), L_HP + 16))
    a("s_mov_b64 exec, 1")
    a("s_waitcnt lgkmcnt(0)")
    a("ds_add_u32 v%d, v%d" % (vCnt, fXL))
    a("s_mov_b64 exec, -1")
    a("L_fspin:")
    a("ds_read_b32 v%d, v%d" % (fXH, vCnt))
    a("s_waitcnt lgkmcnt(0)")
    a("v_readfirstlane_b32 s%d, v%d" % (sT + 4, fXH))
    a("s_cmp_lt_u32 s%d, 4" % (sT + 4))
    a("s_cbranch_scc1 L_fspin")
    a("v_and_b32 v%d, 31, v%d" % (fT, vLane))
    a("v_lshlrev_b32 v%d, 2, v%d" % (fXL, fT))
    for w in range(4): a("ds_read_b32 v%d, v%d offset:%d" % (fAcc + w, fXL, L_HP + 128 * w))
    a("s_waitcnt vmcnt(1) lgkmcnt(0)")
    a("v_add_f32 v%d, v%d, v%d" % (fAcc, fAcc, fAcc + 1)); a("v_add_f32 v%d, v%d, v%d" % (fAcc + 2, fAcc + 2, fAcc + 3))
    a("v_add_f32 v%d, v%d, v%d" % (fAcc, fAcc, fAcc + 2))
    r = fAcc
    a("v_cvt_pk_bf16_f32 v%d, v%d, v%d" % (r, r, r))
    a("v_and_b32 v%d, 0xffff0000, v%d" % (r, r))
    a("v_lshlrev_b32 v%d, 16, v%d" % (vT + 5, vT + 5))
    a("v_add_f32 v%d, v%d, v%d" % (r, r, vT + 5))
    a("v_cvt_pk_bf16_f32 v%d, v%d, v%d" % (r, r, r))
    a("v_and_b32 v%d, 0xffff0000, v%d" % (r, r))
    a("v_max_f32 v%d, 0, v%d" % (r, r))
    a("v_mul_f32 v%d, v%d, v%d" % (r, r, r))
    a("v_cvt_pk_bf16_f32 v%d, v%d, v%d" % (r, r, r))
    a("v_and_b32 v%d, 3, v%d" % (fXL, fT))
    a("v_lshlrev_b32 v%d, 5, v%d" % (fXL, fXL))
    a("v_lshrrev_b32 v%d, 2, v%d" % (fT, fT))
    a("v_lshl_add_u32 v%d, v%d, 2, v%d" % (fXL, fT, fXL))
    a("v_add_u32 v%d, s%d, v%d" % (fXL, sPriv, fXL))
    a("s_mov_b32 exec_hi, 0")
    a("ds_write_b32 v%d, v%d" % (fXL, r))
    a("s_mov_b32 exec_hi, -1")
    a("v_lshl_add_u32 v%d, v%d, 5, s%d" % (fXL, vG, sPriv))
    a("s_waitcnt lgkmcnt(0)")
    a("ds_read_b128 %s, v%d" % (vr(fAcc), fXL))
    a("ds_read_b128 %s, v%d offset:16" % (vr(fAcc + 4), fXL))
    for e in range(8): a("v_mov_b32 v%d, 0" % (fY + e))
    a("s_waitcnt vmcnt(0) lgkmcnt(0)")
    for n in range(8):
        a("v_and_b32 v%d, 0xffff, v%d" % (fXL, fAcc + n)); a("v_and_b32 v%d, 0xffff0000, v%d" % (fXH, fAcc + n))
        for k in range(4):
            a("v_dot2c_f32_bf16 v%d, v%d, v%d" % (fY + 2 * k, fXL, fR[8 + n] + k))
            a("v_dot2c_f32_bf16 v%d, v%d, v%d" % (fY + 2 * k + 1, fXH, fR[8 + n] + k))
    a("s_nop 2")
    for sw in ("v_permlane16_swap_b32", "v_permlane32_swap_b32"):
        for e in range(8): a("v_mov_b32 v%d, v%d" % (ftmp + e, fY + e))
        for e in range(8): a("%s v%d, v%d" % (sw, fY + e, ftmp + e))
        for e in range(8): a("v_add_f32 v%d, v%d, v%d" % (fY + e, fY + e, ftmp + e))
    a("s_cmp_eq_u32 s%d, 0" % sSig)
    a("s_cselect_b32 s%d, 1.0, 0" % (sT + 1))
    a("v_mov_b32 v%d, s%d" % (fT, sGate))
    a("v_sub_f32 v%d, 1.0, v%d" % (fT, fT))
    for e in range(8):
        if e % 2 == 0: a("v_lshlrev_b32 v%d, 16, v%d" % (fXL, fB + e // 2))
        else: a("v_and_b32 v%d, 0xffff0000, v%d" % (fXL, fB + e // 2))
        a("v_fma_f32 v%d, v%d, s%d, v%d" % (fY + e, fXL, sT + 1, fY + e))
        a("v_mul_f32 v%d, v%d, v%d" % (fY + e, fY + e, fT))
    a("s_mul_i32 s%d, s%d, %d" % (sT + 1, sB, NFF)); a("s_add_u32 s%d, s%d, s%d" % (sT + 1, sT + 1, sSig))
    a("s_lshl_b32 s%d, s%d, 11" % (sT + 1, sT + 1)); a("s_add_u32 s%d, s%d, 0x%x" % (sT + 1, sT + 1, WS_YF))
    a("s_add_u32 s%d, s%d, s%d" % (sT + 2, sWs, sT + 1)); a("s_addc_u32 s%d, s%d, 0" % (sT + 3, sWs + 1))
    a("v_lshlrev_b32 v%d, 5, v%d" % (fOff, vI))
    a("s_lshl_b32 s%d, s%d, 9" % (sT + 4, sWave))
    a("v_add_u32 v%d, s%d, v%d" % (fOff, sT + 4, fOff))
    a("s_mov_b64 exec, 0xffff")
    a("global_store_dwordx4 v%d, %s, %s%s" % (fOff, vr(fY), sp(sT + 2), P(stpol)))
    a("global_store_dwordx4 v%d, %s, %s offset:16%s" % (fOff, vr(fY + 4), sp(sT + 2), P(stpol)))
    a("s_mov_b64 exec, -1")
    a("s_nop 1")
    a("L_noffn:")
    xs(0)
    a("s_waitcnt lgkmcnt(0)")
    a("s_barrier")
    tm = vQ; to = vKV
    a("v_mov_b32 v%d, 0" % vT)
    for k in range(4): a("ds_read_b128 %s, v%d offset:%d" % (vr(tm + 4 * k), vT, L_ML + 16 * k))
    a("v_lshlrev_b32 v%d, 2, v%d" % (vT + 1, vLane))
    for w in range(8):
        a("ds_read2st64_b32 v[%d:%d], v%d offset0:%d offset1:%d" % (to + 2 * w, to + 2 * w + 1, vT + 1, L_EP // 256 + 2 * w, L_EP // 256 + 2 * w + 1))
    a("s_waitcnt lgkmcnt(8)")
    a("v_max3_f32 v%d, v%d, v%d, v%d" % (vM, tm, tm + 2, tm + 4))
    a("v_max3_f32 v%d, v%d, v%d, v%d" % (vM, vM, tm + 6, tm + 8))
    a("v_max3_f32 v%d, v%d, v%d, v%d" % (vM, vM, tm + 10, tm + 12))
    a("v_max_f32 v%d, v%d, v%d" % (vM, vM, tm + 14))
    a("v_mul_f32 v%d, s%d, v%d" % (vMC, sC, vM))
    for w in range(8): a("v_fma_f32 v%d, v%d, s%d, -v%d" % (tm + 2 * w, tm + 2 * w, sC, vMC))
    for w in range(8): a("v_exp_f32 v%d, v%d" % (tm + 2 * w, tm + 2 * w))
    a("v_mul_f32 v%d, v%d, v%d" % (vL, tm, tm + 1))
    for w in range(1, 8): a("v_fmac_f32 v%d, v%d, v%d" % (vL, tm + 2 * w, tm + 2 * w + 1))
    a("s_waitcnt lgkmcnt(0)")
    for k in range(2): a("v_mul_f32 v%d, v%d, v%d" % (vT + 2 + k, tm, to + k))
    for w in range(1, 8):
        for k in range(2): a("v_fmac_f32 v%d, v%d, v%d" % (vT + 2 + k, tm + 2 * w, to + 2 * w + k))
    for k in range(2): a("v_cvt_pk_bf16_f32 v%d, v%d, v%d" % (vT + 2 + k, vT + 2 + k, vT + 2 + k))
    a("ds_write2st64_b32 v%d, v%d, v%d offset0:0 offset1:1" % (vPriv, vT + 2, vT + 3))
    a("s_lshl_b32 s%d, s%d, 9" % (sT, sWave)); a("s_add_u32 s%d, s%d, %d" % (sT, sT, L_PRIV))
    a("v_lshrrev_b32 v%d, 3, v%d" % (vT, vI))
    a("v_lshlrev_b32 v%d, 8, v%d" % (vT, vT))
    a("v_lshl_add_u32 v%d, v%d, 4, v%d" % (vT, vG, vT))
    a("v_add_u32 v%d, s%d, v%d" % (vT, sT, vT))
    a("s_waitcnt lgkmcnt(0)")
    for u in range(4): a("ds_read_b128 %s, v%d offset:%d" % (vr(vQ + 4 * u), vT, 64 * u))
    a("s_waitcnt lgkmcnt(0)")
    gemv64(vWA, vQ, vS)
    a("v_add_u32 v%d, 40, v%d" % (vT + 4, vLane))
    a("v_and_b32 v%d, 63, v%d" % (vT + 4, vT + 4))
    a("v_lshlrev_b32 v%d, 2, v%d" % (vT + 4, vT + 4))
    for r in range(4): a("ds_bpermute_b32 v%d, v%d, v%d" % (vT + r, vT + 4, vS + r))
    a("v_and_b32 v%d, 7, v%d" % (vT + 6, vI))
    a("v_lshlrev_b32 v%d, 5, v%d" % (vT + 6, vT + 6))
    a("v_and_b32 v%d, 1, v%d" % (vT + 5, vG))
    a("v_lshl_add_u32 v%d, v%d, 4, v%d" % (vT + 6, vT + 5, vT + 6))
    a("s_lshl_b32 s%d, s%d, 8" % (sT, sCb))
    a("v_add_u32 v%d, s%d, v%d" % (vT + 6, sT, vT + 6))
    a("s_lshl_b32 s%d, s%d, 11" % (sT + 2, sRow))
    a("s_add_u32 s%d, s%d, s%d" % (sT + 2, sWs, sT + 2)); a("s_addc_u32 s%d, s%d, 0" % (sT + 3, sWs + 1))
    a("s_waitcnt lgkmcnt(0)")
    for r in range(4): a("v_add_f32 v%d, v%d, v%d" % (vS + r, vS + r, vT + r))
    a("s_mov_b64 exec, 0x00ff00ff")
    xs(4)
    a("global_store_dwordx4 v%d, %s, %s%s" % (vT + 6, vr(vS), sp(sT + 2), P(stpol)))
    a("s_mov_b64 exec, -1")
    a("s_cmp_lg_u32 s%d, 0" % sWave)
    a("s_cbranch_scc1 L_fin")
    a("v_mov_b32 v%d, s%d" % (vT + 8, sGate))
    a("v_rcp_f32 v%d, v%d" % (vT + 8, vT + 8))
    a("v_mul_f32 v%d, v%d, v%d" % (vT + 9, vL, vT + 8))
    a("v_mov_b32 v%d, v%d" % (vT + 8, vMC))
    a("s_lshl_b32 s%d, s%d, 3" % (sT + 2, sRow)); a("s_add_u32 s%d, s%d, 0x%x" % (sT + 2, sT + 2, WS_ML))
    a("v_mov_b32 v%d, s%d" % (vT + 10, sT + 2))
    a("s_mov_b64 exec, 1")
    a("global_store_dwordx2 v%d, v[%d:%d], %s%s" % (vT + 10, vT + 8, vT + 9, sp(sWs), P(stpol)))
    if stamps:
        a("s_waitcnt vmcnt(0)")
        a("s_memrealtime %s" % sp(sStamp + 2))
        a("s_waitcnt lgkmcnt(0)")
        for k in range(4): a("v_mov_b32 v%d, s%d" % (vKV + k, sStamp + k))
        a("s_lshl_b32 s%d, s2, 4" % sT); a("s_add_u32 s%d, s%d, 0x%x" % (sT, sT, WS_STAMP))
        a("v_mov_b32 v%d, s%d" % (vT + 2, sT))
        a("global_store_dwordx4 v%d, %s, %s" % (vT + 2, vr(vKV), sp(sWs)))
        for k in range(NXS):
            a("s_lshl_b32 s%d, s2, 3" % sT); a("s_add_u32 s%d, s%d, 0x%x" % (sT, sT, WS_STAMP + 0x10000 + 0x1000 * k))
            a("v_mov_b32 v%d, s%d" % (vT + 2, sT))
            a("v_mov_b32 v%d, s%d" % (vKV + 4, sXS + 2 * k)); a("v_mov_b32 v%d, s%d" % (vKV + 5, sXS + 2 * k + 1))
            a("global_store_dwordx2 v%d, v[%d:%d], %s" % (vT + 2, vKV + 4, vKV + 5, sp(sWs)))
            a("s_nop 1")
    a("L_fin:")
    if stamps:
        a("s_mov_b64 exec, 1")
        a("s_memrealtime %s" % sp(sStamp + 2))
        a("s_waitcnt lgkmcnt(0)")
        for k in range(NXS + 1):
            src = sXS + 2 * k if k < NXS else sStamp + 2
            a("s_lshl_b32 s%d, s2, 3" % sT); a("s_add_u32 s%d, s%d, s%d" % (sT, sT, sWave)); a("s_lshl_b32 s%d, s%d, 3" % (sT, sT))
            a("s_add_u32 s%d, s%d, 0x%x" % (sT, sT, WS_STAMP + 0x40000 + 0x4000 * k))
            a("v_mov_b32 v%d, s%d" % (vT + 2, sT))
            a("v_mov_b32 v%d, s%d" % (vKV + 4, src)); a("v_mov_b32 v%d, s%d" % (vKV + 5, src + 1))
            a("global_store_dwordx2 v%d, v[%d:%d], %s" % (vT + 2, vKV + 4, vKV + 5, sp(sWs)))
            a("s_nop 1")
    a("L_done:")
    a("s_endpgm")
    for k in tramps:
        a("L_tr%d:" % k)
        a("s_swappc_b64 %s, %s" % (sp(sRet), sp(sRare)))
        a("s_branch L_back%d" % k)
    a("L_rare:")
    for k in range(4): a("v_readlane_b32 s%d, v%d, %d" % (sT + k, vT, 16 * k))
    a("v_mov_b32 v%d, s%d" % (vT + 1, sT))
    for k in range(1, 4): a("v_max_f32 v%d, s%d, v%d" % (vT + 1, sT + k, vT + 1))
    a("v_max_f32 v%d, v%d, v%d" % (vT + 1, vT + 1, vM))
    a("v_sub_f32 v%d, v%d, v%d" % (vT + 2, vM, vT + 1))
    a("v_mul_f32 v%d, s%d, v%d" % (vT + 2, sC, vT + 2))
    a("v_exp_f32 v%d, v%d" % (vT + 2, vT + 2))
    a("v_mov_b32 v%d, v%d" % (vM, vT + 1))
    a("v_mul_f32 v%d, s%d, v%d" % (vMC, sC, vT + 1))
    for r in range(4): a("v_mul_f32 v%d, v%d, v%d" % (vO + r, vO + r, vT + 2))
    a("v_mul_f32 v%d, v%d, v%d" % (vL, vL, vT + 2))
    a("s_nop 1")
    a("s_setpc_b64 %s" % sp(sRet))
    body1 = a.finish()

    c = Asm()
    c("%s:" % K2)
    c("s_cmp_ge_u32 s2, 64")
    c("s_cbranch_scc1 L2_done")
    c("s_load_dwordx2 s[4:5], s[0:1], 88")
    c("s_load_dwordx2 s[6:7], s[0:1], 104")
    if stamps: c("s_memrealtime s[36:37]")
    c("s_lshr_b32 s8, s2, 4")
    c("s_and_b32 s9, s2, 15")
    c("v_lshrrev_b32 v1, 3, v0")
    c("v_and_b32 v2, 7, v0")
    c("v_lshlrev_b32 v3, 14, v1")
    c("v_lshl_add_u32 v3, v2, 4, v3")
    c("v_lshlrev_b32 v4, 11, v1")
    c("v_lshl_add_u32 v4, v2, 4, v4")
    c("v_lshlrev_b32 v5, 6, v1")
    c("s_lshl_b32 s10, s8, 17"); c("s_lshl_b32 s11, s9, 7"); c("s_add_u32 s10, s10, s11")
    c("s_mul_i32 s12, s8, %d" % (NFF * 2048)); c("s_add_u32 s12, s12, s11"); c("s_add_u32 s12, s12, 0x%x" % WS_YF)
    c("s_lshl_b32 s13, s8, 9"); c("s_add_u32 s13, s13, 0x%x" % WS_ML)
    c("s_movk_i32 s24, 4096"); c("s_movk_i32 s25, 8192"); c("s_movk_i32 s26, 12288")
    for k in range(1, 7): c("s_mov_b32 s%d, %d" % (27 + k, 16384 * k))
    c("s_waitcnt lgkmcnt(0)")
    c("s_add_u32 s14, s6, s13"); c("s_addc_u32 s15, s7, 0")
    for k in range(4): c("global_load_dwordx4 %s, v5, s[14:15] offset:%d" % (vr(8 + 4 * k), 16 * k))
    c("s_add_u32 s16, s6, s10"); c("s_addc_u32 s17, s7, 0"); c("s_mov_b32 s18, 0x20000"); c("s_mov_b32 s19, 0x20000")
    for j in range(8):
        so = "0" if j < 2 else "s%d" % (24 + j // 2 - 1)
        c("buffer_load_dwordx4 %s, v3, s[16:19], %s offen offset:%d" % (vr(24 + 4 * j), so, 2048 * (j & 1)))
    c("s_add_u32 s20, s6, s12"); c("s_addc_u32 s21, s7, 0"); c("s_sub_u32 s22, %d, s11" % (NFF * 2048)); c("s_mov_b32 s23, 0x20000")
    for k in range(7):
        c("buffer_load_dwordx4 %s, v4, s[20:23], %s offen" % (vr(56 + 4 * k), "0" if k == 0 else "s%d" % (27 + k)))
    c("s_lshl_b32 s34, s8, 10"); c("s_lshl_b32 s35, s9, 6"); c("s_add_u32 s34, s34, s35")
    c("s_add_u32 s4, s4, s34"); c("s_addc_u32 s5, s5, 0")
    c("v_lshlrev_b32 v6, 3, v2")
    c("s_waitcnt vmcnt(15)")
    for p in range(4):
        r = 8 + 4 * p
        c("v_max_f32 v84, v%d, v%d" % (r, r + 2))
        c("v_sub_f32 v%d, v%d, v84" % (r, r)); c("v_sub_f32 v%d, v%d, v84" % (r + 2, r + 2))
        c("v_exp_f32 v%d, v%d" % (r, r)); c("v_exp_f32 v%d, v%d" % (r + 2, r + 2))
        c("v_mul_f32 v%d, v%d, v%d" % (r + 1, r + 1, r))
        c("v_fmac_f32 v%d, v%d, v%d" % (r + 1, r + 3, r + 2))
        c("v_rcp_f32 v%d, v%d" % (r + 1, r + 1))
        c("v_mul_f32 v%d, v%d, v%d" % (r, r, r + 1)); c("v_mul_f32 v%d, v%d, v%d" % (r + 2, r + 2, r + 1))
    c("s_waitcnt vmcnt(7)")
    for r in range(4): c("v_mul_f32 v%d, v8, v%d" % (84 + r, 24 + r))
    for j in range(1, 8):
        sc = 8 + 4 * (j // 2) + 2 * (j & 1)
        for r in range(4): c("v_fmac_f32 v%d, v%d, v%d" % (84 + r, sc, 24 + 4 * j + r))
    for k in range(7):
        c("s_waitcnt vmcnt(%d)" % (6 - k))
        for r in range(4): c("v_add_f32 v%d, v%d, v%d" % (84 + r, 84 + r, 56 + 4 * k + r))
    for r in range(4): c("v_add_f32_dpp v%d, v%d, v%d row_ror:8 row_mask:0xf bank_mask:0xf" % (84 + r, 84 + r, 84 + r))
    for sw in ("v_permlane16_swap_b32", "v_permlane32_swap_b32"):
        for r in range(4): c("v_mov_b32 v%d, v%d" % (60 + r, 84 + r))
        for r in range(4): c("%s v%d, v%d" % (sw, 84 + r, 60 + r))
        for r in range(4): c("v_add_f32 v%d, v%d, v%d" % (84 + r, 84 + r, 60 + r))
    c("v_cvt_pk_bf16_f32 v84, v84, v85")
    c("v_cvt_pk_bf16_f32 v85, v86, v87")
    c("s_mov_b64 exec, 0xff")
    c("global_store_dwordx2 v6, v[84:85], s[4:5]")
    if stamps:
        c("s_waitcnt vmcnt(0)")
        c("s_memrealtime s[38:39]")
        c("s_waitcnt lgkmcnt(0)")
        c("s_mov_b64 exec, 0xf")
        c("v_and_b32 v1, 3, v0")
        c("s_lshl_b32 s34, s2, 2")
        c("v_add_u32 v1, s34, v1")
        c("v_lshlrev_b32 v1, 3, v1")
        for k in range(2):
            c("v_add_u32 v2, 0x%x, v1" % (WS_STAMP + 0x10000 + 0x1000 * (5 + k)))
            c("v_mov_b32 v8, s%d" % (36 + 2 * k)); c("v_mov_b32 v9, s%d" % (37 + 2 * k))
            c("global_store_dwordx2 v2, v[8:9], s[6:7]")
            c("s_nop 1")
    c("L2_done:")
    c("s_endpgm")
    body2 = c.finish()

    hdr = open("cdna_kernels/%s.s.ref" % NAME).read().split("; Override launch")[0]
    out = hdr
    out += "; @launch kernel=%s grid=(256,1,1) block=(%d,1,1) lds=%d\n" % (K1, 64 * W, L_END)
    out += "; @launch kernel=%s grid=(64,1,1) block=(64,1,1) lds=0\n" % K2
    out += '.amdgcn_target "amdgcn-amd-amdhsa--gfx950"\n.text\n'
    for k, body in ((K1, body1), (K2, body2)):
        out += ".globl %s\n.p2align 8\n.type %s,@function\n" % (k, k) + body
    out += '.section .rodata,"a"\n'
    for k, nv, ns in ((K1, NV, 102), (K2, 88, 48)):
        out += ".p2align 6\n.amdhsa_kernel %s\n" % k
        out += "  .amdhsa_next_free_vgpr %d\n  .amdhsa_next_free_sgpr %d\n  .amdhsa_accum_offset %d\n" % (nv, ns, (nv + 3) // 4 * 4)
        out += "  .amdhsa_group_segment_fixed_size 0\n  .amdhsa_kernarg_size 112\n  .amdhsa_user_sgpr_count 2\n"
        out += "  .amdhsa_user_sgpr_kernarg_segment_ptr 1\n  .amdhsa_system_sgpr_workgroup_id_x 1\n"
        out += "  .amdhsa_float_denorm_mode_32 3\n"
        out += ".end_amdhsa_kernel\n"
    return out

if __name__ == "__main__":
    import argparse
    ap = argparse.ArgumentParser()
    ap.add_argument("-o", default="cdna_kernels/%s.s" % NAME)
    ap.add_argument("--D", type=int, default=2)
    ap.add_argument("--kvpol", default="nt")
    ap.add_argument("--wqpol", default="nt")
    ap.add_argument("--wopol", default="nt")
    ap.add_argument("--fpol", default="nt")
    ap.add_argument("--stpol", default="")
    ap.add_argument("--wo_it", default="head")
    ap.add_argument("--stamps", action="store_true")
    ap.add_argument("--bar", default="")
    ap.add_argument("--norot", action="store_true")
    ap.add_argument("--noffn", action="store_true")
    ap.add_argument("--early", default="split")
    ap.add_argument("--prio", type=int, default=0)
    ap.add_argument("--mixr", type=int, default=1)
    ap.add_argument("--stag", type=int, default=4)
    ap.add_argument("--wot0", type=int, default=32)
    ap.add_argument("--wotm", type=int, default=5)
    x = ap.parse_args()
    open(x.o, "w").write(gen(D=x.D, kvpol=x.kvpol, wqpol=x.wqpol, wopol=x.wopol, fpol=x.fpol, stpol=x.stpol, stamps=x.stamps, wo_it=x.wo_it,
                             barrier1=x.bar, rot=not x.norot, ffn=not x.noffn, early=x.early, prio=x.prio, mixr=x.mixr, stag=x.stag, wot=(x.wot0, x.wotm)))
    print("wrote", x.o)
```

```python
import sys, os, struct
sys.path.insert(0, os.path.dirname(os.path.abspath(__file__)))
from asmlib import Asm, VmQueue

NAME = "gated_mix__mha_block_cached__dense_activation_squared_relu__decode"
K1 = NAME + "_kernel"
K2 = "final_reduce_kernel"

def fbits(x): return "0x%08x" % struct.unpack("<I", struct.pack("<f", x))[0]
LOG2E = 1.4426950408889634
CSCALE = LOG2E * (128 ** -0.5)

NFF = 56
WS_Y, WS_YF, WS_ML, WS_G = 0, 0x80000, 0x100000, 0x101000
WS_STAMP = 0x20000000
L_QP, L_PRIV, L_EP, L_ML, L_CLAIM, L_HH, L_HP, L_END = 0, 4096, 8192, 12288, 12416, 12544, 13568, 13568 + 8192

def vr(b, n=4): return "v[%d:%d]" % (b, b + n - 1)
def sp(b): return "s[%d:%d]" % (b, b + 1)
def sq(b): return "s[%d:%d]" % (b, b + 3)

def gen(D=2, kvpol="nt", wqpol="", wopol="", fpol="", stpol="", stamps=False, ffn=True, abl=(), early=False, wostag=True):
    W = 8
    NT = 4096 // 16 // W
    a = Asm()
    P = lambda p: (" " + p) if p else ""
    MF = "v_mfma_f32_16x16x32_bf16"
    vLane, vG, vI = 1, 2, 3
    vKoff, vVoff, vL, vM, vMC = 4, 5, 6, 7, 8
    vEPa, vPriv, vTmp = 9, 10, 11
    vMask = 12
    vQ = 16; vS = 32; vP = 36; vA = [40, 44]; vO = 48; vT = 52
    vWoff, vYoff, vPrd, vOne = 60, 61, 62, 63
    vChk = vT + 7
    vKV = 64
    vWA = vKV + 32 * D
    NV = max(vWA + 64, 64 + 128 + 32)
    assert NV <= 256
    Kb = lambda d: vKV + 32 * d
    Vb = lambda d: vKV + 32 * d + 16
    vWO = vKV
    vPP = vWO + 128
    sX, sK, sV, sWq, sWo, sBx, sW1, sB1 = 4, 6, 8, 10, 12, 14, 16, 18
    sW2, sB2, sGw, sOut, sDbg, sWs = 20, 22, 24, 26, 28, 30
    sWave, sH, sB, sSp, sRot, sRow = 3, 32, 33, 34, 35, 36
    sOff, sCnt, sC, sGate = 37, 38, 39, 40
    sPriv, sCb, sSig = 41, 42, 43
    sWoT = 96
    rK, rV, rWq, rWo = 44, 48, 52, 56
    rW1, rW2 = 44, 48
    sT = 60
    sRet, sRare = 72, 74
    sY = 76
    sX0 = 78
    sStamp = 80
    sXS = 84
    NXS = 6
    vm = VmQueue(a)
    def xs(k):
        if stamps: a("s_memrealtime %s" % sp(sXS + 2 * k))
    def srd(r, base, off, nrec, nrec_sub=None):
        a("s_add_u32 s%d, s%d, s%d" % (r, base, off)); a("s_addc_u32 s%d, s%d, 0" % (r + 1, base + 1))
        if nrec_sub is None: a("s_mov_b32 s%d, 0x%x" % (r + 2, nrec))
        else: a("s_sub_u32 s%d, 0x%x, s%d" % (r + 2, nrec, nrec_sub))
        a("s_mov_b32 s%d, 0x20000" % (r + 3))
    def gemv(nld, Wreg, Preg, acc, waits=None):
        def ands(n):
            for r in range(4): a("v_and_b32 v%d, v%d, v%d" % (vA[n & 1] + r, Preg(n), vMask + r))
        ands(0)
        for n in range(nld):
            if waits: waits(n)
            if n + 1 < nld: ands(n + 1)
            a("%s %s, %s, %s, %s" % (MF, vr(acc), vr(vA[n & 1]), vr(Wreg(n)), "0" if n == 0 else vr(acc)))

    a("%s:" % K1)
    a("s_cmp_ge_u32 s2, 256")
    a("s_cbranch_scc1 L_done")
    a("s_load_dwordx16 s[4:19], s[0:1], 0")
    a("s_load_dwordx8 s[20:27], s[0:1], 64")
    a("s_load_dwordx4 s[28:31], s[0:1], 96")
    if stamps: a("s_memrealtime %s" % sp(sStamp))
    a("v_lshrrev_b32 v%d, 6, v0" % vTmp)
    a("v_and_b32 v%d, 63, v0" % vLane)
    a("v_readfirstlane_b32 s%d, v%d" % (sWave, vTmp))
    a("v_lshrrev_b32 v%d, 4, v%d" % (vG, vLane))
    a("v_and_b32 v%d, 15, v%d" % (vI, vLane))
    a("s_and_b32 s%d, s2, 7" % sT)
    a("s_lshr_b32 s%d, s2, 3" % (sT + 1))
    a("s_and_b32 s%d, s%d, 3" % (sT + 2, sT + 1))
    a("s_lshl_b32 s%d, s%d, 2" % (sH, sT))
    a("s_add_u32 s%d, s%d, s%d" % (sH, sH, sT + 2))
    a("s_lshr_b32 s%d, s%d, 2" % (sRot, sT + 1))
    a("s_lshr_b32 s%d, s%d, 3" % (sB, sT + 1))
    a("s_and_b32 s%d, s%d, 1" % (sSp, sRot))
    a("s_add_u32 s%d, s%d, s%d" % (sT + 3, sWave, sRot)); a("s_and_b32 s%d, s%d, 7" % (sT + 3, sT + 3))
    a("s_lshl_b32 s%d, s%d, 6" % (sT + 4, sT + 3))
    a("v_lshl_add_u32 v%d, v%d, 2, s%d" % (vA[0], vG, sT + 4))
    a("v_lshlrev_b32 v%d, 13, v%d" % (vA[1], vA[0]))
    a("v_lshl_add_u32 v%d, v%d, 4, v%d" % (vA[1], vI, vA[1]))
    a("v_lshlrev_b32 v%d, 1, v%d" % (vTmp, vA[0]))
    a("v_lshlrev_b32 v%d, 4, v%d" % (vPriv, vLane))
    a("s_lshl_b32 s%d, s%d, 8" % (sT + 5, sH))
    a("s_lshl_b32 s%d, s%d, 10" % (sT + 6, sB))
    a("s_mov_b32 s%d, 0" % (sT + 8))
    a("s_waitcnt lgkmcnt(0)")
    srd(rWq, sWq, sT + 5, 4194304, sT + 5)
    if "nowq" in abl: a("s_mov_b32 s%d, 0" % (rWq + 2))
    a("s_mov_b32 s%d, s%d" % (sX0, sX)); a("s_mov_b32 s%d, s%d" % (sX0 + 1, sX + 1))
    a("s_add_u32 s%d, s%d, s%d" % (sX, sX, sT + 6)); a("s_addc_u32 s%d, s%d, 0" % (sX + 1, sX + 1))
    for u in range(4):
        vm.issue("gate", "global_load_dwordx2 v[%d:%d], v%d, %s offset:%d" % (vT + 2 * u, vT + 2 * u + 1, vTmp, sp(sX), 32 * u))
    vm.issue("gate", "global_load_dwordx4 %s, v%d, %s" % (vr(vS), vPriv, sp(sX)))
    vm.issue("gate", "global_load_dwordx4 %s, v%d, %s" % (vr(vP), vPriv, sp(sGw)))
    for n in range(16):
        u, t = divmod(n, 4)
        vm.issue("wq%d" % u, "buffer_load_dwordx4 %s, v%d, %s, s%d offen%s" % (vr(vWA + 4 * n), vA[1], sq(rWq), sT + 8, P(wqpol)))
        if n < 15: a("s_add_u32 s%d, s%d, %d" % (sT + 8, sT + 8, 8192 if t < 3 else 13 * 8192))
    a("v_lshlrev_b32 v%d, 8, v%d" % (vKoff, vI))
    a("v_lshl_add_u32 v%d, v%d, 4, v%d" % (vKoff, vG, vKoff))
    a("v_lshlrev_b32 v%d, 10, v%d" % (vVoff, vG))
    a("v_lshl_add_u32 v%d, v%d, 4, v%d" % (vVoff, vI, vVoff))
    a("s_lshl_b32 s%d, s%d, 5" % (sRow, sB))
    a("s_add_u32 s%d, s%d, s%d" % (sRow, sRow, sH))
    a("s_lshl_b32 s%d, s%d, 1" % (sRow, sRow))
    a("s_add_u32 s%d, s%d, s%d" % (sRow, sRow, sSp))
    a("s_lshl_b32 s%d, s%d, 20" % (sT + 3, sRow))
    srd(rK, sK, sT + 3, 0x100000)
    srd(rV, sV, sT + 3, 0x100000)
    pol = P(kvpol)
    def kload(d):
        for t in range(4):
            vm.issue("K%d" % d, "buffer_load_dwordx4 %s, v%d, %s, s%d offen offset:%d%s" % (vr(Kb(d) + 4 * t), vKoff, sq(rK), sOff, 64 * t, pol))
    def vload(d):
        for t in range(4):
            vm.issue("V%d" % d, "buffer_load_dwordx4 %s, v%d, %s, s%d offen offset:%d%s" % (vr(Vb(d) + 4 * t), vVoff, sq(rV), sOff, 256 * t, pol))
    def kv_prefetch():
        save = list(vm.q)
        a("s_lshl_b32 s%d, s%d, 12" % (sOff, sWave))
        for d in range(D):
            kload(d); vload(d)
            a("s_add_u32 s%d, s%d, %d" % (sOff, sOff, 4096 * W))
        vm.q = save
    a("s_barrier")
    def old_prefetch():
        a("s_cmp_ge_u32 s%d, 4" % sWave)
        a("s_cbranch_scc1 L_pf1")
        kv_prefetch()
        a("L_pf1:")
    if early: old_prefetch()
    xs(0)
    nw = [0]
    def dual_wait(tag):
        n = vm.count(tag)
        if not early:
            vm.wait(tag); return
        a("s_waitcnt vmcnt(%d)" % (n + 8 * D))
        a("s_cmp_lt_u32 s%d, 4" % sWave)
        a("s_cbranch_scc1 L_dw%d" % nw[0])
        a("s_waitcnt vmcnt(%d)" % n)
        a("L_dw%d:" % nw[0]); nw[0] += 1
        vm.q = vm.q[len(vm.q) - n:] if n else []
    a("s_lshl_b32 s%d, s%d, 17" % (sT + 6, sH))
    srd(rWo, sWo, sT + 6, 131072)
    if "nowo" in abl: a("s_mov_b32 s%d, 0" % (rWo + 2))
    a("s_mov_b32 s%d, %s" % (sC, fbits(CSCALE)))
    a("s_getpc_b64 %s" % sp(sRare))
    a("L_pc:")
    a("s_add_u32 s%d, s%d, L_rare-L_pc" % (sRare, sRare))
    a("s_addc_u32 s%d, s%d, 0" % (sRare + 1, sRare + 1))
    a("v_and_b32 v%d, 7, v%d" % (vTmp, vI))
    a("v_lshrrev_b32 v%d, 1, v%d" % (vA[1] + 1, vTmp))
    a("v_and_b32 v%d, 1, v%d" % (vTmp, vTmp))
    a("v_lshlrev_b32 v%d, 4, v%d" % (vTmp, vTmp))
    a("v_mov_b32 v%d, 0xffff" % (vA[1] + 2))
    a("v_lshlrev_b32 v%d, v%d, v%d" % (vA[1] + 2, vTmp, vA[1] + 2))
    for r in range(4):
        a("v_cmp_eq_u32 vcc, %d, v%d" % (r, vA[1] + 1))
        a("v_cndmask_b32 v%d, 0, v%d, vcc" % (vMask + r, vA[1] + 2))
    a("s_add_u32 s%d, s%d, s%d" % (sCb, sWave, sRot)); a("s_and_b32 s%d, s%d, 3" % (sCb, sCb))
    a("s_lshl_b32 s%d, s%d, 8" % (sT, sCb))
    a("v_lshlrev_b32 v%d, 12, v%d" % (vWoff, vG))
    a("v_lshl_add_u32 v%d, v%d, 4, v%d" % (vWoff, vI, vWoff))
    a("v_add_u32 v%d, s%d, v%d" % (vWoff, sT, vWoff))
    a("v_lshlrev_b32 v%d, 5, v%d" % (vEPa, vI))
    a("v_lshl_add_u32 v%d, v%d, 4, v%d" % (vEPa, vG, vEPa))
    a("s_lshl_b32 s%d, s%d, 9" % (sT, sCb))
    a("v_add_u32 v%d, s%d, v%d" % (vYoff, sT, vEPa))
    a("s_lshl_b32 s%d, s%d, 9" % (sT + 11, sWave))
    a("v_add_u32 v%d, s%d, v%d" % (vEPa, sT + 11, vEPa))
    a("s_add_u32 s%d, s%d, %d" % (sPriv, sT + 11, L_PRIV))
    a("v_lshl_add_u32 v%d, v%d, 4, s%d" % (vPrd, vG, sPriv))
    a("s_lshl_b32 s%d, s%d, 11" % (sT, sRow))
    a("s_add_u32 s%d, s%d, s%d" % (sY, sWs, sT)); a("s_addc_u32 s%d, s%d, 0" % (sY + 1, sWs + 1))
    a("v_mov_b32 v%d, 1" % vOne)
    a("v_mov_b32 v%d, %s" % (vM, fbits(-3.0e38)))
    a("v_mul_f32 v%d, s%d, v%d" % (vMC, sC, vM))
    a("v_mov_b32 v%d, 0" % vL)
    for r in range(4): a("v_mov_b32 v%d, 0" % (vO + r))
    dual_wait("gate")
    a("v_mov_b32 v%d, 0" % vTmp)
    for r in range(4): a("v_dot2c_f32_bf16 v%d, v%d, v%d" % (vTmp, vS + r, vP + r))
    for m in ("quad_perm:[1,0,3,2]", "quad_perm:[2,3,0,1]", "row_half_mirror", "row_mirror"):
        a("v_add_f32_dpp v%d, v%d, v%d %s row_mask:0xf bank_mask:0xf" % (vTmp, vTmp, vTmp, m))
    for k in range(4): a("v_readlane_b32 s%d, v%d, %d" % (sT + k, vTmp, 16 * k))
    a("v_mov_b32 v%d, s%d" % (vTmp, sT))
    for k in range(1, 4): a("v_add_f32 v%d, s%d, v%d" % (vTmp, sT + k, vTmp))
    a("v_mul_f32 v%d, %s, v%d" % (vTmp, fbits(-LOG2E), vTmp))
    a("v_exp_f32 v%d, v%d" % (vTmp, vTmp))
    a("v_add_f32 v%d, 1.0, v%d" % (vTmp, vTmp))
    a("v_rcp_f32 v%d, v%d" % (vTmp, vTmp))
    a("v_readfirstlane_b32 s%d, v%d" % (sGate, vTmp))
    a("s_mov_b32 s%d, 0x01000100" % sT); a("s_mov_b32 s%d, 0x03020302" % (sT + 1))
    for u in range(4):
        for t in range(4):
            a("v_perm_b32 v%d, v%d, v%d, s%d" % (vQ + 4 * u + t, vT + 2 * u + t // 2, vT + 2 * u + t // 2, sT + (t & 1)))
    gemv(16, lambda n: vWA + 4 * n, lambda n: vQ + n, vS, waits=lambda n: dual_wait("wq%d" % (n // 4)) if n % 4 == 0 else None)
    a("s_mov_b32 exec_hi, 0")
    a("ds_write_b128 v%d, %s offset:%d" % (vEPa, vr(vS), L_QP))
    a("s_mov_b32 exec_hi, -1")
    if not early: old_prefetch()
    a("s_waitcnt lgkmcnt(0)")
    a("s_barrier")
    a("s_cmp_lt_u32 s%d, 4" % sWave)
    a("s_cbranch_scc1 L_pf2")
    kv_prefetch()
    a("L_pf2:")
    vm.q = []
    for d in range(D): vm.note("K%d" % d, 4); vm.note("V%d" % d, 4)
    a("v_lshlrev_b32 v%d, 3, v%d" % (vTmp, vLane))
    tq = vQ
    for w in range(8):
        a("ds_read_b64 v[%d:%d], v%d offset:%d" % (tq + 2 * w, tq + 2 * w + 1, vTmp, L_QP + 512 * w))
    a("v_lshlrev_b32 v%d, 2, v%d" % (vPriv, vLane))
    a("v_add_u32 v%d, s%d, v%d" % (vPriv, sPriv, vPriv))
    a("s_waitcnt lgkmcnt(0)")
    for step in (4, 2, 1):
        for w in range(step):
            for k in range(2):
                a("v_add_f32 v%d, v%d, v%d" % (tq + 2 * w + k, tq + 2 * w + k, tq + 2 * (w + step) + k))
    a("v_cvt_pk_bf16_f32 v%d, v%d, v%d" % (vTmp, tq, tq + 1))
    a("ds_write_b32 v%d, v%d" % (vPriv, vTmp))
    a("s_waitcnt lgkmcnt(0)")
    for t in range(4):
        a("ds_read_b128 %s, v%d offset:%d" % (vr(vQ + 4 * t), vPrd, 64 * t))
    a("s_lshl_b32 s%d, s%d, 12" % (sOff, sWave))
    a("s_add_u32 s%d, s%d, %d" % (sOff, sOff, 4096 * W * D))
    a("s_waitcnt lgkmcnt(0)")
    xs(1)

    ntr = [0]; tramps = []
    def tile(d, prefetch):
        vm.wait("K%d" % d)
        for t in range(4):
            a("%s %s, %s, %s, %s" % (MF, vr(vS), vr(Kb(d) + 4 * t), vr(vQ + 4 * t), "0" if t == 0 else vr(vS)))
        if prefetch: kload(d)
        a("v_max3_f32 v%d, v%d, v%d, v%d" % (vT, vS, vS + 1, vS + 2))
        a("v_max_f32 v%d, v%d, v%d" % (vT, vT, vS + 3))
        a("v_cmp_gt_f32 vcc, v%d, v%d" % (vT, vM))
        k = ntr[0]; ntr[0] += 1
        a("s_cbranch_vccnz L_tr%d" % k)
        a("L_back%d:" % k)
        tramps.append(k)
        for t in range(4): a("v_fma_f32 v%d, v%d, s%d, -v%d" % (vS + t, vS + t, sC, vMC))
        for t in range(4): a("v_exp_f32 v%d, v%d" % (vS + t, vS + t))
        a("v_add_f32 v%d, v%d, v%d" % (vT, vS, vS + 1))
        a("v_add_f32 v%d, v%d, v%d" % (vT + 1, vS + 2, vS + 3))
        for t in range(4): a("v_cvt_pk_bf16_f32 v%d, v%d, v%d" % (vP + t, vS + t, vS + t))
        a("v_add_f32 v%d, v%d, v%d" % (vT, vT, vT + 1))
        a("v_add_f32 v%d, v%d, v%d" % (vL, vL, vT))
        def ands(t):
            for r in range(4): a("v_and_b32 v%d, v%d, v%d" % (vA[t & 1] + r, vP + t, vMask + r))
        ands(0); ands(1)
        vm.wait("V%d" % d)
        for t in range(4):
            a("%s %s, %s, %s, %s" % (MF, vr(vO), vr(vA[t & 1]), vr(Vb(d) + 4 * t), vr(vO)))
            if t + 2 < 4: ands(t + 2)
        if prefetch:
            vload(d)
            a("s_add_u32 s%d, s%d, %d" % (sOff, sOff, 4096 * W))
    nl = (NT - D) // D
    rem = (NT - D) - nl * D
    m = 1
    while 2 * m <= nl - 2: m *= 2
    a("s_mul_i32 s%d, s%d, 3" % (sWoT, sH)); a("s_and_b32 s%d, s%d, %d" % (sWoT, sWoT, m - 1)); a("s_add_u32 s%d, s%d, 2" % (sWoT, sWoT))
    a("s_cmp_lt_u32 s%d, 4" % sWave)
    a("s_cselect_b32 s%d, -1, s%d" % (sWoT, sWoT))
    a("s_mov_b32 s%d, %d" % (sCnt, nl))
    a("L_loop:")
    for it in range(D): tile(it, True)
    if wostag:
        a("s_cmp_lg_u32 s%d, s%d" % (sCnt, sWoT))
        a("s_cbranch_scc1 L_nobar")
        a("s_barrier")
        a("L_nobar:")
    a("s_sub_u32 s%d, s%d, 1" % (sCnt, sCnt))
    a("s_cmp_lg_u32 s%d, 0" % sCnt)
    a("s_cbranch_scc1 L_loop")
    for it in range(rem): tile(it % D, True)
    if ffn:
        a("s_cmp_lg_u32 s%d, 4" % sWave)
        a("s_cbranch_scc1 L_noclaim")
        a("v_mov_b32 v%d, 0" % vChk)
        a("s_mov_b64 exec, 1")
        a("global_atomic_add v%d, v%d, v%d, %s sc0" % (vChk, vChk, vOne, sp(sDbg)))
        a("s_mov_b64 exec, -1")
        a("L_noclaim:")
    for it in range(D): tile((rem + it) % D, False)
    xs(3)

    for k in range(4): a("v_readlane_b32 s%d, v%d, %d" % (sT + k, vL, 16 * k))
    a("s_lshl_b32 s%d, s%d, 3" % (sT + 4, sWave))
    a("v_mov_b32 v%d, s%d" % (vT + 1, sT))
    a("v_mov_b32 v%d, s%d" % (vT + 2, sT + 4))
    for k in range(1, 4): a("v_add_f32 v%d, s%d, v%d" % (vT + 1, sT + k, vT + 1))
    a("v_mov_b32 v%d, v%d" % (vT, vM))
    a("s_mov_b32 exec_hi, 0")
    a("ds_write_b128 v%d, %s offset:%d" % (vEPa, vr(vO), L_EP))
    a("s_mov_b32 exec_lo, 1")
    a("ds_write_b64 v%d, v[%d:%d] offset:%d" % (vT + 2, vT, vT + 1, L_ML))
    a("s_mov_b64 exec, -1")
    a("s_cmp_lt_u32 s%d, 4" % sWave)
    a("s_cbranch_scc1 L_old")
    if ffn:
        a("s_cmp_lg_u32 s%d, 4" % sWave)
        a("s_cbranch_scc1 L_nopub")
        a("v_mov_b32 v%d, %d" % (vT + 1, L_CLAIM))
        a("s_mov_b64 exec, 1")
        a("s_waitcnt vmcnt(0)")
        a("ds_write_b32 v%d, v%d" % (vT + 1, vChk))
        a("s_mov_b64 exec, -1")
        a("L_nopub:")
    a("s_waitcnt lgkmcnt(0)")
    a("s_barrier")
    if not ffn:
        a("s_branch L_fin")
    else:
        a("v_mov_b32 v%d, %d" % (vT + 1, L_CLAIM))
        a("ds_read_b32 v%d, v%d" % (vT + 2, vT + 1))
        a("s_waitcnt lgkmcnt(0)")
        a("v_readfirstlane_b32 s%d, v%d" % (sSig, vT + 2))
        a("s_cmp_ge_u32 s%d, %d" % (sSig, NFF))
        a("s_cbranch_scc1 L_fin")
        fW1 = vKV; fW2 = vKV + 32; fX = vKV + 64; fPl = vQ; fPh = vQ + 8
        sWy = sT + 9
        a("s_sub_u32 s%d, s%d, 4" % (sWy, sWave))
        a("s_lshl_b32 s%d, s%d, 6" % (sT, sSig))
        srd(rW1, sW1, sT, 1835008, sT)
        a("s_lshl_b32 s%d, s%d, 15" % (sT + 1, sSig))
        srd(rW2, sW2, sT + 1, 32768)
        a("s_add_u32 s%d, s%d, s%d" % (sB1, sB1, sT)); a("s_addc_u32 s%d, s%d, 0" % (sB1 + 1, sB1 + 1))
        a("s_lshl_b32 s%d, s%d, 7" % (sT + 2, sWy))
        a("v_lshrrev_b32 v%d, 3, v%d" % (vT, vI))
        a("v_lshlrev_b32 v%d, 5, v%d" % (vT, vT))
        a("v_lshl_add_u32 v%d, v%d, 2, v%d" % (vT, vG, vT))
        a("v_add_u32 v%d, s%d, v%d" % (vT, sT + 2, vT))
        a("v_lshlrev_b32 v%d, 1, v%d" % (vT, vT))
        for b in range(4):
            for hh_ in range(2):
                for u in range(2):
                    r0 = fX + 8 * b + 4 * hh_ + 2 * u
                    a("global_load_dwordx2 v[%d:%d], v%d, %s offset:%d" % (r0, r0 + 1, vT, sp(sX0), 1024 * b + 128 * hh_ + 32 * u))
        a("v_lshrrev_b32 v%d, 2, v%d" % (vT + 1, vI))
        a("v_lshlrev_b32 v%d, 5, v%d" % (vT + 1, vT + 1))
        a("v_lshl_add_u32 v%d, v%d, 2, v%d" % (vT + 1, vG, vT + 1))
        a("v_add_u32 v%d, s%d, v%d" % (vT + 1, sT + 2, vT + 1))
        a("s_movk_i32 s%d, 3584" % (sT + 3))
        a("v_mul_lo_u32 v%d, v%d, s%d" % (vT + 1, vT + 1, sT + 3))
        a("v_and_b32 v%d, 3, v%d" % (vT + 2, vI))
        a("v_lshl_add_u32 v%d, v%d, 4, v%d" % (vT + 1, vT + 2, vT + 1))
        a("s_mov_b32 s%d, 0" % (sT + 4))
        for n in range(8):
            u, t = divmod(n, 4)
            a("buffer_load_dwordx4 %s, v%d, %s, s%d offen%s" % (vr(fW1 + 4 * n), vT + 1, sq(rW1), sT + 4, P(fpol)))
            if n < 7: a("s_add_u32 s%d, s%d, %d" % (sT + 4, sT + 4, 3584 if t < 3 else 13 * 3584))
        a("v_lshlrev_b32 v%d, 12, v%d" % (vT + 3, vG))
        a("v_lshl_add_u32 v%d, v%d, 4, v%d" % (vT + 3, vI, vT + 3))
        a("s_lshl_b32 s%d, s%d, 8" % (sT + 2, sWy))
        a("v_add_u32 v%d, s%d, v%d" % (vT + 3, sT + 2, vT + 3))
        a("s_mov_b32 s%d, 0" % (sT + 4))
        for n in range(8):
            u, t = divmod(n, 4)
            a("buffer_load_dwordx4 %s, v%d, %s, s%d offen offset:%d%s" % (vr(fW2 + 4 * n), vT + 3, sq(rW2), sT + 4, 1024 * t, P(fpol)))
            if n == 3: a("s_add_u32 s%d, s%d, 16384" % (sT + 4, sT + 4))
        a("v_and_b32 v%d, 31, v%d" % (vT + 4, vLane))
        a("v_lshlrev_b32 v%d, 1, v%d" % (vT + 4, vT + 4))
        a("global_load_ushort v%d, v%d, %s" % (vT + 5, vT + 4, sp(sB1)))
        a("v_lshrrev_b32 v%d, 2, v%d" % (vT + 4, vI))
        a("v_lshlrev_b32 v%d, 7, v%d" % (vT + 4, vT + 4))
        a("v_and_b32 v%d, 3, v%d" % (vT + 6, vI))
        a("v_lshl_add_u32 v%d, v%d, 5, v%d" % (vT + 4, vT + 6, vT + 4))
        a("v_and_b32 v%d, 1, v%d" % (vT + 6, vG))
        a("v_lshl_add_u32 v%d, v%d, 4, v%d" % (vT + 4, vT + 6, vT + 4))
        a("s_lshl_b32 s%d, s%d, 11" % (sT + 2, sWy))
        a("v_add_u32 v%d, s%d, v%d" % (vT + 4, sT + 2, vT + 4))
        a("s_mov_b32 s%d, 0x01000100" % (sT + 6)); a("s_mov_b32 s%d, 0x03020302" % (sT + 7))
        a("s_waitcnt vmcnt(9)")
        for b in range(4):
            for hh_ in range(2):
                for u in range(2):
                    for t in range(4):
                        src = fX + 8 * b + 4 * hh_ + 2 * u + t // 2
                        a("v_perm_b32 v%d, v%d, v%d, s%d" % (vQ + 8 * hh_ + 4 * u + t, src, src, sT + 6 + (t & 1)))
            gemv(8, lambda n: fW1 + 4 * n, lambda n: fPl + n, vS)
            gemv(8, lambda n: fW1 + 4 * n, lambda n: fPh + n, vP)
            a("s_mov_b32 exec_lo, 0x000f000f"); a("s_mov_b32 exec_hi, 0x00f000f0")
            a("ds_write_b128 v%d, %s offset:%d" % (vT + 4, vr(vS), L_HP + 512 * b))
            a("s_mov_b32 exec_lo, 0x0f000f00"); a("s_mov_b32 exec_hi, 0xf000f000")
            a("ds_write_b128 v%d, %s offset:%d" % (vT + 4, vr(vP), L_HP + 512 * b))
            a("s_mov_b64 exec, -1")
        a("s_waitcnt lgkmcnt(0)")
        a("s_barrier")
        a("v_and_b32 v%d, 31, v%d" % (vT + 4, vLane))
        a("v_lshlrev_b32 v%d, 2, v%d" % (vT + 4, vT + 4))
        a("v_lshrrev_b32 v%d, 5, v%d" % (vT + 6, vLane))
        a("v_lshl_add_u32 v%d, v%d, 8, v%d" % (vT + 6, vT + 6, vT + 4))
        a("s_lshl_b32 s%d, s%d, 9" % (sT + 2, sWy))
        a("v_add_u32 v%d, s%d, v%d" % (vT + 6, sT + 2, vT + 6))
        a("v_add_u32 v%d, %d, v%d" % (vT + 6, L_HP, vT + 6))
        for w in range(4):
            a("ds_read2_b32 v[%d:%d], v%d offset0:%d offset1:%d" % (vQ + 2 * w, vQ + 2 * w + 1, vT + 6, 0, 32) if w == 0 else
              "v_add_u32 v%d, 2048, v%d\nds_read2_b32 v[%d:%d], v%d offset0:0 offset1:32" % (vT + 6, vT + 6, vQ + 2 * w, vQ + 2 * w + 1, vT + 6))
        a("s_waitcnt vmcnt(0) lgkmcnt(0)")
        for w in range(4): a("v_add_f32 v%d, v%d, v%d" % (vQ + 2 * w, vQ + 2 * w, vQ + 2 * w + 1))
        a("v_add_f32 v%d, v%d, v%d" % (vQ, vQ, vQ + 2)); a("v_add_f32 v%d, v%d, v%d" % (vQ + 4, vQ + 4, vQ + 6))
        r = vQ
        a("v_add_f32 v%d, v%d, v%d" % (r, vQ, vQ + 4))
        a("v_mov_b32 v%d, v%d" % (r + 1, r))
        a("v_permlane32_swap_b32 v%d, v%d" % (r, r + 1))
        a("v_add_f32 v%d, v%d, v%d" % (r, r, r + 1))
        a("v_cvt_pk_bf16_f32 v%d, v%d, v%d" % (r, r, r))
        a("v_and_b32 v%d, 0xffff0000, v%d" % (r, r))
        a("v_lshlrev_b32 v%d, 16, v%d" % (vT + 5, vT + 5))
        a("v_add_f32 v%d, v%d, v%d" % (r, r, vT + 5))
        a("v_cvt_pk_bf16_f32 v%d, v%d, v%d" % (r, r, r))
        a("v_and_b32 v%d, 0xffff0000, v%d" % (r, r))
        a("v_max_f32 v%d, 0, v%d" % (r, r))
        a("v_mul_f32 v%d, v%d, v%d" % (r, r, r))
        a("v_cvt_pk_bf16_f32 v%d, v%d, v%d" % (r, r, r))
        a("s_lshl_b32 s%d, s%d, 7" % (sT + 2, sWy))
        a("v_add_u32 v%d, s%d, v%d" % (vT + 4, sT + 2, vT + 4))
        a("s_mov_b32 exec_hi, 0")
        a("ds_write_b32 v%d, v%d offset:%d" % (vT + 4, r, L_HH))
        a("s_mov_b32 exec_hi, -1")
        a("s_waitcnt lgkmcnt(0)")
        a("s_barrier")
        a("v_lshlrev_b32 v%d, 4, v%d" % (vT + 4, vG))
        for b in range(4):
            for u in range(2): a("ds_read_b128 %s, v%d offset:%d" % (vr(fX + 8 * b + 4 * u), vT + 4, L_HH + 128 * b + 64 * u))
        a("v_lshlrev_b32 v%d, 5, v%d" % (vT + 6, vI))
        a("v_lshl_add_u32 v%d, v%d, 4, v%d" % (vT + 6, vG, vT + 6))
        a("s_lshl_b32 s%d, s%d, 9" % (sT + 2, sWy))
        a("v_add_u32 v%d, s%d, v%d" % (vT + 6, sT + 2, vT + 6))
        a("s_lshl_b32 s%d, s%d, 11" % (sT + 2, sSig)); a("s_add_u32 s%d, s%d, 0x%x" % (sT + 2, sT + 2, WS_YF))
        a("s_add_u32 s%d, s%d, s%d" % (sY, sWs, sT + 2)); a("s_addc_u32 s%d, s%d, 0" % (sY + 1, sWs + 1))
        a("s_waitcnt lgkmcnt(0)")
        for b in range(4):
            acc = vS if b & 1 == 0 else vP
            gemv(8, lambda n: fW2 + 4 * n, lambda n: fX + 8 * b + n, acc)
            a("s_mov_b32 exec_hi, 0")
            a("global_store_dwordx4 v%d, %s, %s%s" % (vT + 6, vr(acc), sp(sY), P(stpol)))
            a("s_mov_b32 exec_hi, -1")
            if b < 3:
                a("s_add_u32 s%d, s%d, %d" % (sY, sY, NFF * 2048)); a("s_addc_u32 s%d, s%d, 0" % (sY + 1, sY + 1))
        a("s_branch L_fin")

    a("L_old:")
    if wostag: a("s_barrier")
    a("s_mov_b32 s%d, 0" % (sT + 8))
    for n in range(32):
        u, t = divmod(n, 4)
        a("buffer_load_dwordx4 %s, v%d, %s, s%d offen offset:%d%s" % (vr(vWO + 4 * n), vWoff, sq(rWo), sT + 8, 1024 * t, P(wopol)))
        if t == 3 and n < 31: a("s_add_u32 s%d, s%d, 16384" % (sT + 8, sT + 8))
    a("v_mov_b32 v%d, 0" % vT)
    a("v_lshlrev_b32 v%d, 2, v%d" % (vT + 1, vLane))
    a("s_waitcnt vmcnt(0) lgkmcnt(0)")
    a("s_barrier")
    xs(2)
    tm = vQ; to = vPP
    for k in range(4): a("ds_read_b128 %s, v%d offset:%d" % (vr(tm + 4 * k), vT, L_ML + 16 * k))
    for w in range(8):
        a("ds_read2st64_b32 v[%d:%d], v%d offset0:%d offset1:%d" % (to + 2 * w, to + 2 * w + 1, vT + 1, L_EP // 256 + 2 * w, L_EP // 256 + 2 * w + 1))
    a("s_waitcnt lgkmcnt(8)")
    a("v_max3_f32 v%d, v%d, v%d, v%d" % (vM, tm, tm + 2, tm + 4))
    a("v_max3_f32 v%d, v%d, v%d, v%d" % (vM, vM, tm + 6, tm + 8))
    a("v_max3_f32 v%d, v%d, v%d, v%d" % (vM, vM, tm + 10, tm + 12))
    a("v_max_f32 v%d, v%d, v%d" % (vM, vM, tm + 14))
    a("v_mul_f32 v%d, s%d, v%d" % (vMC, sC, vM))
    for w in range(8): a("v_fma_f32 v%d, v%d, s%d, -v%d" % (tm + 2 * w, tm + 2 * w, sC, vMC))
    for w in range(8): a("v_exp_f32 v%d, v%d" % (tm + 2 * w, tm + 2 * w))
    a("s_waitcnt lgkmcnt(0)")
    for k in range(2): a("v_mul_f32 v%d, v%d, v%d" % (vT + 2 + k, tm, to + k))
    for w in range(1, 8):
        for k in range(2): a("v_fmac_f32 v%d, v%d, v%d" % (vT + 2 + k, tm + 2 * w, to + 2 * w + k))
    for k in range(2): a("v_cvt_pk_bf16_f32 v%d, v%d, v%d" % (vT + 2 + k, vT + 2 + k, vT + 2 + k))
    a("ds_write2st64_b32 v%d, v%d, v%d offset0:0 offset1:1" % (vPriv, vT + 2, vT + 3))
    a("v_mul_f32 v%d, v%d, v%d" % (vL, tm, tm + 1))
    for w in range(1, 8): a("v_fmac_f32 v%d, v%d, v%d" % (vL, tm + 2 * w, tm + 2 * w + 1))
    a("s_waitcnt lgkmcnt(0)")
    for u in range(8): a("ds_read_b128 %s, v%d offset:%d" % (vr(vPP + 4 * u), vPrd, 64 * u))
    a("s_waitcnt lgkmcnt(7)")
    gemv(32, lambda n: vWO + 4 * n, lambda n: vPP + n, vS,
         waits=lambda n: a("s_waitcnt lgkmcnt(%d)" % max(0, 7 - (n + 1) // 4)) if (n + 1) % 4 == 0 and n < 31 else None)
    a("s_mov_b32 exec_hi, 0")
    xs(4)
    a("global_store_dwordx4 v%d, %s, %s%s" % (vYoff, vr(vS), sp(sY), P(stpol)))
    a("s_mov_b64 exec, -1")
    a("s_cmp_lg_u32 s%d, 0" % sWave)
    a("s_cbranch_scc1 L_w0done")
    a("v_mov_b32 v%d, s%d" % (vT + 4, sGate))
    a("v_rcp_f32 v%d, v%d" % (vT + 5, vT + 4))
    a("v_sub_f32 v%d, 1.0, v%d" % (vT + 4, vT + 4))
    a("v_mul_f32 v%d, v%d, v%d" % (vT + 3, vL, vT + 5))
    a("v_mov_b32 v%d, v%d" % (vT + 2, vMC))
    a("s_lshl_b32 s%d, s%d, 3" % (sT + 2, sRow)); a("s_add_u32 s%d, s%d, 0x%x" % (sT + 2, sT + 2, WS_ML))
    a("v_mov_b32 v%d, s%d" % (vT + 6, sT + 2))
    a("s_mov_b64 exec, 1")
    a("global_store_dwordx2 v%d, v[%d:%d], %s%s" % (vT + 6, vT + 2, vT + 3, sp(sWs), P(stpol)))
    a("s_and_b32 s%d, s%d, 63" % (sT + 3, sRow))
    a("s_cmp_lg_u32 s%d, 0" % (sT + 3))
    a("s_cbranch_scc1 L_nog")
    a("s_lshl_b32 s%d, s%d, 2" % (sT + 2, sB)); a("s_add_u32 s%d, s%d, 0x%x" % (sT + 2, sT + 2, WS_G))
    a("v_mov_b32 v%d, s%d" % (vT + 6, sT + 2))
    a("global_store_dword v%d, v%d, %s%s" % (vT + 6, vT + 4, sp(sWs), P(stpol)))
    a("L_nog:")
    a("s_mov_b64 exec, -1")
    a("L_w0done:")
    if stamps:
        a("s_cmp_lg_u32 s%d, 0" % sWave)
        a("s_cbranch_scc1 L_nost")
        a("s_mov_b64 exec, 1")
        a("s_memrealtime %s" % sp(sStamp + 2))
        a("s_waitcnt lgkmcnt(0)")
        for k in range(4): a("v_mov_b32 v%d, s%d" % (vQ + k, sStamp + k))
        a("s_lshl_b32 s%d, s2, 4" % sT); a("s_add_u32 s%d, s%d, 0x%x" % (sT, sT, WS_STAMP))
        a("v_mov_b32 v%d, s%d" % (vT + 2, sT))
        a("global_store_dwordx4 v%d, %s, %s" % (vT + 2, vr(vQ), sp(sWs)))
        a("s_mov_b64 exec, -1")
        a("L_nost:")
    a("L_fin:")
    if stamps:
        a("s_mov_b64 exec, 1")
        xs(5)
        a("s_waitcnt lgkmcnt(0)")
        for k in range(NXS):
            a("s_lshl_b32 s%d, s2, 3" % sT); a("s_add_u32 s%d, s%d, s%d" % (sT, sT, sWave)); a("s_lshl_b32 s%d, s%d, 3" % (sT, sT))
            a("s_add_u32 s%d, s%d, 0x%x" % (sT, sT, WS_STAMP + 0x40000 + 0x4000 * k))
            a("v_mov_b32 v%d, s%d" % (vT + 2, sT))
            a("v_mov_b32 v%d, s%d" % (vQ + 4, sXS + 2 * k)); a("v_mov_b32 v%d, s%d" % (vQ + 5, sXS + 2 * k + 1))
            a("global_store_dwordx2 v%d, v[%d:%d], %s" % (vT + 2, vQ + 4, vQ + 5, sp(sWs)))
            a("s_nop 1")
    a("L_done:")
    a("s_endpgm")
    for k in tramps:
        a("L_tr%d:" % k)
        a("s_swappc_b64 %s, %s" % (sp(sRet), sp(sRare)))
        a("s_branch L_back%d" % k)
    a("L_rare:")
    for k in range(4): a("v_readlane_b32 s%d, v%d, %d" % (sT + k, vT, 16 * k))
    a("v_mov_b32 v%d, s%d" % (vT + 1, sT))
    for k in range(1, 4): a("v_max_f32 v%d, s%d, v%d" % (vT + 1, sT + k, vT + 1))
    a("v_max_f32 v%d, v%d, v%d" % (vT + 1, vT + 1, vM))
    a("v_sub_f32 v%d, v%d, v%d" % (vT + 2, vM, vT + 1))
    a("v_mul_f32 v%d, s%d, v%d" % (vT + 2, sC, vT + 2))
    a("v_exp_f32 v%d, v%d" % (vT + 2, vT + 2))
    a("v_mov_b32 v%d, v%d" % (vM, vT + 1))
    a("v_mul_f32 v%d, s%d, v%d" % (vMC, sC, vT + 1))
    for r in range(4): a("v_mul_f32 v%d, v%d, v%d" % (vO + r, vO + r, vT + 2))
    a("v_mul_f32 v%d, v%d, v%d" % (vL, vL, vT + 2))
    a("s_nop 1")
    a("s_setpc_b64 %s" % sp(sRet))
    body1 = a.finish()

    c = Asm()
    c("%s:" % K2)
    c("s_cmp_ge_u32 s2, 64")
    c("s_cbranch_scc1 L2_done")
    c("s_load_dwordx2 s[4:5], s[0:1], 88")
    c("s_load_dwordx2 s[6:7], s[0:1], 104")
    c("s_load_dwordx2 s[32:33], s[0:1], 72")
    if stamps: c("s_memrealtime s[36:37]")
    c("s_lshr_b32 s8, s2, 4")
    c("s_and_b32 s9, s2, 15")
    c("v_lshrrev_b32 v1, 3, v0")
    c("v_and_b32 v2, 7, v0")
    c("v_lshlrev_b32 v3, 14, v1")
    c("v_lshl_add_u32 v3, v2, 4, v3")
    c("v_lshlrev_b32 v4, 11, v1")
    c("v_lshl_add_u32 v4, v2, 4, v4")
    c("v_lshlrev_b32 v5, 6, v1")
    c("v_lshlrev_b32 v6, 3, v2")
    c("s_lshl_b32 s10, s8, 17"); c("s_lshl_b32 s11, s9, 7"); c("s_add_u32 s10, s10, s11")
    c("s_mul_i32 s12, s8, %d" % (NFF * 2048)); c("s_add_u32 s12, s12, s11"); c("s_add_u32 s12, s12, 0x%x" % WS_YF)
    c("s_lshl_b32 s13, s8, 9"); c("s_add_u32 s13, s13, 0x%x" % WS_ML)
    c("s_movk_i32 s24, 4096"); c("s_movk_i32 s25, 8192"); c("s_movk_i32 s26, 12288")
    for k in range(1, 7): c("s_mov_b32 s%d, %d" % (41 + k, 16384 * k))
    c("s_lshl_b32 s31, s8, 2"); c("s_add_u32 s31, s31, 0x%x" % WS_G)
    c("v_mov_b32 v7, s31")
    c("s_lshl_b32 s35, s9, 6")
    c("s_waitcnt lgkmcnt(0)")
    c("s_add_u32 s14, s6, s13"); c("s_addc_u32 s15, s7, 0")
    for k in range(4): c("global_load_dwordx4 %s, v5, s[14:15] offset:%d" % (vr(8 + 4 * k), 16 * k))
    c("s_add_u32 s16, s6, s10"); c("s_addc_u32 s17, s7, 0"); c("s_mov_b32 s18, 0x20000"); c("s_mov_b32 s19, 0x20000")
    for j in range(8):
        so = "0" if j < 2 else "s%d" % (24 + j // 2 - 1)
        c("buffer_load_dwordx4 %s, v3, s[16:19], %s offen offset:%d" % (vr(24 + 4 * j), so, 2048 * (j & 1)))
    c("s_add_u32 s20, s6, s12"); c("s_addc_u32 s21, s7, 0"); c("s_sub_u32 s22, %d, s11" % (NFF * 2048)); c("s_mov_b32 s23, 0x20000")
    for k in range(7):
        c("buffer_load_dwordx4 %s, v4, s[20:23], %s offen" % (vr(88 + 4 * k), "0" if k == 0 else "s%d" % (41 + k)))
    c("global_load_dword v72, v7, s[6:7]")
    c("s_add_u32 s32, s32, s35"); c("s_addc_u32 s33, s33, 0")
    c("global_load_dwordx2 v[74:75], v6, s[32:33]")
    c("s_lshl_b32 s34, s8, 10"); c("s_add_u32 s34, s34, s35")
    c("s_add_u32 s4, s4, s34"); c("s_addc_u32 s5, s5, 0")
    c("s_waitcnt vmcnt(17)")
    for p in range(4):
        r = 8 + 4 * p
        c("v_max_f32 v84, v%d, v%d" % (r, r + 2))
        c("v_sub_f32 v%d, v%d, v84" % (r, r)); c("v_sub_f32 v%d, v%d, v84" % (r + 2, r + 2))
        c("v_exp_f32 v%d, v%d" % (r, r)); c("v_exp_f32 v%d, v%d" % (r + 2, r + 2))
        c("v_mul_f32 v%d, v%d, v%d" % (r + 1, r + 1, r))
        c("v_fmac_f32 v%d, v%d, v%d" % (r + 1, r + 3, r + 2))
        c("v_rcp_f32 v%d, v%d" % (r + 1, r + 1))
        c("v_mul_f32 v%d, v%d, v%d" % (r, r, r + 1)); c("v_mul_f32 v%d, v%d, v%d" % (r + 2, r + 2, r + 1))
    c("s_waitcnt vmcnt(9)")
    for r in range(4): c("v_mul_f32 v%d, v8, v%d" % (84 + r, 24 + r))
    for j in range(1, 8):
        sc = 8 + 4 * (j // 2) + 2 * (j & 1)
        for r in range(4): c("v_fmac_f32 v%d, v%d, v%d" % (84 + r, sc, 24 + 4 * j + r))
    c("s_waitcnt vmcnt(0)")
    for r in range(4): c("v_add_f32 v%d, v%d, v%d" % (56 + r, 88 + r, 92 + r))
    for k in range(2, 7):
        for r in range(4): c("v_add_f32 v%d, v%d, v%d" % (56 + r, 56 + r, 88 + 4 * k + r))
    c("v_lshlrev_b32 v76, 16, v74"); c("v_and_b32 v77, 0xffff0000, v74"); c("v_lshlrev_b32 v78, 16, v75"); c("v_and_b32 v79, 0xffff0000, v75")
    c("v_cmp_eq_u32 vcc, 0, v1")
    for r in range(4): c("v_cndmask_b32 v%d, 0, v%d, vcc" % (76 + r, 76 + r))
    for r in range(4): c("v_add_f32 v%d, v%d, v%d" % (56 + r, 56 + r, 76 + r))
    for r in range(4): c("v_fmac_f32 v%d, v72, v%d" % (84 + r, 56 + r))
    for r in range(4): c("v_add_f32_dpp v%d, v%d, v%d row_ror:8 row_mask:0xf bank_mask:0xf" % (84 + r, 84 + r, 84 + r))
    for sw in ("v_permlane16_swap_b32", "v_permlane32_swap_b32"):
        for r in range(4): c("v_mov_b32 v%d, v%d" % (60 + r, 84 + r))
        for r in range(4): c("%s v%d, v%d" % (sw, 84 + r, 60 + r))
        for r in range(4): c("v_add_f32 v%d, v%d, v%d" % (84 + r, 84 + r, 60 + r))
    c("v_cvt_pk_bf16_f32 v84, v84, v85")
    c("v_cvt_pk_bf16_f32 v85, v86, v87")
    c("s_mov_b64 exec, 0xff")
    c("global_store_dwordx2 v6, v[84:85], s[4:5]")
    if stamps:
        c("s_waitcnt vmcnt(0)")
        c("s_memrealtime s[38:39]")
        c("s_waitcnt lgkmcnt(0)")
        c("s_mov_b64 exec, 0xf")
        c("v_and_b32 v1, 3, v0")
        c("s_lshl_b32 s34, s2, 2")
        c("v_add_u32 v1, s34, v1")
        c("v_lshlrev_b32 v1, 3, v1")
        for k in range(2):
            c("v_add_u32 v2, 0x%x, v1" % (WS_STAMP + 0x10000 + 0x1000 * (5 + k)))
            c("v_mov_b32 v8, s%d" % (36 + 2 * k)); c("v_mov_b32 v9, s%d" % (37 + 2 * k))
            c("global_store_dwordx2 v2, v[8:9], s[6:7]")
            c("s_nop 1")
    c("L2_done:")
    c("s_endpgm")
    body2 = c.finish()

    hdr = open("cdna_kernels/%s.s.ref" % NAME).read().split("; Override launch")[0]
    out = hdr
    out += "; @launch kernel=%s grid=(256,1,1) block=(%d,1,1) lds=%d\n" % (K1, 64 * W, L_END)
    out += "; @launch kernel=%s grid=(64,1,1) block=(64,1,1) lds=0\n" % K2
    out += '.amdgcn_target "amdgcn-amd-amdhsa--gfx950"\n.text\n'
    for k, body in ((K1, body1), (K2, body2)):
        out += ".globl %s\n.p2align 8\n.type %s,@function\n" % (k, k) + body
    out += '.section .rodata,"a"\n'
    for k, nv, ns in ((K1, NV, 100), (K2, 116, 56)):
        out += ".p2align 6\n.amdhsa_kernel %s\n" % k
        out += "  .amdhsa_next_free_vgpr %d\n  .amdhsa_next_free_sgpr %d\n  .amdhsa_accum_offset %d\n" % (nv, ns, (nv + 3) // 4 * 4)
        out += "  .amdhsa_group_segment_fixed_size 0\n  .amdhsa_kernarg_size 112\n  .amdhsa_user_sgpr_count 2\n"
        out += "  .amdhsa_user_sgpr_kernarg_segment_ptr 1\n  .amdhsa_system_sgpr_workgroup_id_x 1\n"
        out += "  .amdhsa_float_denorm_mode_32 3\n"
        out += ".end_amdhsa_kernel\n"
    return out

if __name__ == "__main__":
    import argparse
    ap = argparse.ArgumentParser()
    ap.add_argument("-o", default="cdna_kernels/%s.s" % NAME)
    ap.add_argument("--D", type=int, default=2)
    ap.add_argument("--kvpol", default="nt")
    ap.add_argument("--wqpol", default="")
    ap.add_argument("--wopol", default="")
    ap.add_argument("--fpol", default="")
    ap.add_argument("--stpol", default="")
    ap.add_argument("--stamps", action="store_true")
    ap.add_argument("--noffn", action="store_true")
    ap.add_argument("--abl", default="")
    ap.add_argument("--early", action="store_true")
    ap.add_argument("--nowostag", action="store_true")
    x = ap.parse_args()
    open(x.o, "w").write(gen(D=x.D, kvpol=x.kvpol, wqpol=x.wqpol, wopol=x.wopol, fpol=x.fpol, stpol=x.stpol,
                             stamps=x.stamps, ffn=not x.noffn, abl=tuple(x.abl.split(",")), early=x.early, wostag=not x.nowostag))
    print("wrote", x.o)
```

```python
import sys, os, struct
sys.path.insert(0, os.path.dirname(os.path.abspath(__file__)))
from asmlib import Asm, VmQueue

NAME = "gated_mix__mha_block_cached__dense_activation_squared_relu__decode"
K1 = NAME + "_kernel"
K2 = "final_reduce_kernel"

def fbits(x): return "0x%08x" % struct.unpack("<I", struct.pack("<f", x))[0]
LOG2E = 1.4426950408889634
CSCALE = LOG2E * (128 ** -0.5)

NFF = 56
WS_Y, WS_YF, WS_ML, WS_G = 0, 0x80000, 0x100000, 0x101000
WS_STAMP = 0x20000000
L_QP, L_PRIV, L_EP, L_ML, L_CLAIM, L_HH, L_HP, L_XS, L_END = 0, 4096, 8192, 12288, 12416, 12544, 13568, 13568 + 8192, 13568 + 8192 + 4096

def vr(b, n=4): return "v[%d:%d]" % (b, b + n - 1)
def sp(b): return "s[%d:%d]" % (b, b + 1)
def sq(b): return "s[%d:%d]" % (b, b + 3)

def gen(D=2, kvpol="nt", wqpol="", wopol="", fpol="", stpol="", stamps=False, ffn=True, abl=(), early=False, touch=False, npre=0, nsh=8):
    W = 8
    NT = 4096 // 16 // W
    a = Asm()
    P = lambda p: (" " + p) if p else ""
    MF = "v_mfma_f32_16x16x32_bf16"
    vLane, vG, vI = 1, 2, 3
    vKoff, vVoff, vL, vM, vMC = 4, 5, 6, 7, 8
    vEPa, vPriv, vTmp = 9, 10, 11
    vMask = 12
    vQ = 16; vS = 32; vP = 36; vA = [40, 44]; vO = 48; vT = 52
    vWoff, vYoff, vPrd, vOne = 60, 61, 62, 63
    vChk = vT + 7
    vKV = 64
    vWA = vKV + 32 * D
    NV = max(vWA + 64, 64 + 128 + 32)
    assert NV <= 256
    Kb = lambda d: vKV + 32 * d
    Vb = lambda d: vKV + 32 * d + 16
    vWO = vKV
    vPP = vWO + 128
    vTch = Vb(D - 1)
    sX, sK, sV, sWq, sWo, sBx, sW1, sB1 = 4, 6, 8, 10, 12, 14, 16, 18
    sW2, sB2, sGw, sOut, sDbg, sWs = 20, 22, 24, 26, 28, 30
    sWave, sH, sB, sSp, sRot, sRow = 3, 32, 33, 34, 35, 36
    sOff, sCnt, sC, sGate = 37, 38, 39, 40
    sPriv, sCb, sSig = 41, 42, 43
    sWoT, sPre, sTask = 96, 97, 98
    rK, rV, rWq, rWo = 44, 48, 52, 56
    rW1, rW2 = 44, 48
    sT = 60
    sRet, sRare = 72, 74
    sY = 76
    sX0 = 78
    sStamp = 80
    sXS = 84
    NXS = 6
    vm = VmQueue(a)
    def xs(k):
        if stamps: a("s_memrealtime %s" % sp(sXS + 2 * k))
    def srd(r, base, off, nrec, nrec_sub=None):
        a("s_add_u32 s%d, s%d, s%d" % (r, base, off)); a("s_addc_u32 s%d, s%d, 0" % (r + 1, base + 1))
        if nrec_sub is None: a("s_mov_b32 s%d, 0x%x" % (r + 2, nrec))
        else: a("s_sub_u32 s%d, 0x%x, s%d" % (r + 2, nrec, nrec_sub))
        a("s_mov_b32 s%d, 0x20000" % (r + 3))
    def gemv(nld, Wreg, Preg, acc, waits=None):
        def ands(n):
            for r in range(4): a("v_and_b32 v%d, v%d, v%d" % (vA[n & 1] + r, Preg(n), vMask + r))
        ands(0)
        for n in range(nld):
            if waits: waits(n)
            if n + 1 < nld: ands(n + 1)
            a("%s %s, %s, %s, %s" % (MF, vr(acc), vr(vA[n & 1]), vr(Wreg(n)), "0" if n == 0 else vr(acc)))

    a("%s:" % K1)
    a("s_cmp_ge_u32 s2, 256")
    a("s_cbranch_scc1 L_done")
    a("s_load_dwordx16 s[4:19], s[0:1], 0")
    a("s_load_dwordx8 s[20:27], s[0:1], 64")
    a("s_load_dwordx4 s[28:31], s[0:1], 96")
    if stamps: a("s_memrealtime %s" % sp(sStamp))
    a("v_lshrrev_b32 v%d, 6, v0" % vTmp)
    a("v_and_b32 v%d, 63, v0" % vLane)
    a("v_readfirstlane_b32 s%d, v%d" % (sWave, vTmp))
    a("v_lshrrev_b32 v%d, 4, v%d" % (vG, vLane))
    a("v_and_b32 v%d, 15, v%d" % (vI, vLane))
    a("s_and_b32 s%d, s2, 7" % sT)
    a("s_lshr_b32 s%d, s2, 3" % (sT + 1))
    a("s_and_b32 s%d, s%d, 3" % (sT + 2, sT + 1))
    a("s_lshl_b32 s%d, s%d, 2" % (sH, sT))
    a("s_add_u32 s%d, s%d, s%d" % (sH, sH, sT + 2))
    a("s_lshr_b32 s%d, s%d, 2" % (sRot, sT + 1))
    a("s_lshr_b32 s%d, s%d, 3" % (sB, sT + 1))
    a("s_and_b32 s%d, s%d, 1" % (sSp, sRot))
    a("s_add_u32 s%d, s%d, s%d" % (sT + 3, sWave, sRot)); a("s_and_b32 s%d, s%d, 7" % (sT + 3, sT + 3))
    a("s_lshl_b32 s%d, s%d, 6" % (sT + 4, sT + 3))
    a("v_lshl_add_u32 v%d, v%d, 2, s%d" % (vA[0], vG, sT + 4))
    a("v_lshlrev_b32 v%d, 13, v%d" % (vA[1], vA[0]))
    a("v_lshl_add_u32 v%d, v%d, 4, v%d" % (vA[1], vI, vA[1]))
    a("v_lshlrev_b32 v%d, 1, v%d" % (vTmp, vA[0]))
    a("v_lshlrev_b32 v%d, 4, v%d" % (vPriv, vLane))
    a("s_lshl_b32 s%d, s%d, 8" % (sT + 5, sH))
    a("s_lshl_b32 s%d, s%d, 10" % (sT + 6, sB))
    a("s_mov_b32 s%d, 0" % (sT + 8))
    a("s_waitcnt lgkmcnt(0)")
    srd(rWq, sWq, sT + 5, 4194304, sT + 5)
    if "nowq" in abl: a("s_mov_b32 s%d, 0" % (rWq + 2))
    a("s_mov_b32 s%d, s%d" % (sX0, sX)); a("s_mov_b32 s%d, s%d" % (sX0 + 1, sX + 1))
    a("s_add_u32 s%d, s%d, s%d" % (sX, sX, sT + 6)); a("s_addc_u32 s%d, s%d, 0" % (sX + 1, sX + 1))
    for u in range(4):
        vm.issue("gate", "global_load_dwordx2 v[%d:%d], v%d, %s offset:%d" % (vT + 2 * u, vT + 2 * u + 1, vTmp, sp(sX), 32 * u))
    vm.issue("gate", "global_load_dwordx4 %s, v%d, %s" % (vr(vS), vPriv, sp(sX)))
    vm.issue("gate", "global_load_dwordx4 %s, v%d, %s" % (vr(vP), vPriv, sp(sGw)))
    if touch:
        a("s_cmp_lg_u32 s%d, 0" % sWave)
        a("s_cbranch_scc1 L_notouch")
        a("s_lshl_b32 s%d, s%d, 6" % (sT + 9, sRot))
        a("v_add_u32 v%d, s%d, v%d" % (vTch, sT + 9, vLane))
        a("v_lshlrev_b32 v%d, 13, v%d" % (vTch, vTch))
        a("buffer_load_dword v%d, v%d, %s, 0 offen%s" % (vTch + 1, vTch, sq(rWq), P(wqpol)))
        a("buffer_load_dword v%d, v%d, %s, 0 offen offset:128%s" % (vTch + 2, vTch, sq(rWq), P(wqpol)))
        a("L_notouch:")
    a("v_lshlrev_b32 v%d, 8, v%d" % (vKoff, vI))
    a("v_lshl_add_u32 v%d, v%d, 4, v%d" % (vKoff, vG, vKoff))
    a("v_lshlrev_b32 v%d, 10, v%d" % (vVoff, vG))
    a("v_lshl_add_u32 v%d, v%d, 4, v%d" % (vVoff, vI, vVoff))
    a("s_lshl_b32 s%d, s%d, 5" % (sRow, sB))
    a("s_add_u32 s%d, s%d, s%d" % (sRow, sRow, sH))
    a("s_lshl_b32 s%d, s%d, 1" % (sRow, sRow))
    a("s_add_u32 s%d, s%d, s%d" % (sRow, sRow, sSp))
    a("s_lshl_b32 s%d, s%d, 20" % (sT + 3, sRow))
    srd(rK, sK, sT + 3, 0x100000)
    srd(rV, sV, sT + 3, 0x100000)
    pol = P(kvpol)
    def kload(d):
        for t in range(4):
            vm.issue("K%d" % d, "buffer_load_dwordx4 %s, v%d, %s, s%d offen offset:%d%s" % (vr(Kb(d) + 4 * t), vKoff, sq(rK), sOff, 64 * t, pol))
    def vload(d):
        for t in range(4):
            vm.issue("V%d" % d, "buffer_load_dwordx4 %s, v%d, %s, s%d offen offset:%d%s" % (vr(Vb(d) + 4 * t), vVoff, sq(rV), sOff, 256 * t, pol))
    def kv_prefetch(d0=0, d1=None):
        save = list(vm.q)
        a("s_lshl_b32 s%d, s%d, 12" % (sOff, sWave))
        if d0: a("s_add_u32 s%d, s%d, %d" % (sOff, sOff, 4096 * W * d0))
        for d in range(d0, D if d1 is None else d1):
            kload(d); vload(d)
            a("s_add_u32 s%d, s%d, %d" % (sOff, sOff, 4096 * W))
        vm.q = save
    a("s_mul_i32 s%d, s%d, %d" % (sPre, sSp, npre))
    a("s_cmp_ge_u32 s%d, 4" % sWave)
    a("s_cselect_b32 s%d, 0, s%d" % (sPre, sPre))
    if npre:
        a("s_cmp_eq_u32 s%d, 0" % sPre)
        a("s_cbranch_scc1 L_pre")
        kv_prefetch(0, npre)
        a("L_pre:")
    for n in range(16):
        u, t = divmod(n, 4)
        vm.issue("wq%d" % u, "buffer_load_dwordx4 %s, v%d, %s, s%d offen%s" % (vr(vWA + 4 * n), vA[1], sq(rWq), sT + 8, P(wqpol)))
        if n < 15: a("s_add_u32 s%d, s%d, %d" % (sT + 8, sT + 8, 8192 if t < 3 else 13 * 8192))
    a("s_barrier")
    def old_prefetch():
        a("s_cmp_ge_u32 s%d, 4" % sWave)
        a("s_cbranch_scc1 L_pf1")
        if npre:
            a("s_cmp_lg_u32 s%d, 0" % sPre)
            a("s_cbranch_scc1 L_pf1b")
            kv_prefetch(0, npre)
            a("L_pf1b:")
        kv_prefetch(npre)
        a("L_pf1:")
    if early: old_prefetch()
    xs(0)
    nw = [0]
    def dual_wait(tag):
        n = vm.count(tag)
        if not early:
            vm.wait(tag); return
        a("s_waitcnt vmcnt(%d)" % (n + 8 * D))
        if npre:
            a("s_cmp_eq_u32 s%d, 0" % sPre)
            a("s_cbranch_scc1 L_dx%d" % nw[0])
            a("s_waitcnt vmcnt(%d)" % (n + 8 * (D - npre)))
            a("L_dx%d:" % nw[0])
        a("s_cmp_lt_u32 s%d, 4" % sWave)
        a("s_cbranch_scc1 L_dw%d" % nw[0])
        a("s_waitcnt vmcnt(%d)" % n)
        a("L_dw%d:" % nw[0]); nw[0] += 1
        vm.q = vm.q[len(vm.q) - n:] if n else []
    a("s_lshl_b32 s%d, s%d, 17" % (sT + 6, sH))
    srd(rWo, sWo, sT + 6, 131072)
    if "nowo" in abl: a("s_mov_b32 s%d, 0" % (rWo + 2))
    a("s_mov_b32 s%d, %s" % (sC, fbits(CSCALE)))
    a("s_getpc_b64 %s" % sp(sRare))
    a("L_pc:")
    a("s_add_u32 s%d, s%d, L_rare-L_pc" % (sRare, sRare))
    a("s_addc_u32 s%d, s%d, 0" % (sRare + 1, sRare + 1))
    a("v_and_b32 v%d, 7, v%d" % (vTmp, vI))
    a("v_lshrrev_b32 v%d, 1, v%d" % (vA[1] + 1, vTmp))
    a("v_and_b32 v%d, 1, v%d" % (vTmp, vTmp))
    a("v_lshlrev_b32 v%d, 4, v%d" % (vTmp, vTmp))
    a("v_mov_b32 v%d, 0xffff" % (vA[1] + 2))
    a("v_lshlrev_b32 v%d, v%d, v%d" % (vA[1] + 2, vTmp, vA[1] + 2))
    for r in range(4):
        a("v_cmp_eq_u32 vcc, %d, v%d" % (r, vA[1] + 1))
        a("v_cndmask_b32 v%d, 0, v%d, vcc" % (vMask + r, vA[1] + 2))
    a("s_add_u32 s%d, s%d, s%d" % (sCb, sWave, sRot)); a("s_and_b32 s%d, s%d, 3" % (sCb, sCb))
    a("s_lshl_b32 s%d, s%d, 8" % (sT, sCb))
    a("v_lshlrev_b32 v%d, 12, v%d" % (vWoff, vG))
    a("v_lshl_add_u32 v%d, v%d, 4, v%d" % (vWoff, vI, vWoff))
    a("v_add_u32 v%d, s%d, v%d" % (vWoff, sT, vWoff))
    a("v_lshlrev_b32 v%d, 5, v%d" % (vEPa, vI))
    a("v_lshl_add_u32 v%d, v%d, 4, v%d" % (vEPa, vG, vEPa))
    a("s_lshl_b32 s%d, s%d, 9" % (sT, sCb))
    a("v_add_u32 v%d, s%d, v%d" % (vYoff, sT, vEPa))
    a("s_lshl_b32 s%d, s%d, 9" % (sT + 11, sWave))
    a("v_add_u32 v%d, s%d, v%d" % (vEPa, sT + 11, vEPa))
    a("s_add_u32 s%d, s%d, %d" % (sPriv, sT + 11, L_PRIV))
    a("v_lshl_add_u32 v%d, v%d, 4, s%d" % (vPrd, vG, sPriv))
    a("s_lshl_b32 s%d, s%d, 11" % (sT, sRow))
    a("s_add_u32 s%d, s%d, s%d" % (sY, sWs, sT)); a("s_addc_u32 s%d, s%d, 0" % (sY + 1, sWs + 1))
    a("v_mov_b32 v%d, 1" % vOne)
    a("v_mov_b32 v%d, %s" % (vM, fbits(-3.0e38)))
    a("v_mul_f32 v%d, s%d, v%d" % (vMC, sC, vM))
    a("v_mov_b32 v%d, 0" % vL)
    for r in range(4): a("v_mov_b32 v%d, 0" % (vO + r))
    dual_wait("gate")
    a("v_mov_b32 v%d, 0" % vTmp)
    for r in range(4): a("v_dot2c_f32_bf16 v%d, v%d, v%d" % (vTmp, vS + r, vP + r))
    for m in ("quad_perm:[1,0,3,2]", "quad_perm:[2,3,0,1]", "row_half_mirror", "row_mirror"):
        a("v_add_f32_dpp v%d, v%d, v%d %s row_mask:0xf bank_mask:0xf" % (vTmp, vTmp, vTmp, m))
    for k in range(4): a("v_readlane_b32 s%d, v%d, %d" % (sT + k, vTmp, 16 * k))
    a("v_mov_b32 v%d, s%d" % (vTmp, sT))
    for k in range(1, 4): a("v_add_f32 v%d, s%d, v%d" % (vTmp, sT + k, vTmp))
    a("v_mul_f32 v%d, %s, v%d" % (vTmp, fbits(-LOG2E), vTmp))
    a("v_exp_f32 v%d, v%d" % (vTmp, vTmp))
    a("v_add_f32 v%d, 1.0, v%d" % (vTmp, vTmp))
    a("v_rcp_f32 v%d, v%d" % (vTmp, vTmp))
    a("v_readfirstlane_b32 s%d, v%d" % (sGate, vTmp))
    a("s_mov_b32 s%d, 0x01000100" % sT); a("s_mov_b32 s%d, 0x03020302" % (sT + 1))
    for u in range(4):
        for t in range(4):
            a("v_perm_b32 v%d, v%d, v%d, s%d" % (vQ + 4 * u + t, vT + 2 * u + t // 2, vT + 2 * u + t // 2, sT + (t & 1)))
    gemv(16, lambda n: vWA + 4 * n, lambda n: vQ + n, vS, waits=lambda n: dual_wait("wq%d" % (n // 4)) if n % 4 == 0 else None)
    a("s_mov_b32 exec_hi, 0")
    a("ds_write_b128 v%d, %s offset:%d" % (vEPa, vr(vS), L_QP))
    a("s_mov_b32 exec_hi, -1")
    if not early: old_prefetch()
    a("s_waitcnt lgkmcnt(0)")
    a("s_barrier")
    a("s_cmp_lt_u32 s%d, 4" % sWave)
    a("s_cbranch_scc1 L_pf2")
    kv_prefetch()
    a("L_pf2:")
    vm.q = []
    for d in range(D): vm.note("K%d" % d, 4); vm.note("V%d" % d, 4)
    a("v_lshlrev_b32 v%d, 3, v%d" % (vTmp, vLane))
    tq = vQ
    for w in range(8):
        a("ds_read_b64 v[%d:%d], v%d offset:%d" % (tq + 2 * w, tq + 2 * w + 1, vTmp, L_QP + 512 * w))
    a("v_lshlrev_b32 v%d, 2, v%d" % (vPriv, vLane))
    a("v_add_u32 v%d, s%d, v%d" % (vPriv, sPriv, vPriv))
    a("s_waitcnt lgkmcnt(0)")
    for step in (4, 2, 1):
        for w in range(step):
            for k in range(2):
                a("v_add_f32 v%d, v%d, v%d" % (tq + 2 * w + k, tq + 2 * w + k, tq + 2 * (w + step) + k))
    a("v_cvt_pk_bf16_f32 v%d, v%d, v%d" % (vTmp, tq, tq + 1))
    a("ds_write_b32 v%d, v%d" % (vPriv, vTmp))
    a("s_waitcnt lgkmcnt(0)")
    for t in range(4):
        a("ds_read_b128 %s, v%d offset:%d" % (vr(vQ + 4 * t), vPrd, 64 * t))
    a("s_lshl_b32 s%d, s%d, 12" % (sOff, sWave))
    a("s_add_u32 s%d, s%d, %d" % (sOff, sOff, 4096 * W * D))
    a("s_waitcnt lgkmcnt(0)")
    xs(1)

    ntr = [0]; tramps = []
    tail_on = [False]; tail_extra = [0]; ntw = [0]; pending = []
    def kvwait(tag):
        if not tail_extra[0]:
            vm.wait(tag); return
        n = vm.count(tag)
        a("s_waitcnt vmcnt(%d)" % (n + tail_extra[0]))
        a("s_cmp_lg_u32 s%d, 0" % sTask)
        a("s_cbranch_scc1 L_tw%d" % ntw[0])
        a("s_waitcnt vmcnt(%d)" % n)
        a("L_tw%d:" % ntw[0]); ntw[0] += 1
        vm.q = vm.q[len(vm.q) - n:] if n else []
    def slot(k):
        if not tail_on[0] or not pending: return
        a("s_cmp_eq_u32 s%d, 0" % sTask)
        a("s_cbranch_scc1 L_sl%d" % ntw[0])
        for _ in range(min(k, len(pending))):
            for l in pending.pop(0): a(l)
            tail_extra[0] += 1
        a("L_sl%d:" % ntw[0]); ntw[0] += 1
    def tile(d, prefetch):
        kvwait("K%d" % d)
        for t in range(4):
            a("%s %s, %s, %s, %s" % (MF, vr(vS), vr(Kb(d) + 4 * t), vr(vQ + 4 * t), "0" if t == 0 else vr(vS)))
        if prefetch: kload(d)
        elif tail_on[0] and pending:
            slot(4)
            a("s_nop 7")
        a("v_max3_f32 v%d, v%d, v%d, v%d" % (vT, vS, vS + 1, vS + 2))
        a("v_max_f32 v%d, v%d, v%d" % (vT, vT, vS + 3))
        a("v_cmp_gt_f32 vcc, v%d, v%d" % (vT, vM))
        k = ntr[0]; ntr[0] += 1
        a("s_cbranch_vccnz L_tr%d" % k)
        a("L_back%d:" % k)
        tramps.append(k)
        for t in range(4): a("v_fma_f32 v%d, v%d, s%d, -v%d" % (vS + t, vS + t, sC, vMC))
        for t in range(4): a("v_exp_f32 v%d, v%d" % (vS + t, vS + t))
        a("v_add_f32 v%d, v%d, v%d" % (vT, vS, vS + 1))
        a("v_add_f32 v%d, v%d, v%d" % (vT + 1, vS + 2, vS + 3))
        for t in range(4): a("v_cvt_pk_bf16_f32 v%d, v%d, v%d" % (vP + t, vS + t, vS + t))
        a("v_add_f32 v%d, v%d, v%d" % (vT, vT, vT + 1))
        a("v_add_f32 v%d, v%d, v%d" % (vL, vL, vT))
        def ands(t):
            for r in range(4): a("v_and_b32 v%d, v%d, v%d" % (vA[t & 1] + r, vP + t, vMask + r))
        ands(0); ands(1)
        kvwait("V%d" % d)
        for t in range(4):
            a("%s %s, %s, %s, %s" % (MF, vr(vO), vr(vA[t & 1]), vr(Vb(d) + 4 * t), vr(vO)))
            if t + 2 < 4: ands(t + 2)
        if prefetch:
            vload(d)
            a("s_add_u32 s%d, s%d, %d" % (sOff, sOff, 4096 * W))
        else: slot(4)
    nl = (NT - D) // D
    rem = (NT - D) - nl * D
    m = 1
    while 2 * m <= nl - 3: m *= 2
    a("s_mul_i32 s%d, s%d, 3" % (sWoT, sH)); a("s_and_b32 s%d, s%d, %d" % (sWoT, sWoT, m - 1)); a("s_add_u32 s%d, s%d, %d" % (sWoT, sWoT, 4 if D == 2 else 3))
    a("s_cmp_lt_u32 s%d, 4" % sWave)
    a("s_cselect_b32 s%d, -1, s%d" % (sWoT, sWoT))
    a("s_cselect_b32 s%d, -1, 2" % sTask)
    a("s_mov_b32 s%d, %d" % (sCnt, nl))
    a("L_loop:")
    for it in range(D): tile(it, True)
    a("s_cmp_eq_u32 s%d, s%d" % (sCnt, sWoT))
    a("s_cselect_b32 s%d, 1, 0" % sT)
    a("s_cmp_eq_u32 s%d, s%d" % (sCnt, sTask))
    a("s_cselect_b32 s%d, 1, s%d" % (sT, sT))
    a("s_cmp_eq_u32 s%d, 0" % sT)
    a("s_cbranch_scc1 L_nobar")
    a("s_barrier")
    a("L_nobar:")
    a("s_sub_u32 s%d, s%d, 1" % (sCnt, sCnt))
    a("s_cmp_lg_u32 s%d, 0" % sCnt)
    a("s_cbranch_scc1 L_loop")
    for it in range(rem): tile(it % D, True)
    a("s_mov_b32 s%d, 0" % sTask)
    fW1 = vWA; fW2 = vWA + 32; vB1 = vT + 5
    vF1, vF2, vF3 = vT + 3, vT + 4, vT + 6
    sF = sOff
    ffn_loads = []
    for n in range(8):
        u, t = divmod(n, 4)
        pre = ["s_mov_b32 s%d, %d" % (sF, (16 * u + t) * 3584)]
        ffn_loads.append(pre + ["buffer_load_dwordx4 %s, v%d, %s, s%d offen%s" % (vr(fW1 + 4 * n), vF1, sq(rW1), sF, P(fpol))])
    for n in range(8):
        u, t = divmod(n, 4)
        pre = ["s_mov_b32 s%d, %d" % (sF, 16384 * u)] if t == 0 else []
        ffn_loads.append(pre + ["buffer_load_dwordx4 %s, v%d, %s, s%d offen offset:%d%s" % (vr(fW2 + 4 * n), vF2, sq(rW2), sF, 1024 * t, P(fpol))])
    ffn_loads.append(["global_load_ushort v%d, v%d, %s" % (vB1, vF3, sp(sB1))])
    if ffn:
        a("s_cmp_lt_u32 s%d, 4" % sWave)
        a("s_cbranch_scc1 L_notask")
        a("s_barrier")
        a("v_mov_b32 v%d, %d" % (vT + 1, L_CLAIM))
        a("ds_read_b32 v%d, v%d" % (vT + 2, vT + 1))
        a("s_waitcnt lgkmcnt(0)")
        a("v_readfirstlane_b32 s%d, v%d" % (sSig, vT + 2))
        a("s_cmp_ge_u32 s%d, %d" % (sSig, 0 if "notask" in abl else NFF))
        a("s_cbranch_scc1 L_notask")
        a("s_mov_b32 s%d, 1" % sTask)
        sWy = sT + 9
        a("s_sub_u32 s%d, s%d, 4" % (sWy, sWave))
        a("s_lshl_b32 s%d, s%d, 6" % (sT, sSig))
        srd(rW1, sW1, sT, 1835008, sT)
        a("s_lshl_b32 s%d, s%d, 15" % (sT + 1, sSig))
        srd(rW2, sW2, sT + 1, 32768)
        a("s_add_u32 s%d, s%d, s%d" % (sB1, sB1, sT)); a("s_addc_u32 s%d, s%d, 0" % (sB1 + 1, sB1 + 1))
        a("s_lshl_b32 s%d, s%d, 7" % (sT + 2, sWy))
        a("v_lshrrev_b32 v%d, 2, v%d" % (vT + 1, vI))
        a("v_lshlrev_b32 v%d, 5, v%d" % (vT + 1, vT + 1))
        a("v_lshl_add_u32 v%d, v%d, 2, v%d" % (vT + 1, vG, vT + 1))
        a("v_add_u32 v%d, s%d, v%d" % (vT + 1, sT + 2, vT + 1))
        a("s_movk_i32 s%d, 3584" % (sT + 3))
        a("v_mul_lo_u32 v%d, v%d, s%d" % (vT + 1, vT + 1, sT + 3))
        a("v_and_b32 v%d, 3, v%d" % (vT + 2, vI))
        a("v_lshl_add_u32 v%d, v%d, 4, v%d" % (vT + 1, vT + 2, vT + 1))
        a("v_mov_b32 v%d, v%d" % (vF1, vT + 1))
        a("v_lshlrev_b32 v%d, 12, v%d" % (vF2, vG))
        a("v_lshl_add_u32 v%d, v%d, 4, v%d" % (vF2, vI, vF2))
        a("s_lshl_b32 s%d, s%d, 8" % (sT + 2, sWy))
        a("v_add_u32 v%d, s%d, v%d" % (vF2, sT + 2, vF2))
        a("v_and_b32 v%d, 31, v%d" % (vF3, vLane))
        a("v_lshlrev_b32 v%d, 1, v%d" % (vF3, vF3))
        a("L_notask:")
        if stamps:
            a("s_cmp_lt_u32 s%d, 4" % sWave)
            a("s_cbranch_scc1 L_nosig")
            a("s_mov_b32 s%d, s%d" % (sXS + 4, sSig)); a("s_mov_b32 s%d, 0" % (sXS + 5))
            a("L_nosig:")
    tail_on[0] = ffn
    pending[:] = list(ffn_loads) if ffn else []
    for it in range(D): tile((rem + it) % D, False)
    if ffn and pending: slot(len(pending))
    tail_on[0] = False
    xs(3)

    for k in range(4): a("v_readlane_b32 s%d, v%d, %d" % (sT + k, vL, 16 * k))
    a("s_lshl_b32 s%d, s%d, 3" % (sT + 4, sWave))
    a("v_mov_b32 v%d, s%d" % (vT + 1, sT))
    a("v_mov_b32 v%d, s%d" % (vT + 2, sT + 4))
    for k in range(1, 4): a("v_add_f32 v%d, s%d, v%d" % (vT + 1, sT + k, vT + 1))
    a("v_mov_b32 v%d, v%d" % (vT, vM))
    a("s_mov_b32 exec_hi, 0")
    a("ds_write_b128 v%d, %s offset:%d" % (vEPa, vr(vO), L_EP))
    a("s_mov_b32 exec_lo, 1")
    a("ds_write_b64 v%d, v[%d:%d] offset:%d" % (vT + 2, vT, vT + 1, L_ML))
    a("s_mov_b64 exec, -1")
    a("s_cmp_lt_u32 s%d, 4" % sWave)
    a("s_cbranch_scc1 L_old")
    a("s_waitcnt lgkmcnt(0)")
    a("s_barrier")
    if not ffn:
        a("s_branch L_fin")
    else:
        a("s_cmp_eq_u32 s%d, 0" % sTask)
        a("s_cbranch_scc1 L_fin")
        fX = vKV; fPl = vQ; fPh = vQ + 8
        sWy = sT + 9
        a("s_sub_u32 s%d, s%d, 4" % (sWy, sWave))
        a("s_lshl_b32 s%d, s%d, 7" % (sT + 2, sWy))
        a("v_lshrrev_b32 v%d, 3, v%d" % (vT, vI))
        a("v_lshlrev_b32 v%d, 5, v%d" % (vT, vT))
        a("v_lshl_add_u32 v%d, v%d, 2, v%d" % (vT, vG, vT))
        a("v_add_u32 v%d, s%d, v%d" % (vT, sT + 2, vT))
        a("v_lshlrev_b32 v%d, 1, v%d" % (vT, vT))
        for b in range(4):
            for hh_ in range(2):
                for u in range(2):
                    r0 = fX + 8 * b + 4 * hh_ + 2 * u
                    a("ds_read_b64 v[%d:%d], v%d offset:%d" % (r0, r0 + 1, vT, L_XS + 1024 * b + 128 * hh_ + 32 * u))
        a("v_lshrrev_b32 v%d, 2, v%d" % (vT + 4, vI))
        a("v_lshlrev_b32 v%d, 7, v%d" % (vT + 4, vT + 4))
        a("v_and_b32 v%d, 3, v%d" % (vT + 6, vI))
        a("v_lshl_add_u32 v%d, v%d, 5, v%d" % (vT + 4, vT + 6, vT + 4))
        a("v_and_b32 v%d, 1, v%d" % (vT + 6, vG))
        a("v_lshl_add_u32 v%d, v%d, 4, v%d" % (vT + 4, vT + 6, vT + 4))
        a("s_lshl_b32 s%d, s%d, 11" % (sT + 2, sWy))
        a("v_add_u32 v%d, s%d, v%d" % (vT + 4, sT + 2, vT + 4))
        a("s_mov_b32 s%d, 0x01000100" % (sT + 6)); a("s_mov_b32 s%d, 0x03020302" % (sT + 7))
        a("s_waitcnt vmcnt(9) lgkmcnt(0)")
        for b in range(4):
            for hh_ in range(2):
                for u in range(2):
                    for t in range(4):
                        src = fX + 8 * b + 4 * hh_ + 2 * u + t // 2
                        a("v_perm_b32 v%d, v%d, v%d, s%d" % (vQ + 8 * hh_ + 4 * u + t, src, src, sT + 6 + (t & 1)))
            gemv(8, lambda n: fW1 + 4 * n, lambda n: fPl + n, vS)
            gemv(8, lambda n: fW1 + 4 * n, lambda n: fPh + n, vP)
            a("s_mov_b32 exec_lo, 0x000f000f"); a("s_mov_b32 exec_hi, 0x00f000f0")
            a("ds_write_b128 v%d, %s offset:%d" % (vT + 4, vr(vS), L_HP + 512 * b))
            a("s_mov_b32 exec_lo, 0x0f000f00"); a("s_mov_b32 exec_hi, 0xf000f000")
            a("ds_write_b128 v%d, %s offset:%d" % (vT + 4, vr(vP), L_HP + 512 * b))
            a("s_mov_b64 exec, -1")
        a("s_waitcnt lgkmcnt(0)")
        a("s_barrier")
        a("v_and_b32 v%d, 31, v%d" % (vT + 4, vLane))
        a("v_lshlrev_b32 v%d, 2, v%d" % (vT + 4, vT + 4))
        a("v_lshrrev_b32 v%d, 5, v%d" % (vT + 6, vLane))
        a("v_lshl_add_u32 v%d, v%d, 8, v%d" % (vT + 6, vT + 6, vT + 4))
        a("s_lshl_b32 s%d, s%d, 9" % (sT + 2, sWy))
        a("v_add_u32 v%d, s%d, v%d" % (vT + 6, sT + 2, vT + 6))
        a("v_add_u32 v%d, %d, v%d" % (vT + 6, L_HP, vT + 6))
        for w in range(4):
            a("ds_read2_b32 v[%d:%d], v%d offset0:%d offset1:%d" % (vQ + 2 * w, vQ + 2 * w + 1, vT + 6, 0, 32) if w == 0 else
              "v_add_u32 v%d, 2048, v%d\nds_read2_b32 v[%d:%d], v%d offset0:0 offset1:32" % (vT + 6, vT + 6, vQ + 2 * w, vQ + 2 * w + 1, vT + 6))
        a("s_waitcnt vmcnt(0) lgkmcnt(0)")
        for w in range(4): a("v_add_f32 v%d, v%d, v%d" % (vQ + 2 * w, vQ + 2 * w, vQ + 2 * w + 1))
        a("v_add_f32 v%d, v%d, v%d" % (vQ, vQ, vQ + 2)); a("v_add_f32 v%d, v%d, v%d" % (vQ + 4, vQ + 4, vQ + 6))
        r = vQ
        a("v_add_f32 v%d, v%d, v%d" % (r, vQ, vQ + 4))
        a("v_mov_b32 v%d, v%d" % (r + 1, r))
        a("v_permlane32_swap_b32 v%d, v%d" % (r, r + 1))
        a("v_add_f32 v%d, v%d, v%d" % (r, r, r + 1))
        a("v_cvt_pk_bf16_f32 v%d, v%d, v%d" % (r, r, r))
        a("v_and_b32 v%d, 0xffff0000, v%d" % (r, r))
        a("v_lshlrev_b32 v%d, 16, v%d" % (vB1, vB1))
        a("v_add_f32 v%d, v%d, v%d" % (r, r, vB1))
        a("v_cvt_pk_bf16_f32 v%d, v%d, v%d" % (r, r, r))
        a("v_and_b32 v%d, 0xffff0000, v%d" % (r, r))
        a("v_max_f32 v%d, 0, v%d" % (r, r))
        a("v_mul_f32 v%d, v%d, v%d" % (r, r, r))
        a("v_cvt_pk_bf16_f32 v%d, v%d, v%d" % (r, r, r))
        a("s_lshl_b32 s%d, s%d, 7" % (sT + 2, sWy))
        a("v_add_u32 v%d, s%d, v%d" % (vT + 4, sT + 2, vT + 4))
        a("s_mov_b32 exec_hi, 0")
        a("ds_write_b32 v%d, v%d offset:%d" % (vT + 4, r, L_HH))
        a("s_mov_b32 exec_hi, -1")
        a("s_waitcnt lgkmcnt(0)")
        a("s_barrier")
        a("v_lshlrev_b32 v%d, 4, v%d" % (vT + 4, vG))
        for b in range(4):
            for u in range(2): a("ds_read_b128 %s, v%d offset:%d" % (vr(fX + 8 * b + 4 * u), vT + 4, L_HH + 128 * b + 64 * u))
        a("v_lshlrev_b32 v%d, 5, v%d" % (vT + 6, vI))
        a("v_lshl_add_u32 v%d, v%d, 4, v%d" % (vT + 6, vG, vT + 6))
        a("s_lshl_b32 s%d, s%d, 9" % (sT + 2, sWy))
        a("v_add_u32 v%d, s%d, v%d" % (vT + 6, sT + 2, vT + 6))
        a("s_lshl_b32 s%d, s%d, 11" % (sT + 2, sSig)); a("s_add_u32 s%d, s%d, 0x%x" % (sT + 2, sT + 2, WS_YF))
        a("s_add_u32 s%d, s%d, s%d" % (sY, sWs, sT + 2)); a("s_addc_u32 s%d, s%d, 0" % (sY + 1, sWs + 1))
        a("s_waitcnt lgkmcnt(0)")
        for b in range(4):
            acc = vS if b & 1 == 0 else vP
            gemv(8, lambda n: fW2 + 4 * n, lambda n: fX + 8 * b + n, acc)
            a("s_mov_b32 exec_hi, 0")
            a("global_store_dwordx4 v%d, %s, %s%s" % (vT + 6, vr(acc), sp(sY), P(stpol)))
            a("s_mov_b32 exec_hi, -1")
            if b < 3:
                a("s_add_u32 s%d, s%d, %d" % (sY, sY, NFF * 2048)); a("s_addc_u32 s%d, s%d, 0" % (sY + 1, sY + 1))
        a("s_branch L_fin")

    a("L_old:")
    if ffn:
        a("s_lshl_b32 s%d, s%d, 10" % (sT, sWave))
        a("v_lshl_add_u32 v%d, v%d, 4, s%d" % (vT, vLane, sT))
        a("global_load_dwordx4 %s, v%d, %s" % (vr(vS), vT, sp(sX0)))
        a("s_waitcnt vmcnt(0)")
        a("ds_write_b128 v%d, %s offset:%d" % (vT, vr(vS), L_XS))
        a("s_waitcnt lgkmcnt(0)")
    a("s_barrier")
    a("s_mov_b32 s%d, 0" % (sT + 8))
    for n in range(32):
        u, t = divmod(n, 4)
        a("buffer_load_dwordx4 %s, v%d, %s, s%d offen offset:%d%s" % (vr(vWO + 4 * n), vWoff, sq(rWo), sT + 8, 1024 * t, P(wopol)))
        if t == 3 and n < 31: a("s_add_u32 s%d, s%d, 16384" % (sT + 8, sT + 8))
    a("s_waitcnt vmcnt(0)")
    a("s_barrier")
    if ffn:
        a("s_cmp_lg_u32 s%d, 0" % sWave)
        a("s_cbranch_scc1 L_noclaim")
        a("s_lshr_b32 s%d, s2, 3" % sT)
        a("s_and_b32 s%d, s%d, %d" % (sT, sT, nsh - 1))
        a("s_lshl_b32 s%d, s%d, %d" % (sT + 1, sT, {1: 0, 2: 7, 4: 6, 8: 5}[nsh]))
        a("v_mov_b32 v%d, s%d" % (vT, sT + 1))
        a("v_mov_b32 v%d, %d" % (vT + 1, L_CLAIM))
        a("s_mul_i32 s%d, s%d, %d" % (sT, sT, NFF // nsh))
        a("s_mov_b64 exec, 1")
        a("global_atomic_add v%d, v%d, v%d, %s sc0" % (vT + 2, vT, vOne, sp(sDbg)))
        a("s_waitcnt vmcnt(0)")
        a("v_cmp_gt_u32 vcc, %d, v%d" % (NFF // nsh, vT + 2))
        a("v_add_u32 v%d, s%d, v%d" % (vT + 2, sT, vT + 2))
        a("v_cndmask_b32 v%d, %d, v%d, vcc" % (vT + 2, NFF, vT + 2))
        a("ds_write_b32 v%d, v%d" % (vT + 1, vT + 2))
        a("s_waitcnt lgkmcnt(0)")
        a("s_mov_b64 exec, -1")
        a("L_noclaim:")
        a("s_barrier")
    a("v_mov_b32 v%d, 0" % vT)
    a("v_lshlrev_b32 v%d, 2, v%d" % (vT + 1, vLane))
    a("s_waitcnt vmcnt(0) lgkmcnt(0)")
    a("s_barrier")
    xs(2)
    tm = vQ; to = vPP
    for k in range(4): a("ds_read_b128 %s, v%d offset:%d" % (vr(tm + 4 * k), vT, L_ML + 16 * k))
    for w in range(8):
        a("ds_read2st64_b32 v[%d:%d], v%d offset0:%d offset1:%d" % (to + 2 * w, to + 2 * w + 1, vT + 1, L_EP // 256 + 2 * w, L_EP // 256 + 2 * w + 1))
    a("s_waitcnt lgkmcnt(8)")
    a("v_max3_f32 v%d, v%d, v%d, v%d" % (vM, tm, tm + 2, tm + 4))
    a("v_max3_f32 v%d, v%d, v%d, v%d" % (vM, vM, tm + 6, tm + 8))
    a("v_max3_f32 v%d, v%d, v%d, v%d" % (vM, vM, tm + 10, tm + 12))
    a("v_max_f32 v%d, v%d, v%d" % (vM, vM, tm + 14))
    a("v_mul_f32 v%d, s%d, v%d" % (vMC, sC, vM))
    for w in range(8): a("v_fma_f32 v%d, v%d, s%d, -v%d" % (tm + 2 * w, tm + 2 * w, sC, vMC))
    for w in range(8): a("v_exp_f32 v%d, v%d" % (tm + 2 * w, tm + 2 * w))
    a("s_waitcnt lgkmcnt(0)")
    for k in range(2): a("v_mul_f32 v%d, v%d, v%d" % (vT + 2 + k, tm, to + k))
    for w in range(1, 8):
        for k in range(2): a("v_fmac_f32 v%d, v%d, v%d" % (vT + 2 + k, tm + 2 * w, to + 2 * w + k))
    for k in range(2): a("v_cvt_pk_bf16_f32 v%d, v%d, v%d" % (vT + 2 + k, vT + 2 + k, vT + 2 + k))
    a("ds_write2st64_b32 v%d, v%d, v%d offset0:0 offset1:1" % (vPriv, vT + 2, vT + 3))
    a("v_mul_f32 v%d, v%d, v%d" % (vL, tm, tm + 1))
    for w in range(1, 8): a("v_fmac_f32 v%d, v%d, v%d" % (vL, tm + 2 * w, tm + 2 * w + 1))
    a("s_waitcnt lgkmcnt(0)")
    for u in range(8): a("ds_read_b128 %s, v%d offset:%d" % (vr(vPP + 4 * u), vPrd, 64 * u))
    a("s_waitcnt lgkmcnt(7)")
    gemv(32, lambda n: vWO + 4 * n, lambda n: vPP + n, vS,
         waits=lambda n: a("s_waitcnt lgkmcnt(%d)" % max(0, 7 - (n + 1) // 4)) if (n + 1) % 4 == 0 and n < 31 else None)
    a("s_mov_b32 exec_hi, 0")
    xs(4)
    a("global_store_dwordx4 v%d, %s, %s%s" % (vYoff, vr(vS), sp(sY), P(stpol)))
    a("s_mov_b64 exec, -1")
    a("s_cmp_lg_u32 s%d, 0" % sWave)
    a("s_cbranch_scc1 L_w0done")
    a("v_mov_b32 v%d, s%d" % (vT + 4, sGate))
    a("v_rcp_f32 v%d, v%d" % (vT + 5, vT + 4))
    a("v_sub_f32 v%d, 1.0, v%d" % (vT + 4, vT + 4))
    a("v_mul_f32 v%d, v%d, v%d" % (vT + 3, vL, vT + 5))
    a("v_mov_b32 v%d, v%d" % (vT + 2, vMC))
    a("s_lshl_b32 s%d, s%d, 3" % (sT + 2, sRow)); a("s_add_u32 s%d, s%d, 0x%x" % (sT + 2, sT + 2, WS_ML))
    a("v_mov_b32 v%d, s%d" % (vT + 6, sT + 2))
    a("s_mov_b64 exec, 1")
    a("global_store_dwordx2 v%d, v[%d:%d], %s%s" % (vT + 6, vT + 2, vT + 3, sp(sWs), P(stpol)))
    a("s_and_b32 s%d, s%d, 63" % (sT + 3, sRow))
    a("s_cmp_lg_u32 s%d, 0" % (sT + 3))
    a("s_cbranch_scc1 L_nog")
    a("s_lshl_b32 s%d, s%d, 2" % (sT + 2, sB)); a("s_add_u32 s%d, s%d, 0x%x" % (sT + 2, sT + 2, WS_G))
    a("v_mov_b32 v%d, s%d" % (vT + 6, sT + 2))
    a("global_store_dword v%d, v%d, %s%s" % (vT + 6, vT + 4, sp(sWs), P(stpol)))
    a("L_nog:")
    a("s_mov_b64 exec, -1")
    a("L_w0done:")
    if stamps:
        a("s_cmp_lg_u32 s%d, 0" % sWave)
        a("s_cbranch_scc1 L_nost")
        a("s_mov_b64 exec, 1")
        a("s_memrealtime %s" % sp(sStamp + 2))
        a("s_waitcnt lgkmcnt(0)")
        for k in range(4): a("v_mov_b32 v%d, s%d" % (vQ + k, sStamp + k))
        a("s_lshl_b32 s%d, s2, 4" % sT); a("s_add_u32 s%d, s%d, 0x%x" % (sT, sT, WS_STAMP))
        a("v_mov_b32 v%d, s%d" % (vT + 2, sT))
        a("global_store_dwordx4 v%d, %s, %s" % (vT + 2, vr(vQ), sp(sWs)))
        a("s_mov_b64 exec, -1")
        a("L_nost:")
    a("L_fin:")
    if stamps:
        a("s_mov_b64 exec, 1")
        xs(5)
        a("s_waitcnt lgkmcnt(0)")
        for k in range(NXS):
            a("s_lshl_b32 s%d, s2, 3" % sT); a("s_add_u32 s%d, s%d, s%d" % (sT, sT, sWave)); a("s_lshl_b32 s%d, s%d, 3" % (sT, sT))
            a("s_add_u32 s%d, s%d, 0x%x" % (sT, sT, WS_STAMP + 0x40000 + 0x4000 * k))
            a("v_mov_b32 v%d, s%d" % (vT + 2, sT))
            a("v_mov_b32 v%d, s%d" % (vQ + 4, sXS + 2 * k)); a("v_mov_b32 v%d, s%d" % (vQ + 5, sXS + 2 * k + 1))
            a("global_store_dwordx2 v%d, v[%d:%d], %s" % (vT + 2, vQ + 4, vQ + 5, sp(sWs)))
            a("s_nop 1")
    a("L_done:")
    a("s_endpgm")
    for k in tramps:
        a("L_tr%d:" % k)
        a("s_swappc_b64 %s, %s" % (sp(sRet), sp(sRare)))
        a("s_branch L_back%d" % k)
    a("L_rare:")
    for k in range(4): a("v_readlane_b32 s%d, v%d, %d" % (sT + k, vT, 16 * k))
    a("v_mov_b32 v%d, s%d" % (vT + 1, sT))
    for k in range(1, 4): a("v_max_f32 v%d, s%d, v%d" % (vT + 1, sT + k, vT + 1))
    a("v_max_f32 v%d, v%d, v%d" % (vT + 1, vT + 1, vM))
    a("v_sub_f32 v%d, v%d, v%d" % (vT + 2, vM, vT + 1))
    a("v_mul_f32 v%d, s%d, v%d" % (vT + 2, sC, vT + 2))
    a("v_exp_f32 v%d, v%d" % (vT + 2, vT + 2))
    a("v_mov_b32 v%d, v%d" % (vM, vT + 1))
    a("v_mul_f32 v%d, s%d, v%d" % (vMC, sC, vT + 1))
    for r in range(4): a("v_mul_f32 v%d, v%d, v%d" % (vO + r, vO + r, vT + 2))
    a("v_mul_f32 v%d, v%d, v%d" % (vL, vL, vT + 2))
    a("s_nop 1")
    a("s_setpc_b64 %s" % sp(sRet))
    body1 = a.finish()

    c = Asm()
    c("%s:" % K2)
    c("s_cmp_ge_u32 s2, 64")
    c("s_cbranch_scc1 L2_done")
    c("s_load_dwordx2 s[4:5], s[0:1], 88")
    c("s_load_dwordx2 s[6:7], s[0:1], 104")
    c("s_load_dwordx2 s[32:33], s[0:1], 72")
    if stamps: c("s_memrealtime s[36:37]")
    c("s_lshr_b32 s8, s2, 4")
    c("s_and_b32 s9, s2, 15")
    c("v_lshrrev_b32 v1, 3, v0")
    c("v_and_b32 v2, 7, v0")
    c("v_lshlrev_b32 v3, 14, v1")
    c("v_lshl_add_u32 v3, v2, 4, v3")
    c("v_lshlrev_b32 v4, 11, v1")
    c("v_lshl_add_u32 v4, v2, 4, v4")
    c("v_lshlrev_b32 v5, 6, v1")
    c("v_lshlrev_b32 v6, 3, v2")
    c("s_lshl_b32 s10, s8, 17"); c("s_lshl_b32 s11, s9, 7"); c("s_add_u32 s10, s10, s11")
    c("s_mul_i32 s12, s8, %d" % (NFF * 2048)); c("s_add_u32 s12, s12, s11"); c("s_add_u32 s12, s12, 0x%x" % WS_YF)
    c("s_lshl_b32 s13, s8, 9"); c("s_add_u32 s13, s13, 0x%x" % WS_ML)
    c("s_movk_i32 s24, 4096"); c("s_movk_i32 s25, 8192"); c("s_movk_i32 s26, 12288")
    for k in range(1, 7): c("s_mov_b32 s%d, %d" % (41 + k, 16384 * k))
    c("s_lshl_b32 s31, s8, 2"); c("s_add_u32 s31, s31, 0x%x" % WS_G)
    c("v_mov_b32 v7, s31")
    c("s_lshl_b32 s35, s9, 6")
    c("s_waitcnt lgkmcnt(0)")
    c("s_add_u32 s14, s6, s13"); c("s_addc_u32 s15, s7, 0")
    for k in range(4): c("global_load_dwordx4 %s, v5, s[14:15] offset:%d" % (vr(8 + 4 * k), 16 * k))
    c("s_add_u32 s16, s6, s10"); c("s_addc_u32 s17, s7, 0"); c("s_mov_b32 s18, 0x20000"); c("s_mov_b32 s19, 0x20000")
    for j in range(8):
        so = "0" if j < 2 else "s%d" % (24 + j // 2 - 1)
        c("buffer_load_dwordx4 %s, v3, s[16:19], %s offen offset:%d" % (vr(24 + 4 * j), so, 2048 * (j & 1)))
    c("s_add_u32 s20, s6, s12"); c("s_addc_u32 s21, s7, 0"); c("s_sub_u32 s22, %d, s11" % (NFF * 2048)); c("s_mov_b32 s23, 0x20000")
    for k in range(7):
        c("buffer_load_dwordx4 %s, v4, s[20:23], %s offen" % (vr(88 + 4 * k), "0" if k == 0 else "s%d" % (41 + k)))
    c("global_load_dword v72, v7, s[6:7]")
    c("s_add_u32 s32, s32, s35"); c("s_addc_u32 s33, s33, 0")
    c("global_load_dwordx2 v[74:75], v6, s[32:33]")
    c("s_lshl_b32 s34, s8, 10"); c("s_add_u32 s34, s34, s35")
    c("s_add_u32 s4, s4, s34"); c("s_addc_u32 s5, s5, 0")
    c("s_waitcnt vmcnt(17)")
    for p in range(4):
        r = 8 + 4 * p
        c("v_max_f32 v84, v%d, v%d" % (r, r + 2))
        c("v_sub_f32 v%d, v%d, v84" % (r, r)); c("v_sub_f32 v%d, v%d, v84" % (r + 2, r + 2))
        c("v_exp_f32 v%d, v%d" % (r, r)); c("v_exp_f32 v%d, v%d" % (r + 2, r + 2))
        c("v_mul_f32 v%d, v%d, v%d" % (r + 1, r + 1, r))
        c("v_fmac_f32 v%d, v%d, v%d" % (r + 1, r + 3, r + 2))
        c("v_rcp_f32 v%d, v%d" % (r + 1, r + 1))
        c("v_mul_f32 v%d, v%d, v%d" % (r, r, r + 1)); c("v_mul_f32 v%d, v%d, v%d" % (r + 2, r + 2, r + 1))
    c("s_waitcnt vmcnt(9)")
    for r in range(4): c("v_mul_f32 v%d, v8, v%d" % (84 + r, 24 + r))
    for j in range(1, 8):
        sc = 8 + 4 * (j // 2) + 2 * (j & 1)
        for r in range(4): c("v_fmac_f32 v%d, v%d, v%d" % (84 + r, sc, 24 + 4 * j + r))
    c("s_waitcnt vmcnt(0)")
    for r in range(4): c("v_add_f32 v%d, v%d, v%d" % (56 + r, 88 + r, 92 + r))
    for k in range(2, 7):
        for r in range(4): c("v_add_f32 v%d, v%d, v%d" % (56 + r, 56 + r, 88 + 4 * k + r))
    c("v_lshlrev_b32 v76, 16, v74"); c("v_and_b32 v77, 0xffff0000, v74"); c("v_lshlrev_b32 v78, 16, v75"); c("v_and_b32 v79, 0xffff0000, v75")
    c("v_cmp_eq_u32 vcc, 0, v1")
    for r in range(4): c("v_cndmask_b32 v%d, 0, v%d, vcc" % (76 + r, 76 + r))
    for r in range(4): c("v_add_f32 v%d, v%d, v%d" % (56 + r, 56 + r, 76 + r))
    for r in range(4): c("v_fmac_f32 v%d, v72, v%d" % (84 + r, 56 + r))
    for r in range(4): c("v_add_f32_dpp v%d, v%d, v%d row_ror:8 row_mask:0xf bank_mask:0xf" % (84 + r, 84 + r, 84 + r))
    for sw in ("v_permlane16_swap_b32", "v_permlane32_swap_b32"):
        for r in range(4): c("v_mov_b32 v%d, v%d" % (60 + r, 84 + r))
        for r in range(4): c("%s v%d, v%d" % (sw, 84 + r, 60 + r))
        for r in range(4): c("v_add_f32 v%d, v%d, v%d" % (84 + r, 84 + r, 60 + r))
    c("v_cvt_pk_bf16_f32 v84, v84, v85")
    c("v_cvt_pk_bf16_f32 v85, v86, v87")
    c("s_mov_b64 exec, 0xff")
    c("global_store_dwordx2 v6, v[84:85], s[4:5]")
    if stamps:
        c("s_waitcnt vmcnt(0)")
        c("s_memrealtime s[38:39]")
        c("s_waitcnt lgkmcnt(0)")
        c("s_mov_b64 exec, 0xf")
        c("v_and_b32 v1, 3, v0")
        c("s_lshl_b32 s34, s2, 2")
        c("v_add_u32 v1, s34, v1")
        c("v_lshlrev_b32 v1, 3, v1")
        for k in range(2):
            c("v_add_u32 v2, 0x%x, v1" % (WS_STAMP + 0x10000 + 0x1000 * (5 + k)))
            c("v_mov_b32 v8, s%d" % (36 + 2 * k)); c("v_mov_b32 v9, s%d" % (37 + 2 * k))
            c("global_store_dwordx2 v2, v[8:9], s[6:7]")
            c("s_nop 1")
    c("L2_done:")
    c("s_endpgm")
    body2 = c.finish()

    hdr = open("cdna_kernels/%s.s.ref" % NAME).read().split("; Override launch")[0]
    out = hdr
    out += "; @launch kernel=%s grid=(256,1,1) block=(%d,1,1) lds=%d\n" % (K1, 64 * W, L_END)
    out += "; @launch kernel=%s grid=(64,1,1) block=(64,1,1) lds=0\n" % K2
    out += '.amdgcn_target "amdgcn-amd-amdhsa--gfx950"\n.text\n'
    for k, body in ((K1, body1), (K2, body2)):
        out += ".globl %s\n.p2align 8\n.type %s,@function\n" % (k, k) + body
    out += '.section .rodata,"a"\n'
    for k, nv, ns in ((K1, NV, 100), (K2, 116, 56)):
        out += ".p2align 6\n.amdhsa_kernel %s\n" % k
        out += "  .amdhsa_next_free_vgpr %d\n  .amdhsa_next_free_sgpr %d\n  .amdhsa_accum_offset %d\n" % (nv, ns, (nv + 3) // 4 * 4)
        out += "  .amdhsa_group_segment_fixed_size 0\n  .amdhsa_kernarg_size 112\n  .amdhsa_user_sgpr_count 2\n"
        out += "  .amdhsa_user_sgpr_kernarg_segment_ptr 1\n  .amdhsa_system_sgpr_workgroup_id_x 1\n"
        out += "  .amdhsa_float_denorm_mode_32 3\n"
        out += ".end_amdhsa_kernel\n"
    return out

if __name__ == "__main__":
    import argparse
    ap = argparse.ArgumentParser()
    ap.add_argument("-o", default="cdna_kernels/%s.s" % NAME)
    ap.add_argument("--D", type=int, default=2)
    ap.add_argument("--kvpol", default="nt")
    ap.add_argument("--wqpol", default="")
    ap.add_argument("--wopol", default="")
    ap.add_argument("--fpol", default="")
    ap.add_argument("--stpol", default="")
    ap.add_argument("--stamps", action="store_true")
    ap.add_argument("--noffn", action="store_true")
    ap.add_argument("--abl", default="")
    ap.add_argument("--early", action="store_true")
    ap.add_argument("--touch", action="store_true")
    ap.add_argument("--npre", type=int, default=0)
    ap.add_argument("--nsh", type=int, default=8)
    x = ap.parse_args()
    open(x.o, "w").write(gen(D=x.D, kvpol=x.kvpol, wqpol=x.wqpol, wopol=x.wopol, fpol=x.fpol, stpol=x.stpol,
                             stamps=x.stamps, ffn=not x.noffn, abl=tuple(x.abl.split(",")), early=x.early, touch=x.touch, npre=x.npre, nsh=x.nsh))
    print("wrote", x.o)
```

```python
import sys, os, struct
sys.path.insert(0, os.path.dirname(os.path.abspath(__file__)))
from asmlib import Asm, VmQueue

NAME = "gated_mix__mha_block_cached__dense_activation_squared_relu__decode"
K1 = NAME + "_kernel"
K2 = "final_reduce_kernel"

def fbits(x): return "0x%08x" % struct.unpack("<I", struct.pack("<f", x))[0]
LOG2E = 1.4426950408889634
CSCALE = LOG2E * (128 ** -0.5)

NFF = 56
WS_Y, WS_YF, WS_ML, WS_G = 0, 0x80000, 0x100000, 0x101000
WS_STAMP = 0x20000000
L_QP, L_PRIV, L_EP, L_ML, L_CLAIM, L_HH, L_HP, L_XS, L_END = 0, 4096, 8192, 12288, 12416, 12544, 13568, 13568 + 8192, 13568 + 8192 + 4096

def vr(b, n=4): return "v[%d:%d]" % (b, b + n - 1)
def sp(b): return "s[%d:%d]" % (b, b + 1)
def sq(b): return "s[%d:%d]" % (b, b + 3)

def gen(D=2, kvpol="nt", wqpol="", wopol="", fpol="", stpol="", stamps=False, ffn=True, abl=(), early=False, touch=False, npre=0, nsh=8, warm=False):
    W = 8
    NT = 4096 // 16 // W
    a = Asm()
    P = lambda p: (" " + p) if p else ""
    MF = "v_mfma_f32_16x16x32_bf16"
    vLane, vG, vI = 1, 2, 3
    vKoff, vVoff, vL, vM, vMC = 4, 5, 6, 7, 8
    vEPa, vPriv, vTmp = 9, 10, 11
    vMask = 12
    vQ = 16; vS = 32; vP = 36; vA = [40, 44]; vO = 48; vT = 52
    vWoff, vYoff, vPrd, vOne = 60, 61, 62, 63
    vChk = vT + 7
    vKV = 64
    vWA = vKV + 32 * D
    NV = max(vWA + 64, 64 + 128 + 32)
    assert NV <= 256
    Kb = lambda d: vKV + 32 * d
    Vb = lambda d: vKV + 32 * d + 16
    vWO = vKV
    vPP = vWO + 128
    vTch = Vb(D - 1)
    sX, sK, sV, sWq, sWo, sBx, sW1, sB1 = 4, 6, 8, 10, 12, 14, 16, 18
    sW2, sB2, sGw, sOut, sDbg, sWs = 20, 22, 24, 26, 28, 30
    sWave, sH, sB, sSp, sRot, sRow = 3, 32, 33, 34, 35, 36
    sOff, sCnt, sC, sGate = 37, 38, 39, 40
    sPriv, sCb, sSig = 41, 42, 43
    sWoT, sPre, sTask = 96, 97, 98
    rK, rV, rWq, rWo = 44, 48, 52, 56
    rW1, rW2 = 44, 48
    sT = 60
    sRet, sRare = 72, 74
    sY = 76
    sX0 = 78
    sStamp = 80
    sXS = 84
    NXS = 6
    vm = VmQueue(a)
    def xs(k):
        if stamps: a("s_memrealtime %s" % sp(sXS + 2 * k))
    def srd(r, base, off, nrec, nrec_sub=None):
        a("s_add_u32 s%d, s%d, s%d" % (r, base, off)); a("s_addc_u32 s%d, s%d, 0" % (r + 1, base + 1))
        if nrec_sub is None: a("s_mov_b32 s%d, 0x%x" % (r + 2, nrec))
        else: a("s_sub_u32 s%d, 0x%x, s%d" % (r + 2, nrec, nrec_sub))
        a("s_mov_b32 s%d, 0x20000" % (r + 3))
    def gemv(nld, Wreg, Preg, acc, waits=None):
        def ands(n):
            for r in range(4): a("v_and_b32 v%d, v%d, v%d" % (vA[n & 1] + r, Preg(n), vMask + r))
        ands(0)
        for n in range(nld):
            if waits: waits(n)
            if n + 1 < nld: ands(n + 1)
            a("%s %s, %s, %s, %s" % (MF, vr(acc), vr(vA[n & 1]), vr(Wreg(n)), "0" if n == 0 else vr(acc)))

    a("%s:" % K1)
    a("s_cmp_ge_u32 s2, 256")
    a("s_cbranch_scc1 L_done")
    a("s_load_dwordx16 s[4:19], s[0:1], 0")
    a("s_load_dwordx8 s[20:27], s[0:1], 64")
    a("s_load_dwordx4 s[28:31], s[0:1], 96")
    if stamps: a("s_memrealtime %s" % sp(sStamp))
    a("v_lshrrev_b32 v%d, 6, v0" % vTmp)
    a("v_and_b32 v%d, 63, v0" % vLane)
    a("v_readfirstlane_b32 s%d, v%d" % (sWave, vTmp))
    a("v_lshrrev_b32 v%d, 4, v%d" % (vG, vLane))
    a("v_and_b32 v%d, 15, v%d" % (vI, vLane))
    a("s_and_b32 s%d, s2, 7" % sT)
    a("s_lshr_b32 s%d, s2, 3" % (sT + 1))
    a("s_and_b32 s%d, s%d, 3" % (sT + 2, sT + 1))
    a("s_lshl_b32 s%d, s%d, 2" % (sH, sT))
    a("s_add_u32 s%d, s%d, s%d" % (sH, sH, sT + 2))
    a("s_lshr_b32 s%d, s%d, 2" % (sRot, sT + 1))
    a("s_lshr_b32 s%d, s%d, 3" % (sB, sT + 1))
    a("s_and_b32 s%d, s%d, 1" % (sSp, sRot))
    a("s_add_u32 s%d, s%d, s%d" % (sT + 3, sWave, sRot)); a("s_and_b32 s%d, s%d, 7" % (sT + 3, sT + 3))
    a("s_lshl_b32 s%d, s%d, 6" % (sT + 4, sT + 3))
    a("v_lshl_add_u32 v%d, v%d, 2, s%d" % (vA[0], vG, sT + 4))
    a("v_lshlrev_b32 v%d, 13, v%d" % (vA[1], vA[0]))
    a("v_lshl_add_u32 v%d, v%d, 4, v%d" % (vA[1], vI, vA[1]))
    a("v_lshlrev_b32 v%d, 1, v%d" % (vTmp, vA[0]))
    a("v_lshlrev_b32 v%d, 4, v%d" % (vPriv, vLane))
    a("s_lshl_b32 s%d, s%d, 8" % (sT + 5, sH))
    a("s_lshl_b32 s%d, s%d, 10" % (sT + 6, sB))
    a("s_mov_b32 s%d, 0" % (sT + 8))
    a("s_waitcnt lgkmcnt(0)")
    srd(rWq, sWq, sT + 5, 4194304, sT + 5)
    if "nowq" in abl: a("s_mov_b32 s%d, 0" % (rWq + 2))
    a("s_mov_b32 s%d, s%d" % (sX0, sX)); a("s_mov_b32 s%d, s%d" % (sX0 + 1, sX + 1))
    a("s_add_u32 s%d, s%d, s%d" % (sX, sX, sT + 6)); a("s_addc_u32 s%d, s%d, 0" % (sX + 1, sX + 1))
    for u in range(4):
        vm.issue("gate", "global_load_dwordx2 v[%d:%d], v%d, %s offset:%d" % (vT + 2 * u, vT + 2 * u + 1, vTmp, sp(sX), 32 * u))
    vm.issue("gate", "global_load_dwordx4 %s, v%d, %s" % (vr(vS), vPriv, sp(sX)))
    vm.issue("gate", "global_load_dwordx4 %s, v%d, %s" % (vr(vP), vPriv, sp(sGw)))
    if touch:
        a("s_cmp_lg_u32 s%d, 0" % sWave)
        a("s_cbranch_scc1 L_notouch")
        a("s_lshl_b32 s%d, s%d, 6" % (sT + 9, sRot))
        a("v_add_u32 v%d, s%d, v%d" % (vTch, sT + 9, vLane))
        a("v_lshlrev_b32 v%d, 13, v%d" % (vTch, vTch))
        a("buffer_load_dword v%d, v%d, %s, 0 offen%s" % (vTch + 1, vTch, sq(rWq), P(wqpol)))
        a("buffer_load_dword v%d, v%d, %s, 0 offen offset:128%s" % (vTch + 2, vTch, sq(rWq), P(wqpol)))
        a("L_notouch:")
    a("v_lshlrev_b32 v%d, 8, v%d" % (vKoff, vI))
    a("v_lshl_add_u32 v%d, v%d, 4, v%d" % (vKoff, vG, vKoff))
    a("v_lshlrev_b32 v%d, 10, v%d" % (vVoff, vG))
    a("v_lshl_add_u32 v%d, v%d, 4, v%d" % (vVoff, vI, vVoff))
    a("s_lshl_b32 s%d, s%d, 5" % (sRow, sB))
    a("s_add_u32 s%d, s%d, s%d" % (sRow, sRow, sH))
    a("s_lshl_b32 s%d, s%d, 1" % (sRow, sRow))
    a("s_add_u32 s%d, s%d, s%d" % (sRow, sRow, sSp))
    a("s_lshl_b32 s%d, s%d, 20" % (sT + 3, sRow))
    srd(rK, sK, sT + 3, 0x100000)
    srd(rV, sV, sT + 3, 0x100000)
    pol = P(kvpol)
    def kload(d):
        for t in range(4):
            vm.issue("K%d" % d, "buffer_load_dwordx4 %s, v%d, %s, s%d offen offset:%d%s" % (vr(Kb(d) + 4 * t), vKoff, sq(rK), sOff, 64 * t, pol))
    def vload(d):
        for t in range(4):
            vm.issue("V%d" % d, "buffer_load_dwordx4 %s, v%d, %s, s%d offen offset:%d%s" % (vr(Vb(d) + 4 * t), vVoff, sq(rV), sOff, 256 * t, pol))
    def kv_prefetch(d0=0, d1=None):
        save = list(vm.q)
        a("s_lshl_b32 s%d, s%d, 12" % (sOff, sWave))
        if d0: a("s_add_u32 s%d, s%d, %d" % (sOff, sOff, 4096 * W * d0))
        for d in range(d0, D if d1 is None else d1):
            kload(d); vload(d)
            a("s_add_u32 s%d, s%d, %d" % (sOff, sOff, 4096 * W))
        vm.q = save
    a("s_mul_i32 s%d, s%d, %d" % (sPre, sSp, npre))
    a("s_cmp_ge_u32 s%d, 4" % sWave)
    a("s_cselect_b32 s%d, 0, s%d" % (sPre, sPre))
    if npre:
        a("s_cmp_eq_u32 s%d, 0" % sPre)
        a("s_cbranch_scc1 L_pre")
        kv_prefetch(0, npre)
        a("L_pre:")
    for n in range(16):
        u, t = divmod(n, 4)
        vm.issue("wq%d" % u, "buffer_load_dwordx4 %s, v%d, %s, s%d offen%s" % (vr(vWA + 4 * n), vA[1], sq(rWq), sT + 8, P(wqpol)))
        if n < 15: a("s_add_u32 s%d, s%d, %d" % (sT + 8, sT + 8, 8192 if t < 3 else 13 * 8192))
    a("s_barrier")
    def old_prefetch():
        a("s_cmp_ge_u32 s%d, 4" % sWave)
        a("s_cbranch_scc1 L_pf1")
        if npre:
            a("s_cmp_lg_u32 s%d, 0" % sPre)
            a("s_cbranch_scc1 L_pf1b")
            kv_prefetch(0, npre)
            a("L_pf1b:")
        kv_prefetch(npre)
        a("L_pf1:")
    if early: old_prefetch()
    xs(0)
    nw = [0]
    def dual_wait(tag):
        n = vm.count(tag)
        if not early:
            vm.wait(tag); return
        a("s_waitcnt vmcnt(%d)" % (n + 8 * D))
        if npre:
            a("s_cmp_eq_u32 s%d, 0" % sPre)
            a("s_cbranch_scc1 L_dx%d" % nw[0])
            a("s_waitcnt vmcnt(%d)" % (n + 8 * (D - npre)))
            a("L_dx%d:" % nw[0])
        a("s_cmp_lt_u32 s%d, 4" % sWave)
        a("s_cbranch_scc1 L_dw%d" % nw[0])
        a("s_waitcnt vmcnt(%d)" % n)
        a("L_dw%d:" % nw[0]); nw[0] += 1
        vm.q = vm.q[len(vm.q) - n:] if n else []
    a("s_lshl_b32 s%d, s%d, 17" % (sT + 6, sH))
    srd(rWo, sWo, sT + 6, 131072)
    if "nowo" in abl: a("s_mov_b32 s%d, 0" % (rWo + 2))
    a("s_mov_b32 s%d, %s" % (sC, fbits(CSCALE)))
    a("s_getpc_b64 %s" % sp(sRare))
    a("L_pc:")
    a("s_add_u32 s%d, s%d, L_rare-L_pc" % (sRare, sRare))
    a("s_addc_u32 s%d, s%d, 0" % (sRare + 1, sRare + 1))
    a("v_and_b32 v%d, 7, v%d" % (vTmp, vI))
    a("v_lshrrev_b32 v%d, 1, v%d" % (vA[1] + 1, vTmp))
    a("v_and_b32 v%d, 1, v%d" % (vTmp, vTmp))
    a("v_lshlrev_b32 v%d, 4, v%d" % (vTmp, vTmp))
    a("v_mov_b32 v%d, 0xffff" % (vA[1] + 2))
    a("v_lshlrev_b32 v%d, v%d, v%d" % (vA[1] + 2, vTmp, vA[1] + 2))
    for r in range(4):
        a("v_cmp_eq_u32 vcc, %d, v%d" % (r, vA[1] + 1))
        a("v_cndmask_b32 v%d, 0, v%d, vcc" % (vMask + r, vA[1] + 2))
    a("s_add_u32 s%d, s%d, s%d" % (sCb, sWave, sRot)); a("s_and_b32 s%d, s%d, 3" % (sCb, sCb))
    a("s_lshl_b32 s%d, s%d, 8" % (sT, sCb))
    a("v_lshlrev_b32 v%d, 12, v%d" % (vWoff, vG))
    a("v_lshl_add_u32 v%d, v%d, 4, v%d" % (vWoff, vI, vWoff))
    a("v_add_u32 v%d, s%d, v%d" % (vWoff, sT, vWoff))
    a("v_lshlrev_b32 v%d, 5, v%d" % (vEPa, vI))
    a("v_lshl_add_u32 v%d, v%d, 4, v%d" % (vEPa, vG, vEPa))
    a("s_lshl_b32 s%d, s%d, 9" % (sT, sCb))
    a("v_add_u32 v%d, s%d, v%d" % (vYoff, sT, vEPa))
    a("s_lshl_b32 s%d, s%d, 9" % (sT + 11, sWave))
    a("v_add_u32 v%d, s%d, v%d" % (vEPa, sT + 11, vEPa))
    a("s_add_u32 s%d, s%d, %d" % (sPriv, sT + 11, L_PRIV))
    a("v_lshl_add_u32 v%d, v%d, 4, s%d" % (vPrd, vG, sPriv))
    a("s_lshl_b32 s%d, s%d, 11" % (sT, sRow))
    a("s_add_u32 s%d, s%d, s%d" % (sY, sWs, sT)); a("s_addc_u32 s%d, s%d, 0" % (sY + 1, sWs + 1))
    a("v_mov_b32 v%d, 1" % vOne)
    a("v_mov_b32 v%d, %s" % (vM, fbits(-3.0e38)))
    a("v_mul_f32 v%d, s%d, v%d" % (vMC, sC, vM))
    a("v_mov_b32 v%d, 0" % vL)
    for r in range(4): a("v_mov_b32 v%d, 0" % (vO + r))
    dual_wait("gate")
    a("v_mov_b32 v%d, 0" % vTmp)
    for r in range(4): a("v_dot2c_f32_bf16 v%d, v%d, v%d" % (vTmp, vS + r, vP + r))
    for m in ("quad_perm:[1,0,3,2]", "quad_perm:[2,3,0,1]", "row_half_mirror", "row_mirror"):
        a("v_add_f32_dpp v%d, v%d, v%d %s row_mask:0xf bank_mask:0xf" % (vTmp, vTmp, vTmp, m))
    for k in range(4): a("v_readlane_b32 s%d, v%d, %d" % (sT + k, vTmp, 16 * k))
    a("v_mov_b32 v%d, s%d" % (vTmp, sT))
    for k in range(1, 4): a("v_add_f32 v%d, s%d, v%d" % (vTmp, sT + k, vTmp))
    a("v_mul_f32 v%d, %s, v%d" % (vTmp, fbits(-LOG2E), vTmp))
    a("v_exp_f32 v%d, v%d" % (vTmp, vTmp))
    a("v_add_f32 v%d, 1.0, v%d" % (vTmp, vTmp))
    a("v_rcp_f32 v%d, v%d" % (vTmp, vTmp))
    a("v_readfirstlane_b32 s%d, v%d" % (sGate, vTmp))
    a("s_mov_b32 s%d, 0x01000100" % sT); a("s_mov_b32 s%d, 0x03020302" % (sT + 1))
    for u in range(4):
        for t in range(4):
            a("v_perm_b32 v%d, v%d, v%d, s%d" % (vQ + 4 * u + t, vT + 2 * u + t // 2, vT + 2 * u + t // 2, sT + (t & 1)))
    gemv(16, lambda n: vWA + 4 * n, lambda n: vQ + n, vS, waits=lambda n: dual_wait("wq%d" % (n // 4)) if n % 4 == 0 else None)
    a("s_mov_b32 exec_hi, 0")
    a("ds_write_b128 v%d, %s offset:%d" % (vEPa, vr(vS), L_QP))
    a("s_mov_b32 exec_hi, -1")
    a("v_mov_b32 v%d, %d" % (vT + 4, L_CLAIM))
    a("v_mov_b32 v%d, 0" % (vT + 6)); a("v_mov_b32 v%d, 0" % (vT + 7))
    a("s_mov_b64 exec, 1")
    a("ds_write_b64 v%d, v[%d:%d]" % (vT + 4, vT + 6, vT + 7))
    a("s_mov_b64 exec, -1")
    if not early: old_prefetch()
    a("s_waitcnt lgkmcnt(0)")
    a("s_barrier")
    a("s_cmp_lt_u32 s%d, 4" % sWave)
    a("s_cbranch_scc1 L_pf2")
    kv_prefetch()
    a("L_pf2:")
    vm.q = []
    for d in range(D): vm.note("K%d" % d, 4); vm.note("V%d" % d, 4)
    a("v_lshlrev_b32 v%d, 3, v%d" % (vTmp, vLane))
    tq = vQ
    for w in range(8):
        a("ds_read_b64 v[%d:%d], v%d offset:%d" % (tq + 2 * w, tq + 2 * w + 1, vTmp, L_QP + 512 * w))
    a("v_lshlrev_b32 v%d, 2, v%d" % (vPriv, vLane))
    a("v_add_u32 v%d, s%d, v%d" % (vPriv, sPriv, vPriv))
    a("s_waitcnt lgkmcnt(0)")
    for step in (4, 2, 1):
        for w in range(step):
            for k in range(2):
                a("v_add_f32 v%d, v%d, v%d" % (tq + 2 * w + k, tq + 2 * w + k, tq + 2 * (w + step) + k))
    a("v_cvt_pk_bf16_f32 v%d, v%d, v%d" % (vTmp, tq, tq + 1))
    a("ds_write_b32 v%d, v%d" % (vPriv, vTmp))
    a("s_waitcnt lgkmcnt(0)")
    for t in range(4):
        a("ds_read_b128 %s, v%d offset:%d" % (vr(vQ + 4 * t), vPrd, 64 * t))
    a("s_lshl_b32 s%d, s%d, 12" % (sOff, sWave))
    a("s_add_u32 s%d, s%d, %d" % (sOff, sOff, 4096 * W * D))
    a("s_waitcnt lgkmcnt(0)")
    xs(1)

    ntr = [0]; tramps = []
    tail_on = [False]; tail_extra = [0]; ntw = [0]; pending = []
    def kvwait(tag):
        if not tail_extra[0]:
            vm.wait(tag); return
        n = vm.count(tag)
        a("s_waitcnt vmcnt(%d)" % (n + tail_extra[0]))
        a("s_cmp_lg_u32 s%d, 0" % sTask)
        a("s_cbranch_scc1 L_tw%d" % ntw[0])
        a("s_waitcnt vmcnt(%d)" % n)
        a("L_tw%d:" % ntw[0]); ntw[0] += 1
        vm.q = vm.q[len(vm.q) - n:] if n else []
    def slot(k):
        if not tail_on[0] or not pending: return
        a("s_cmp_eq_u32 s%d, 0" % sTask)
        a("s_cbranch_scc1 L_sl%d" % ntw[0])
        for _ in range(min(k, len(pending))):
            for l in pending.pop(0): a(l)
            tail_extra[0] += 1
        a("L_sl%d:" % ntw[0]); ntw[0] += 1
    def tile(d, prefetch):
        kvwait("K%d" % d)
        for t in range(4):
            a("%s %s, %s, %s, %s" % (MF, vr(vS), vr(Kb(d) + 4 * t), vr(vQ + 4 * t), "0" if t == 0 else vr(vS)))
        if prefetch: kload(d)
        elif tail_on[0] and pending:
            slot(4)
            a("s_nop 7")
        a("v_max3_f32 v%d, v%d, v%d, v%d" % (vT, vS, vS + 1, vS + 2))
        a("v_max_f32 v%d, v%d, v%d" % (vT, vT, vS + 3))
        a("v_cmp_gt_f32 vcc, v%d, v%d" % (vT, vM))
        k = ntr[0]; ntr[0] += 1
        a("s_cbranch_vccnz L_tr%d" % k)
        a("L_back%d:" % k)
        tramps.append(k)
        for t in range(4): a("v_fma_f32 v%d, v%d, s%d, -v%d" % (vS + t, vS + t, sC, vMC))
        for t in range(4): a("v_exp_f32 v%d, v%d" % (vS + t, vS + t))
        a("v_add_f32 v%d, v%d, v%d" % (vT, vS, vS + 1))
        a("v_add_f32 v%d, v%d, v%d" % (vT + 1, vS + 2, vS + 3))
        for t in range(4): a("v_cvt_pk_bf16_f32 v%d, v%d, v%d" % (vP + t, vS + t, vS + t))
        a("v_add_f32 v%d, v%d, v%d" % (vT, vT, vT + 1))
        a("v_add_f32 v%d, v%d, v%d" % (vL, vL, vT))
        def ands(t):
            for r in range(4): a("v_and_b32 v%d, v%d, v%d" % (vA[t & 1] + r, vP + t, vMask + r))
        ands(0); ands(1)
        kvwait("V%d" % d)
        for t in range(4):
            a("%s %s, %s, %s, %s" % (MF, vr(vO), vr(vA[t & 1]), vr(Vb(d) + 4 * t), vr(vO)))
            if t + 2 < 4: ands(t + 2)
        if prefetch:
            vload(d)
            a("s_add_u32 s%d, s%d, %d" % (sOff, sOff, 4096 * W))
        else: slot(4)
    nl = (NT - D) // D
    rem = (NT - D) - nl * D
    m = 1
    while 2 * m <= nl - 3: m *= 2
    a("s_mul_i32 s%d, s%d, 3" % (sWoT, sH)); a("s_and_b32 s%d, s%d, %d" % (sWoT, sWoT, m - 1)); a("s_add_u32 s%d, s%d, %d" % (sWoT, sWoT, 4 if D == 2 else 3))
    a("s_cmp_lt_u32 s%d, 4" % sWave)
    a("s_cselect_b32 s%d, -1, s%d" % (sWoT, sWoT))
    a("s_cmp_eq_u32 s%d, 4" % sWave)
    a("s_cselect_b32 s%d, s%d, -1" % (sWoT, sWoT))
    a("s_cselect_b32 s%d, 2, -1" % sTask)
    a("v_mov_b32 v%d, -1" % vChk)
    a("s_mov_b32 s%d, %d" % (sCnt, nl))
    a("L_loop:")
    for it in range(D): tile(it, True)
    a("s_cmp_lg_u32 s%d, s%d" % (sCnt, sWoT))
    a("s_cbranch_scc1 L_norel")
    a("v_mov_b32 v%d, %d" % (vT + 2, L_CLAIM))
    a("s_mov_b64 exec, 1")
    a("ds_write_b32 v%d, v%d offset:4" % (vT + 2, vOne))
    a("s_mov_b64 exec, -1")
    a("L_norel:")
    if ffn:
        a("s_cmp_lg_u32 s%d, s%d" % (sCnt, sTask))
        a("s_cbranch_scc1 L_noclaim")
        a("s_lshr_b32 s%d, s2, 3" % sT)
        a("s_and_b32 s%d, s%d, %d" % (sT, sT, nsh - 1))
        a("s_lshl_b32 s%d, s%d, %d" % (sT + 1, sT, {1: 0, 2: 7, 4: 6, 8: 5}[nsh]))
        a("v_mov_b32 v%d, s%d" % (vT + 2, sT + 1))
        a("s_mov_b64 exec, 1")
        a("global_atomic_add v%d, v%d, v%d, %s sc0" % (vChk, vT + 2, vOne, sp(sDbg)))
        a("s_mov_b64 exec, -1")
        a("L_noclaim:")
    a("s_sub_u32 s%d, s%d, 1" % (sCnt, sCnt))
    a("s_cmp_lg_u32 s%d, 0" % sCnt)
    a("s_cbranch_scc1 L_loop")
    for it in range(rem): tile(it % D, True)
    a("s_mov_b32 s%d, 0" % sTask)
    fW1 = vWA; fW2 = vWA + 32; vB1 = vT + 5
    vF1, vF2, vF3 = vT + 3, vT + 4, vT + 6
    sF = sOff
    ffn_loads = []
    for n in range(8):
        u, t = divmod(n, 4)
        pre = ["s_mov_b32 s%d, %d" % (sF, (16 * u + t) * 3584)]
        ffn_loads.append(pre + ["buffer_load_dwordx4 %s, v%d, %s, s%d offen%s" % (vr(fW1 + 4 * n), vF1, sq(rW1), sF, P(fpol))])
    for n in range(8):
        u, t = divmod(n, 4)
        pre = ["s_mov_b32 s%d, %d" % (sF, 16384 * u)] if t == 0 else []
        ffn_loads.append(pre + ["buffer_load_dwordx4 %s, v%d, %s, s%d offen offset:%d%s" % (vr(fW2 + 4 * n), vF2, sq(rW2), sF, 1024 * t, P(fpol))])
    ffn_loads.append(["global_load_ushort v%d, v%d, %s" % (vB1, vF3, sp(sB1))])
    if ffn:
        a("s_cmp_lt_u32 s%d, 4" % sWave)
        a("s_cbranch_scc1 L_notask")
        a("v_mov_b32 v%d, %d" % (vT + 1, L_CLAIM))
        a("s_cmp_lg_u32 s%d, 4" % sWave)
        a("s_cbranch_scc1 L_spin")
        a("s_waitcnt vmcnt(%d)" % (8 * D))
        a("v_readfirstlane_b32 s%d, v%d" % (sSig, vChk))
        a("s_cmp_lg_u32 s%d, -1" % sSig)
        a("s_cbranch_scc1 L_have")
        a("s_waitcnt vmcnt(0)")
        a("v_readfirstlane_b32 s%d, v%d" % (sSig, vChk))
        a("L_have:")
        a("s_lshr_b32 s%d, s2, 3" % sT)
        a("s_and_b32 s%d, s%d, %d" % (sT, sT, nsh - 1))
        a("s_mul_i32 s%d, s%d, %d" % (sT, sT, NFF // nsh))
        a("s_add_u32 s%d, s%d, s%d" % (sT, sT, sSig))
        a("s_cmp_lt_u32 s%d, %d" % (sSig, NFF // nsh))
        a("s_cselect_b32 s%d, s%d, %d" % (sSig, sT, NFF))
        a("s_add_u32 s%d, s%d, 1" % (sT, sSig))
        a("v_mov_b32 v%d, s%d" % (vT + 2, sT))
        a("s_mov_b64 exec, 1")
        a("ds_write_b32 v%d, v%d" % (vT + 1, vT + 2))
        a("s_mov_b64 exec, -1")
        a("s_branch L_known")
        a("L_spin:")
        a("ds_read_b32 v%d, v%d" % (vT + 2, vT + 1))
        a("s_waitcnt lgkmcnt(0)")
        a("v_readfirstlane_b32 s%d, v%d" % (sSig, vT + 2))
        a("s_cmp_eq_u32 s%d, 0" % sSig)
        a("s_cbranch_scc1 L_spin")
        a("s_sub_u32 s%d, s%d, 1" % (sSig, sSig))
        a("L_known:")
        a("s_cmp_ge_u32 s%d, %d" % (sSig, 0 if "notask" in abl else NFF))
        a("s_cbranch_scc1 L_notask")
        a("s_mov_b32 s%d, 1" % sTask)
        sWy = sT + 9
        a("s_sub_u32 s%d, s%d, 4" % (sWy, sWave))
        a("s_lshl_b32 s%d, s%d, 6" % (sT, sSig))
        srd(rW1, sW1, sT, 1835008, sT)
        a("s_lshl_b32 s%d, s%d, 15" % (sT + 1, sSig))
        srd(rW2, sW2, sT + 1, 32768)
        a("s_add_u32 s%d, s%d, s%d" % (sB1, sB1, sT)); a("s_addc_u32 s%d, s%d, 0" % (sB1 + 1, sB1 + 1))
        a("s_lshl_b32 s%d, s%d, 7" % (sT + 2, sWy))
        a("v_lshrrev_b32 v%d, 2, v%d" % (vT + 1, vI))
        a("v_lshlrev_b32 v%d, 5, v%d" % (vT + 1, vT + 1))
        a("v_lshl_add_u32 v%d, v%d, 2, v%d" % (vT + 1, vG, vT + 1))
        a("v_add_u32 v%d, s%d, v%d" % (vT + 1, sT + 2, vT + 1))
        a("s_movk_i32 s%d, 3584" % (sT + 3))
        a("v_mul_lo_u32 v%d, v%d, s%d" % (vT + 1, vT + 1, sT + 3))
        a("v_and_b32 v%d, 3, v%d" % (vT + 2, vI))
        a("v_lshl_add_u32 v%d, v%d, 4, v%d" % (vT + 1, vT + 2, vT + 1))
        a("v_mov_b32 v%d, v%d" % (vF1, vT + 1))
        a("v_lshlrev_b32 v%d, 12, v%d" % (vF2, vG))
        a("v_lshl_add_u32 v%d, v%d, 4, v%d" % (vF2, vI, vF2))
        a("s_lshl_b32 s%d, s%d, 8" % (sT + 2, sWy))
        a("v_add_u32 v%d, s%d, v%d" % (vF2, sT + 2, vF2))
        a("v_and_b32 v%d, 31, v%d" % (vF3, vLane))
        a("v_lshlrev_b32 v%d, 1, v%d" % (vF3, vF3))
        a("L_notask:")
        if stamps:
            a("s_cmp_lt_u32 s%d, 4" % sWave)
            a("s_cbranch_scc1 L_nosig")
            a("s_mov_b32 s%d, s%d" % (sXS + 4, sSig)); a("s_mov_b32 s%d, 0" % (sXS + 5))
            a("L_nosig:")
    tail_on[0] = ffn
    pending[:] = list(ffn_loads) if ffn else []
    for it in range(D): tile((rem + it) % D, False)
    if ffn and pending: slot(len(pending))
    tail_on[0] = False
    xs(3)

    for k in range(4): a("v_readlane_b32 s%d, v%d, %d" % (sT + k, vL, 16 * k))
    a("s_lshl_b32 s%d, s%d, 3" % (sT + 4, sWave))
    a("v_mov_b32 v%d, s%d" % (vT + 1, sT))
    a("v_mov_b32 v%d, s%d" % (vT + 2, sT + 4))
    for k in range(1, 4): a("v_add_f32 v%d, s%d, v%d" % (vT + 1, sT + k, vT + 1))
    a("v_mov_b32 v%d, v%d" % (vT, vM))
    a("s_mov_b32 exec_hi, 0")
    a("ds_write_b128 v%d, %s offset:%d" % (vEPa, vr(vO), L_EP))
    a("s_mov_b32 exec_lo, 1")
    a("ds_write_b64 v%d, v[%d:%d] offset:%d" % (vT + 2, vT, vT + 1, L_ML))
    a("s_mov_b64 exec, -1")
    a("s_cmp_lt_u32 s%d, 4" % sWave)
    a("s_cbranch_scc1 L_old")
    a("s_waitcnt lgkmcnt(0)")
    a("s_barrier")
    if not ffn:
        a("s_branch L_fin")
    else:
        a("s_cmp_eq_u32 s%d, 0" % sTask)
        a("s_cbranch_scc1 L_fin")
        fX = vKV; fPl = vQ; fPh = vQ + 8
        sWy = sT + 9
        a("s_sub_u32 s%d, s%d, 4" % (sWy, sWave))
        a("s_lshl_b32 s%d, s%d, 7" % (sT + 2, sWy))
        a("v_lshrrev_b32 v%d, 3, v%d" % (vT, vI))
        a("v_lshlrev_b32 v%d, 5, v%d" % (vT, vT))
        a("v_lshl_add_u32 v%d, v%d, 2, v%d" % (vT, vG, vT))
        a("v_add_u32 v%d, s%d, v%d" % (vT, sT + 2, vT))
        a("v_lshlrev_b32 v%d, 1, v%d" % (vT, vT))
        for b in range(4):
            for hh_ in range(2):
                for u in range(2):
                    r0 = fX + 8 * b + 4 * hh_ + 2 * u
                    a("ds_read_b64 v[%d:%d], v%d offset:%d" % (r0, r0 + 1, vT, L_XS + 1024 * b + 128 * hh_ + 32 * u))
        a("v_lshrrev_b32 v%d, 2, v%d" % (vT + 4, vI))
        a("v_lshlrev_b32 v%d, 7, v%d" % (vT + 4, vT + 4))
        a("v_and_b32 v%d, 3, v%d" % (vT + 6, vI))
        a("v_lshl_add_u32 v%d, v%d, 5, v%d" % (vT + 4, vT + 6, vT + 4))
        a("v_and_b32 v%d, 1, v%d" % (vT + 6, vG))
        a("v_lshl_add_u32 v%d, v%d, 4, v%d" % (vT + 4, vT + 6, vT + 4))
        a("s_lshl_b32 s%d, s%d, 11" % (sT + 2, sWy))
        a("v_add_u32 v%d, s%d, v%d" % (vT + 4, sT + 2, vT + 4))
        a("s_mov_b32 s%d, 0x01000100" % (sT + 6)); a("s_mov_b32 s%d, 0x03020302" % (sT + 7))
        a("s_waitcnt vmcnt(9) lgkmcnt(0)")
        for b in range(4):
            for hh_ in range(2):
                for u in range(2):
                    for t in range(4):
                        src = fX + 8 * b + 4 * hh_ + 2 * u + t // 2
                        a("v_perm_b32 v%d, v%d, v%d, s%d" % (vQ + 8 * hh_ + 4 * u + t, src, src, sT + 6 + (t & 1)))
            gemv(8, lambda n: fW1 + 4 * n, lambda n: fPl + n, vS)
            gemv(8, lambda n: fW1 + 4 * n, lambda n: fPh + n, vP)
            a("s_mov_b32 exec_lo, 0x000f000f"); a("s_mov_b32 exec_hi, 0x00f000f0")
            a("ds_write_b128 v%d, %s offset:%d" % (vT + 4, vr(vS), L_HP + 512 * b))
            a("s_mov_b32 exec_lo, 0x0f000f00"); a("s_mov_b32 exec_hi, 0xf000f000")
            a("ds_write_b128 v%d, %s offset:%d" % (vT + 4, vr(vP), L_HP + 512 * b))
            a("s_mov_b64 exec, -1")
        a("s_waitcnt lgkmcnt(0)")
        a("s_barrier")
        a("v_and_b32 v%d, 31, v%d" % (vT + 4, vLane))
        a("v_lshlrev_b32 v%d, 2, v%d" % (vT + 4, vT + 4))
        a("v_lshrrev_b32 v%d, 5, v%d" % (vT + 6, vLane))
        a("v_lshl_add_u32 v%d, v%d, 8, v%d" % (vT + 6, vT + 6, vT + 4))
        a("s_lshl_b32 s%d, s%d, 9" % (sT + 2, sWy))
        a("v_add_u32 v%d, s%d, v%d" % (vT + 6, sT + 2, vT + 6))
        a("v_add_u32 v%d, %d, v%d" % (vT + 6, L_HP, vT + 6))
        for w in range(4):
            a("ds_read2_b32 v[%d:%d], v%d offset0:%d offset1:%d" % (vQ + 2 * w, vQ + 2 * w + 1, vT + 6, 0, 32) if w == 0 else
              "v_add_u32 v%d, 2048, v%d\nds_read2_b32 v[%d:%d], v%d offset0:0 offset1:32" % (vT + 6, vT + 6, vQ + 2 * w, vQ + 2 * w + 1, vT + 6))
        a("s_waitcnt vmcnt(0) lgkmcnt(0)")
        for w in range(4): a("v_add_f32 v%d, v%d, v%d" % (vQ + 2 * w, vQ + 2 * w, vQ + 2 * w + 1))
        a("v_add_f32 v%d, v%d, v%d" % (vQ, vQ, vQ + 2)); a("v_add_f32 v%d, v%d, v%d" % (vQ + 4, vQ + 4, vQ + 6))
        r = vQ
        a("v_add_f32 v%d, v%d, v%d" % (r, vQ, vQ + 4))
        a("v_mov_b32 v%d, v%d" % (r + 1, r))
        a("v_permlane32_swap_b32 v%d, v%d" % (r, r + 1))
        a("v_add_f32 v%d, v%d, v%d" % (r, r, r + 1))
        a("v_cvt_pk_bf16_f32 v%d, v%d, v%d" % (r, r, r))
        a("v_and_b32 v%d, 0xffff0000, v%d" % (r, r))
        a("v_lshlrev_b32 v%d, 16, v%d" % (vB1, vB1))
        a("v_add_f32 v%d, v%d, v%d" % (r, r, vB1))
        a("v_cvt_pk_bf16_f32 v%d, v%d, v%d" % (r, r, r))
        a("v_and_b32 v%d, 0xffff0000, v%d" % (r, r))
        a("v_max_f32 v%d, 0, v%d" % (r, r))
        a("v_mul_f32 v%d, v%d, v%d" % (r, r, r))
        a("v_cvt_pk_bf16_f32 v%d, v%d, v%d" % (r, r, r))
        a("s_lshl_b32 s%d, s%d, 7" % (sT + 2, sWy))
        a("v_add_u32 v%d, s%d, v%d" % (vT + 4, sT + 2, vT + 4))
        a("s_mov_b32 exec_hi, 0")
        a("ds_write_b32 v%d, v%d offset:%d" % (vT + 4, r, L_HH))
        a("s_mov_b32 exec_hi, -1")
        a("s_waitcnt lgkmcnt(0)")
        a("s_barrier")
        a("v_lshlrev_b32 v%d, 4, v%d" % (vT + 4, vG))
        for b in range(4):
            for u in range(2): a("ds_read_b128 %s, v%d offset:%d" % (vr(fX + 8 * b + 4 * u), vT + 4, L_HH + 128 * b + 64 * u))
        a("v_lshlrev_b32 v%d, 5, v%d" % (vT + 6, vI))
        a("v_lshl_add_u32 v%d, v%d, 4, v%d" % (vT + 6, vG, vT + 6))
        a("s_lshl_b32 s%d, s%d, 9" % (sT + 2, sWy))
        a("v_add_u32 v%d, s%d, v%d" % (vT + 6, sT + 2, vT + 6))
        a("s_lshl_b32 s%d, s%d, 11" % (sT + 2, sSig)); a("s_add_u32 s%d, s%d, 0x%x" % (sT + 2, sT + 2, WS_YF))
        a("s_add_u32 s%d, s%d, s%d" % (sY, sWs, sT + 2)); a("s_addc_u32 s%d, s%d, 0" % (sY + 1, sWs + 1))
        a("s_waitcnt lgkmcnt(0)")
        for b in range(4):
            acc = vS if b & 1 == 0 else vP
            gemv(8, lambda n: fW2 + 4 * n, lambda n: fX + 8 * b + n, acc)
            a("s_mov_b32 exec_hi, 0")
            a("global_store_dwordx4 v%d, %s, %s%s" % (vT + 6, vr(acc), sp(sY), P(stpol)))
            a("s_mov_b32 exec_hi, -1")
            if b < 3:
                a("s_add_u32 s%d, s%d, %d" % (sY, sY, NFF * 2048)); a("s_addc_u32 s%d, s%d, 0" % (sY + 1, sY + 1))
        a("s_branch L_fin")

    a("L_old:")
    if warm:
        a("s_cmp_lg_u32 s%d, 0" % sWave)
        a("s_cbranch_scc1 L_nowarm")
        a("v_mov_b32 v%d, 0" % vT)
        a("global_load_dword v%d, v%d, %s" % (vKV + 0, vT, sp(sDbg)))
        a("global_load_dword v%d, v%d, %s" % (vKV + 1, vT, sp(sY)))
        a("v_mov_b32 v%d, 0x%x" % (vT + 1, WS_ML))
        a("global_load_dword v%d, v%d, %s" % (vKV + 2, vT + 1, sp(sWs)))
        a("v_mov_b32 v%d, 0x%x" % (vT + 2, WS_YF))
        a("global_load_dword v%d, v%d, %s" % (vKV + 3, vT + 2, sp(sWs)))
        a("global_load_dword v%d, v%d, %s" % (vKV + 4, vT, sp(sW1)))
        a("global_load_dword v%d, v%d, %s" % (vKV + 5, vT, sp(sW2)))
        a("global_load_dword v%d, v%d, %s" % (vKV + 6, vT, sp(sB1)))
        a("global_load_dword v%d, v%d, %s" % (vKV + 7, vT, sp(sWo)))
        a("s_waitcnt vmcnt(0)")
        a("L_nowarm:")
    if ffn:
        a("s_lshl_b32 s%d, s%d, 10" % (sT, sWave))
        a("v_lshl_add_u32 v%d, v%d, 4, s%d" % (vT, vLane, sT))
        a("global_load_dwordx4 %s, v%d, %s" % (vr(vS), vT, sp(sX0)))
        a("s_waitcnt vmcnt(0)")
        a("ds_write_b128 v%d, %s offset:%d" % (vT, vr(vS), L_XS))
        a("s_waitcnt lgkmcnt(0)")
    a("v_mov_b32 v%d, %d" % (vT + 1, L_CLAIM))
    a("L_worel:")
    a("ds_read_b32 v%d, v%d offset:4" % (vT + 2, vT + 1))
    a("s_waitcnt lgkmcnt(0)")
    a("v_readfirstlane_b32 s%d, v%d" % (sT, vT + 2))
    a("s_cmp_eq_u32 s%d, 0" % sT)
    a("s_cbranch_scc1 L_worel")
    a("s_mov_b32 s%d, 0" % (sT + 8))
    for n in range(32):
        u, t = divmod(n, 4)
        a("buffer_load_dwordx4 %s, v%d, %s, s%d offen offset:%d%s" % (vr(vWO + 4 * n), vWoff, sq(rWo), sT + 8, 1024 * t, P(wopol)))
        if t == 3 and n < 31: a("s_add_u32 s%d, s%d, 16384" % (sT + 8, sT + 8))
    a("v_mov_b32 v%d, 0" % vT)
    a("v_lshlrev_b32 v%d, 2, v%d" % (vT + 1, vLane))
    a("s_waitcnt vmcnt(0) lgkmcnt(0)")
    a("s_barrier")
    xs(2)
    tm = vQ; to = vPP
    for k in range(4): a("ds_read_b128 %s, v%d offset:%d" % (vr(tm + 4 * k), vT, L_ML + 16 * k))
    for w in range(8):
        a("ds_read2st64_b32 v[%d:%d], v%d offset0:%d offset1:%d" % (to + 2 * w, to + 2 * w + 1, vT + 1, L_EP // 256 + 2 * w, L_EP // 256 + 2 * w + 1))
    a("s_waitcnt lgkmcnt(8)")
    a("v_max3_f32 v%d, v%d, v%d, v%d" % (vM, tm, tm + 2, tm + 4))
    a("v_max3_f32 v%d, v%d, v%d, v%d" % (vM, vM, tm + 6, tm + 8))
    a("v_max3_f32 v%d, v%d, v%d, v%d" % (vM, vM, tm + 10, tm + 12))
    a("v_max_f32 v%d, v%d, v%d" % (vM, vM, tm + 14))
    a("v_mul_f32 v%d, s%d, v%d" % (vMC, sC, vM))
    for w in range(8): a("v_fma_f32 v%d, v%d, s%d, -v%d" % (tm + 2 * w, tm + 2 * w, sC, vMC))
    for w in range(8): a("v_exp_f32 v%d, v%d" % (tm + 2 * w, tm + 2 * w))
    a("s_waitcnt lgkmcnt(0)")
    for k in range(2): a("v_mul_f32 v%d, v%d, v%d" % (vT + 2 + k, tm, to + k))
    for w in range(1, 8):
        for k in range(2): a("v_fmac_f32 v%d, v%d, v%d" % (vT + 2 + k, tm + 2 * w, to + 2 * w + k))
    for k in range(2): a("v_cvt_pk_bf16_f32 v%d, v%d, v%d" % (vT + 2 + k, vT + 2 + k, vT + 2 + k))
    a("ds_write2st64_b32 v%d, v%d, v%d offset0:0 offset1:1" % (vPriv, vT + 2, vT + 3))
    a("v_mul_f32 v%d, v%d, v%d" % (vL, tm, tm + 1))
    for w in range(1, 8): a("v_fmac_f32 v%d, v%d, v%d" % (vL, tm + 2 * w, tm + 2 * w + 1))
    a("s_waitcnt lgkmcnt(0)")
    for u in range(8): a("ds_read_b128 %s, v%d offset:%d" % (vr(vPP + 4 * u), vPrd, 64 * u))
    a("s_waitcnt lgkmcnt(7)")
    gemv(32, lambda n: vWO + 4 * n, lambda n: vPP + n, vS,
         waits=lambda n: a("s_waitcnt lgkmcnt(%d)" % max(0, 7 - (n + 1) // 4)) if (n + 1) % 4 == 0 and n < 31 else None)
    a("s_mov_b32 exec_hi, 0")
    xs(4)
    a("global_store_dwordx4 v%d, %s, %s%s" % (vYoff, vr(vS), sp(sY), P(stpol)))
    a("s_mov_b64 exec, -1")
    a("s_cmp_lg_u32 s%d, 0" % sWave)
    a("s_cbranch_scc1 L_w0done")
    a("v_mov_b32 v%d, s%d" % (vT + 4, sGate))
    a("v_rcp_f32 v%d, v%d" % (vT + 5, vT + 4))
    a("v_sub_f32 v%d, 1.0, v%d" % (vT + 4, vT + 4))
    a("v_mul_f32 v%d, v%d, v%d" % (vT + 3, vL, vT + 5))
    a("v_mov_b32 v%d, v%d" % (vT + 2, vMC))
    a("s_lshl_b32 s%d, s%d, 3" % (sT + 2, sRow)); a("s_add_u32 s%d, s%d, 0x%x" % (sT + 2, sT + 2, WS_ML))
    a("v_mov_b32 v%d, s%d" % (vT + 6, sT + 2))
    a("s_mov_b64 exec, 1")
    a("global_store_dwordx2 v%d, v[%d:%d], %s%s" % (vT + 6, vT + 2, vT + 3, sp(sWs), P(stpol)))
    a("s_and_b32 s%d, s%d, 63" % (sT + 3, sRow))
    a("s_cmp_lg_u32 s%d, 0" % (sT + 3))
    a("s_cbranch_scc1 L_nog")
    a("s_lshl_b32 s%d, s%d, 2" % (sT + 2, sB)); a("s_add_u32 s%d, s%d, 0x%x" % (sT + 2, sT + 2, WS_G))
    a("v_mov_b32 v%d, s%d" % (vT + 6, sT + 2))
    a("global_store_dword v%d, v%d, %s%s" % (vT + 6, vT + 4, sp(sWs), P(stpol)))
    a("L_nog:")
    a("s_mov_b64 exec, -1")
    a("L_w0done:")
    if stamps:
        a("s_cmp_lg_u32 s%d, 0" % sWave)
        a("s_cbranch_scc1 L_nost")
        a("s_mov_b64 exec, 1")
        a("s_memrealtime %s" % sp(sStamp + 2))
        a("s_waitcnt lgkmcnt(0)")
        for k in range(4): a("v_mov_b32 v%d, s%d" % (vQ + k, sStamp + k))
        a("s_lshl_b32 s%d, s2, 4" % sT); a("s_add_u32 s%d, s%d, 0x%x" % (sT, sT, WS_STAMP))
        a("v_mov_b32 v%d, s%d" % (vT + 2, sT))
        a("global_store_dwordx4 v%d, %s, %s" % (vT + 2, vr(vQ), sp(sWs)))
        a("s_mov_b64 exec, -1")
        a("L_nost:")
    a("L_fin:")
    if stamps:
        a("s_mov_b64 exec, 1")
        xs(5)
        a("s_waitcnt lgkmcnt(0)")
        for k in range(NXS):
            a("s_lshl_b32 s%d, s2, 3" % sT); a("s_add_u32 s%d, s%d, s%d" % (sT, sT, sWave)); a("s_lshl_b32 s%d, s%d, 3" % (sT, sT))
            a("s_add_u32 s%d, s%d, 0x%x" % (sT, sT, WS_STAMP + 0x40000 + 0x4000 * k))
            a("v_mov_b32 v%d, s%d" % (vT + 2, sT))
            a("v_mov_b32 v%d, s%d" % (vQ + 4, sXS + 2 * k)); a("v_mov_b32 v%d, s%d" % (vQ + 5, sXS + 2 * k + 1))
            a("global_store_dwordx2 v%d, v[%d:%d], %s" % (vT + 2, vQ + 4, vQ + 5, sp(sWs)))
            a("s_nop 1")
    a("L_done:")
    a("s_endpgm")
    for k in tramps:
        a("L_tr%d:" % k)
        a("s_swappc_b64 %s, %s" % (sp(sRet), sp(sRare)))
        a("s_branch L_back%d" % k)
    a("L_rare:")
    for k in range(4): a("v_readlane_b32 s%d, v%d, %d" % (sT + k, vT, 16 * k))
    a("v_mov_b32 v%d, s%d" % (vT + 1, sT))
    for k in range(1, 4): a("v_max_f32 v%d, s%d, v%d" % (vT + 1, sT + k, vT + 1))
    a("v_max_f32 v%d, v%d, v%d" % (vT + 1, vT + 1, vM))
    a("v_sub_f32 v%d, v%d, v%d" % (vT + 2, vM, vT + 1))
    a("v_mul_f32 v%d, s%d, v%d" % (vT + 2, sC, vT + 2))
    a("v_exp_f32 v%d, v%d" % (vT + 2, vT + 2))
    a("v_mov_b32 v%d, v%d" % (vM, vT + 1))
    a("v_mul_f32 v%d, s%d, v%d" % (vMC, sC, vT + 1))
    for r in range(4): a("v_mul_f32 v%d, v%d, v%d" % (vO + r, vO + r, vT + 2))
    a("v_mul_f32 v%d, v%d, v%d" % (vL, vL, vT + 2))
    a("s_nop 1")
    a("s_setpc_b64 %s" % sp(sRet))
    body1 = a.finish()

    c = Asm()
    c("%s:" % K2)
    c("s_cmp_ge_u32 s2, 64")
    c("s_cbranch_scc1 L2_done")
    c("s_load_dwordx2 s[4:5], s[0:1], 88")
    c("s_load_dwordx2 s[6:7], s[0:1], 104")
    c("s_load_dwordx2 s[32:33], s[0:1], 72")
    if stamps: c("s_memrealtime s[36:37]")
    c("s_lshr_b32 s8, s2, 4")
    c("s_and_b32 s9, s2, 15")
    c("v_lshrrev_b32 v1, 3, v0")
    c("v_and_b32 v2, 7, v0")
    c("v_lshlrev_b32 v3, 14, v1")
    c("v_lshl_add_u32 v3, v2, 4, v3")
    c("v_lshlrev_b32 v4, 11, v1")
    c("v_lshl_add_u32 v4, v2, 4, v4")
    c("v_lshlrev_b32 v5, 6, v1")
    c("v_lshlrev_b32 v6, 3, v2")
    c("s_lshl_b32 s10, s8, 17"); c("s_lshl_b32 s11, s9, 7"); c("s_add_u32 s10, s10, s11")
    c("s_mul_i32 s12, s8, %d" % (NFF * 2048)); c("s_add_u32 s12, s12, s11"); c("s_add_u32 s12, s12, 0x%x" % WS_YF)
    c("s_lshl_b32 s13, s8, 9"); c("s_add_u32 s13, s13, 0x%x" % WS_ML)
    c("s_movk_i32 s24, 4096"); c("s_movk_i32 s25, 8192"); c("s_movk_i32 s26, 12288")
    for k in range(1, 7): c("s_mov_b32 s%d, %d" % (41 + k, 16384 * k))
    c("s_lshl_b32 s31, s8, 2"); c("s_add_u32 s31, s31, 0x%x" % WS_G)
    c("v_mov_b32 v7, s31")
    c("s_lshl_b32 s35, s9, 6")
    c("s_waitcnt lgkmcnt(0)")
    c("s_add_u32 s14, s6, s13"); c("s_addc_u32 s15, s7, 0")
    for k in range(4): c("global_load_dwordx4 %s, v5, s[14:15] offset:%d" % (vr(8 + 4 * k), 16 * k))
    c("s_add_u32 s16, s6, s10"); c("s_addc_u32 s17, s7, 0"); c("s_mov_b32 s18, 0x20000"); c("s_mov_b32 s19, 0x20000")
    for j in range(8):
        so = "0" if j < 2 else "s%d" % (24 + j // 2 - 1)
        c("buffer_load_dwordx4 %s, v3, s[16:19], %s offen offset:%d" % (vr(24 + 4 * j), so, 2048 * (j & 1)))
    c("s_add_u32 s20, s6, s12"); c("s_addc_u32 s21, s7, 0"); c("s_sub_u32 s22, %d, s11" % (NFF * 2048)); c("s_mov_b32 s23, 0x20000")
    for k in range(7):
        c("buffer_load_dwordx4 %s, v4, s[20:23], %s offen" % (vr(88 + 4 * k), "0" if k == 0 else "s%d" % (41 + k)))
    c("global_load_dword v72, v7, s[6:7]")
    c("s_add_u32 s32, s32, s35"); c("s_addc_u32 s33, s33, 0")
    c("global_load_dwordx2 v[74:75], v6, s[32:33]")
    c("s_lshl_b32 s34, s8, 10"); c("s_add_u32 s34, s34, s35")
    c("s_add_u32 s4, s4, s34"); c("s_addc_u32 s5, s5, 0")
    c("s_waitcnt vmcnt(17)")
    for p in range(4):
        r = 8 + 4 * p
        c("v_max_f32 v84, v%d, v%d" % (r, r + 2))
        c("v_sub_f32 v%d, v%d, v84" % (r, r)); c("v_sub_f32 v%d, v%d, v84" % (r + 2, r + 2))
        c("v_exp_f32 v%d, v%d" % (r, r)); c("v_exp_f32 v%d, v%d" % (r + 2, r + 2))
        c("v_mul_f32 v%d, v%d, v%d" % (r + 1, r + 1, r))
        c("v_fmac_f32 v%d, v%d, v%d" % (r + 1, r + 3, r + 2))
        c("v_rcp_f32 v%d, v%d" % (r + 1, r + 1))
        c("v_mul_f32 v%d, v%d, v%d" % (r, r, r + 1)); c("v_mul_f32 v%d, v%d, v%d" % (r + 2, r + 2, r + 1))
    c("s_waitcnt vmcnt(9)")
    for r in range(4): c("v_mul_f32 v%d, v8, v%d" % (84 + r, 24 + r))
    for j in range(1, 8):
        sc = 8 + 4 * (j // 2) + 2 * (j & 1)
        for r in range(4): c("v_fmac_f32 v%d, v%d, v%d" % (84 + r, sc, 24 + 4 * j + r))
    c("s_waitcnt vmcnt(0)")
    for r in range(4): c("v_add_f32 v%d, v%d, v%d" % (56 + r, 88 + r, 92 + r))
    for k in range(2, 7):
        for r in range(4): c("v_add_f32 v%d, v%d, v%d" % (56 + r, 56 + r, 88 + 4 * k + r))
    c("v_lshlrev_b32 v76, 16, v74"); c("v_and_b32 v77, 0xffff0000, v74"); c("v_lshlrev_b32 v78, 16, v75"); c("v_and_b32 v79, 0xffff0000, v75")
    c("v_cmp_eq_u32 vcc, 0, v1")
    for r in range(4): c("v_cndmask_b32 v%d, 0, v%d, vcc" % (76 + r, 76 + r))
    for r in range(4): c("v_add_f32 v%d, v%d, v%d" % (56 + r, 56 + r, 76 + r))
    for r in range(4): c("v_fmac_f32 v%d, v72, v%d" % (84 + r, 56 + r))
    for r in range(4): c("v_add_f32_dpp v%d, v%d, v%d row_ror:8 row_mask:0xf bank_mask:0xf" % (84 + r, 84 + r, 84 + r))
    for sw in ("v_permlane16_swap_b32", "v_permlane32_swap_b32"):
        for r in range(4): c("v_mov_b32 v%d, v%d" % (60 + r, 84 + r))
        for r in range(4): c("%s v%d, v%d" % (sw, 84 + r, 60 + r))
        for r in range(4): c("v_add_f32 v%d, v%d, v%d" % (84 + r, 84 + r, 60 + r))
    c("v_cvt_pk_bf16_f32 v84, v84, v85")
    c("v_cvt_pk_bf16_f32 v85, v86, v87")
    c("s_mov_b64 exec, 0xff")
    c("global_store_dwordx2 v6, v[84:85], s[4:5]")
    if stamps:
        c("s_waitcnt vmcnt(0)")
        c("s_memrealtime s[38:39]")
        c("s_waitcnt lgkmcnt(0)")
        c("s_mov_b64 exec, 0xf")
        c("v_and_b32 v1, 3, v0")
        c("s_lshl_b32 s34, s2, 2")
        c("v_add_u32 v1, s34, v1")
        c("v_lshlrev_b32 v1, 3, v1")
        for k in range(2):
            c("v_add_u32 v2, 0x%x, v1" % (WS_STAMP + 0x10000 + 0x1000 * (5 + k)))
            c("v_mov_b32 v8, s%d" % (36 + 2 * k)); c("v_mov_b32 v9, s%d" % (37 + 2 * k))
            c("global_store_dwordx2 v2, v[8:9], s[6:7]")
            c("s_nop 1")
    c("L2_done:")
    c("s_endpgm")
    body2 = c.finish()

    hdr = open("cdna_kernels/%s.s.ref" % NAME).read().split("; Override launch")[0]
    out = hdr
    out += "; @launch kernel=%s grid=(256,1,1) block=(%d,1,1) lds=%d\n" % (K1, 64 * W, L_END)
    out += "; @launch kernel=%s grid=(64,1,1) block=(64,1,1) lds=0\n" % K2
    out += '.amdgcn_target "amdgcn-amd-amdhsa--gfx950"\n.text\n'
    for k, body in ((K1, body1), (K2, body2)):
        out += ".globl %s\n.p2align 8\n.type %s,@function\n" % (k, k) + body
    out += '.section .rodata,"a"\n'
    for k, nv, ns in ((K1, NV, 100), (K2, 116, 56)):
        out += ".p2align 6\n.amdhsa_kernel %s\n" % k
        out += "  .amdhsa_next_free_vgpr %d\n  .amdhsa_next_free_sgpr %d\n  .amdhsa_accum_offset %d\n" % (nv, ns, (nv + 3) // 4 * 4)
        out += "  .amdhsa_group_segment_fixed_size 0\n  .amdhsa_kernarg_size 112\n  .amdhsa_user_sgpr_count 2\n"
        out += "  .amdhsa_user_sgpr_kernarg_segment_ptr 1\n  .amdhsa_system_sgpr_workgroup_id_x 1\n"
        out += "  .amdhsa_float_denorm_mode_32 3\n"
        out += ".end_amdhsa_kernel\n"
    return out

if __name__ == "__main__":
    import argparse
    ap = argparse.ArgumentParser()
    ap.add_argument("-o", default="cdna_kernels/%s.s" % NAME)
    ap.add_argument("--D", type=int, default=2)
    ap.add_argument("--kvpol", default="nt")
    ap.add_argument("--wqpol", default="")
    ap.add_argument("--wopol", default="")
    ap.add_argument("--fpol", default="")
    ap.add_argument("--stpol", default="")
    ap.add_argument("--stamps", action="store_true")
    ap.add_argument("--noffn", action="store_true")
    ap.add_argument("--abl", default="")
    ap.add_argument("--early", action="store_true")
    ap.add_argument("--touch", action="store_true")
    ap.add_argument("--npre", type=int, default=0)
    ap.add_argument("--nsh", type=int, default=8)
    ap.add_argument("--warm", action="store_true")
    x = ap.parse_args()
    open(x.o, "w").write(gen(D=x.D, kvpol=x.kvpol, wqpol=x.wqpol, wopol=x.wopol, fpol=x.fpol, stpol=x.stpol,
                             stamps=x.stamps, ffn=not x.noffn, abl=tuple(x.abl.split(",")), early=x.early, touch=x.touch, npre=x.npre, nsh=x.nsh, warm=x.warm))
    print("wrote", x.o)
```

```python
import sys, os, struct
sys.path.insert(0, os.path.dirname(os.path.abspath(__file__)))
from asmlib import Asm, VmQueue

NAME = "gated_mix__mha_block_cached__dense_activation_squared_relu__decode"
K1 = NAME + "_kernel"
K2 = "final_reduce_kernel"

def fbits(x): return "0x%08x" % struct.unpack("<I", struct.pack("<f", x))[0]
LOG2E = 1.4426950408889634
CSCALE = LOG2E * (128 ** -0.5)

NFF = 56
WS_Y, WS_YF, WS_ML, WS_G = 0, 0x80000, 0x100000, 0x101000
WS_STAMP = 0x20000000
L_QP, L_PRIV, L_EP, L_ML, L_CLAIM, L_HH, L_HP, L_XS, L_END = 0, 4096, 8192, 12288, 12416, 12544, 13568, 13568 + 8192, 13568 + 8192 + 4096

def vr(b, n=4): return "v[%d:%d]" % (b, b + n - 1)
def sp(b): return "s[%d:%d]" % (b, b + 1)
def sq(b): return "s[%d:%d]" % (b, b + 3)

def gen(D=2, kvpol="nt", wqpol="", wopol="", fpol="", stpol="", stamps=False, ffn=True, abl=(), early=False, touch=False, pretab=(0,) * 8, preidx="r", nsh=8, warm=False, dry=False, pfk2=False, k2w=False):
    W = 8
    NT = 4096 // 16 // W
    a = Asm()
    P = lambda p: (" " + p) if p else ""
    MF = "v_mfma_f32_16x16x32_bf16"
    vLane, vG, vI = 1, 2, 3
    vKoff, vVoff, vL, vM, vMC = 4, 5, 6, 7, 8
    vEPa, vPriv, vTmp = 9, 10, 11
    vMask = 12
    vQ = 16; vS = 32; vP = 36; vA = [40, 44]; vO = 48; vT = 52
    vWoff, vYoff, vPrd, vOne = 60, 61, 62, 63
    vChk = vT + 7
    vKV = 64
    vWA = vKV + 32 * D
    NV = max(vWA + 64, 64 + 128 + 32)
    assert NV <= 256
    Kb = lambda d: vKV + 32 * d
    Vb = lambda d: vKV + 32 * d + 16
    vWO = vKV
    vPP = vWO + 128
    vTch = Vb(D - 1)
    sX, sK, sV, sWq, sWo, sBx, sW1, sB1 = 4, 6, 8, 10, 12, 14, 16, 18
    sW2, sB2, sGw, sOut, sDbg, sWs = 20, 22, 24, 26, 28, 30
    sWave, sH, sB, sSp, sRot, sRow = 3, 32, 33, 34, 35, 36
    sOff, sCnt, sC, sGate = 37, 38, 39, 40
    sPriv, sCb, sSig = 41, 42, 43
    sWoT, sPre, sTask = 96, 97, 98
    rK, rV, rWq, rWo = 44, 48, 52, 56
    rW1, rW2 = 44, 48
    sT = 60
    sRet, sRare = 72, 74
    sY = 76
    sX0 = 78
    sStamp = 80
    sXS = 84
    NXS = 6
    vm = VmQueue(a)
    def xs(k):
        if stamps: a("s_memrealtime %s" % sp(sXS + 2 * k))
    def srd(r, base, off, nrec, nrec_sub=None):
        a("s_add_u32 s%d, s%d, s%d" % (r, base, off)); a("s_addc_u32 s%d, s%d, 0" % (r + 1, base + 1))
        if nrec_sub is None: a("s_mov_b32 s%d, 0x%x" % (r + 2, nrec))
        else: a("s_sub_u32 s%d, 0x%x, s%d" % (r + 2, nrec, nrec_sub))
        a("s_mov_b32 s%d, 0x20000" % (r + 3))
    def gemv(nld, Wreg, Preg, acc, waits=None):
        def ands(n):
            for r in range(4): a("v_and_b32 v%d, v%d, v%d" % (vA[n & 1] + r, Preg(n), vMask + r))
        ands(0)
        for n in range(nld):
            if waits: waits(n)
            if n + 1 < nld: ands(n + 1)
            a("%s %s, %s, %s, %s" % (MF, vr(acc), vr(vA[n & 1]), vr(Wreg(n)), "0" if n == 0 else vr(acc)))

    a("%s:" % K1)
    a("s_cmp_ge_u32 s2, 256")
    a("s_cbranch_scc1 L_done")
    a("s_load_dwordx16 s[4:19], s[0:1], 0")
    a("s_load_dwordx8 s[20:27], s[0:1], 64")
    a("s_load_dwordx4 s[28:31], s[0:1], 96")
    if stamps: a("s_memrealtime %s" % sp(sStamp))
    a("v_lshrrev_b32 v%d, 6, v0" % vTmp)
    a("v_and_b32 v%d, 63, v0" % vLane)
    a("v_readfirstlane_b32 s%d, v%d" % (sWave, vTmp))
    a("v_lshrrev_b32 v%d, 4, v%d" % (vG, vLane))
    a("v_and_b32 v%d, 15, v%d" % (vI, vLane))
    a("s_and_b32 s%d, s2, 7" % sT)
    a("s_lshr_b32 s%d, s2, 3" % (sT + 1))
    a("s_and_b32 s%d, s%d, 3" % (sT + 2, sT + 1))
    a("s_lshl_b32 s%d, s%d, 2" % (sH, sT))
    a("s_add_u32 s%d, s%d, s%d" % (sH, sH, sT + 2))
    a("s_lshr_b32 s%d, s%d, 2" % (sRot, sT + 1))
    a("s_lshr_b32 s%d, s%d, 3" % (sB, sT + 1))
    a("s_and_b32 s%d, s%d, 1" % (sSp, sRot))
    a("s_add_u32 s%d, s%d, s%d" % (sT + 3, sWave, sRot)); a("s_and_b32 s%d, s%d, 7" % (sT + 3, sT + 3))
    a("s_lshl_b32 s%d, s%d, 6" % (sT + 4, sT + 3))
    a("v_lshl_add_u32 v%d, v%d, 2, s%d" % (vA[0], vG, sT + 4))
    a("v_lshlrev_b32 v%d, 13, v%d" % (vA[1], vA[0]))
    a("v_lshl_add_u32 v%d, v%d, 4, v%d" % (vA[1], vI, vA[1]))
    a("v_lshlrev_b32 v%d, 1, v%d" % (vTmp, vA[0]))
    a("v_lshlrev_b32 v%d, 4, v%d" % (vPriv, vLane))
    a("s_lshl_b32 s%d, s%d, 8" % (sT + 5, sH))
    a("s_lshl_b32 s%d, s%d, 10" % (sT + 6, sB))
    a("s_mov_b32 s%d, 0" % (sT + 8))
    a("s_waitcnt lgkmcnt(0)")
    srd(rWq, sWq, sT + 5, 4194304, sT + 5)
    if "nowq" in abl: a("s_mov_b32 s%d, 0" % (rWq + 2))
    a("s_mov_b32 s%d, s%d" % (sX0, sX)); a("s_mov_b32 s%d, s%d" % (sX0 + 1, sX + 1))
    a("s_add_u32 s%d, s%d, s%d" % (sX, sX, sT + 6)); a("s_addc_u32 s%d, s%d, 0" % (sX + 1, sX + 1))
    for u in range(4):
        vm.issue("gate", "global_load_dwordx2 v[%d:%d], v%d, %s offset:%d" % (vT + 2 * u, vT + 2 * u + 1, vTmp, sp(sX), 32 * u))
    vm.issue("gate", "global_load_dwordx4 %s, v%d, %s" % (vr(vS), vPriv, sp(sX)))
    vm.issue("gate", "global_load_dwordx4 %s, v%d, %s" % (vr(vP), vPriv, sp(sGw)))
    if touch:
        a("s_cmp_lg_u32 s%d, 0" % sWave)
        a("s_cbranch_scc1 L_notouch")
        a("s_lshl_b32 s%d, s%d, 6" % (sT + 9, sRot))
        a("v_add_u32 v%d, s%d, v%d" % (vTch, sT + 9, vLane))
        a("v_lshlrev_b32 v%d, 13, v%d" % (vTch, vTch))
        a("buffer_load_dword v%d, v%d, %s, 0 offen%s" % (vTch + 1, vTch, sq(rWq), P(wqpol)))
        a("buffer_load_dword v%d, v%d, %s, 0 offen offset:128%s" % (vTch + 2, vTch, sq(rWq), P(wqpol)))
        a("L_notouch:")
    a("v_lshlrev_b32 v%d, 8, v%d" % (vKoff, vI))
    a("v_lshl_add_u32 v%d, v%d, 4, v%d" % (vKoff, vG, vKoff))
    a("v_lshlrev_b32 v%d, 10, v%d" % (vVoff, vG))
    a("v_lshl_add_u32 v%d, v%d, 4, v%d" % (vVoff, vI, vVoff))
    a("s_lshl_b32 s%d, s%d, 5" % (sRow, sB))
    a("s_add_u32 s%d, s%d, s%d" % (sRow, sRow, sH))
    a("s_lshl_b32 s%d, s%d, 1" % (sRow, sRow))
    a("s_add_u32 s%d, s%d, s%d" % (sRow, sRow, sSp))
    a("s_lshl_b32 s%d, s%d, 20" % (sT + 3, sRow))
    srd(rK, sK, sT + 3, 0x100000)
    srd(rV, sV, sT + 3, 0x100000)
    pol = P(kvpol)
    def kload(d):
        for t in range(4):
            vm.issue("K%d" % d, "buffer_load_dwordx4 %s, v%d, %s, s%d offen offset:%d%s" % (vr(Kb(d) + 4 * t), vKoff, sq(rK), sOff, 64 * t, pol))
    def vload(d):
        for t in range(4):
            vm.issue("V%d" % d, "buffer_load_dwordx4 %s, v%d, %s, s%d offen offset:%d%s" % (vr(Vb(d) + 4 * t), vVoff, sq(rV), sOff, 256 * t, pol))
    def kv_prefetch(d0=0, d1=None):
        save = list(vm.q)
        a("s_lshl_b32 s%d, s%d, 12" % (sOff, sWave))
        if d0: a("s_add_u32 s%d, s%d, %d" % (sOff, sOff, 4096 * W * d0))
        for d in range(d0, D if d1 is None else d1):
            kload(d); vload(d)
            a("s_add_u32 s%d, s%d, %d" % (sOff, sOff, 4096 * W))
        vm.q = save
    pack = sum(p << (4 * i) for i, p in enumerate(pretab))
    npre = max(pretab)
    if preidx == "r": a("s_lshl_b32 s%d, s%d, 2" % (sPre, sRot))
    elif preidx == "h":
        a("s_and_b32 s%d, s%d, 7" % (sPre, sH)); a("s_lshl_b32 s%d, s%d, 2" % (sPre, sPre))
    elif preidx == "x":
        a("s_and_b32 s%d, s2, 7" % sPre); a("s_lshl_b32 s%d, s%d, 2" % (sPre, sPre))
    elif preidx == "hs":
        a("s_and_b32 s%d, s%d, 3" % (sPre, sH)); a("s_lshl_b32 s%d, s%d, 1" % (sPre, sPre)); a("s_add_u32 s%d, s%d, s%d" % (sPre, sPre, sSp))
        a("s_lshl_b32 s%d, s%d, 2" % (sPre, sPre))
    a("s_lshr_b32 s%d, 0x%x, s%d" % (sPre, pack, sPre))
    a("s_and_b32 s%d, s%d, 15" % (sPre, sPre))
    a("s_cmp_ge_u32 s%d, 4" % sWave)
    a("s_cselect_b32 s%d, 0, s%d" % (sPre, sPre))
    for d in range(npre):
        a("s_cmp_le_u32 s%d, %d" % (sPre, d))
        a("s_cbranch_scc1 L_pre%d" % d)
        kv_prefetch(d, d + 1)
        a("L_pre%d:" % d)
    for n in range(16):
        u, t = divmod(n, 4)
        vm.issue("wq%d" % u, "buffer_load_dwordx4 %s, v%d, %s, s%d offen%s" % (vr(vWA + 4 * n), vA[1], sq(rWq), sT + 8, P(wqpol)))
        if n < 15: a("s_add_u32 s%d, s%d, %d" % (sT + 8, sT + 8, 8192 if t < 3 else 13 * 8192))
    a("s_barrier")
    def old_prefetch():
        a("s_cmp_ge_u32 s%d, 4" % sWave)
        a("s_cbranch_scc1 L_pf1")
        for d in range(npre):
            a("s_cmp_gt_u32 s%d, %d" % (sPre, d))
            a("s_cbranch_scc1 L_pfs%d" % d)
            kv_prefetch(d, d + 1)
            a("L_pfs%d:" % d)
        if npre < D: kv_prefetch(npre)
        a("L_pf1:")
    if early: old_prefetch()
    xs(0)
    nw = [0]
    def dual_wait(tag):
        n = vm.count(tag)
        if not early:
            vm.wait(tag); return
        a("s_waitcnt vmcnt(%d)" % (n + 8 * D))
        for k in range(1, npre + 1):
            a("s_cmp_lt_u32 s%d, %d" % (sPre, k))
            a("s_cbranch_scc1 L_dx%d_%d" % (nw[0], k))
            a("s_waitcnt vmcnt(%d)" % (n + 8 * (D - k)))
            a("L_dx%d_%d:" % (nw[0], k))
        a("s_cmp_lt_u32 s%d, 4" % sWave)
        a("s_cbranch_scc1 L_dw%d" % nw[0])
        a("s_waitcnt vmcnt(%d)" % n)
        a("L_dw%d:" % nw[0]); nw[0] += 1
        vm.q = vm.q[len(vm.q) - n:] if n else []
    a("s_lshl_b32 s%d, s%d, 17" % (sT + 6, sH))
    srd(rWo, sWo, sT + 6, 131072)
    if "nowo" in abl: a("s_mov_b32 s%d, 0" % (rWo + 2))
    a("s_mov_b32 s%d, %s" % (sC, fbits(CSCALE)))
    a("s_getpc_b64 %s" % sp(sRare))
    a("L_pc:")
    a("s_add_u32 s%d, s%d, L_rare-L_pc" % (sRare, sRare))
    a("s_addc_u32 s%d, s%d, 0" % (sRare + 1, sRare + 1))
    a("v_and_b32 v%d, 7, v%d" % (vTmp, vI))
    a("v_lshrrev_b32 v%d, 1, v%d" % (vA[1] + 1, vTmp))
    a("v_and_b32 v%d, 1, v%d" % (vTmp, vTmp))
    a("v_lshlrev_b32 v%d, 4, v%d" % (vTmp, vTmp))
    a("v_mov_b32 v%d, 0xffff" % (vA[1] + 2))
    a("v_lshlrev_b32 v%d, v%d, v%d" % (vA[1] + 2, vTmp, vA[1] + 2))
    for r in range(4):
        a("v_cmp_eq_u32 vcc, %d, v%d" % (r, vA[1] + 1))
        a("v_cndmask_b32 v%d, 0, v%d, vcc" % (vMask + r, vA[1] + 2))
    a("s_add_u32 s%d, s%d, s%d" % (sCb, sWave, sRot)); a("s_and_b32 s%d, s%d, 3" % (sCb, sCb))
    a("s_lshl_b32 s%d, s%d, 8" % (sT, sCb))
    a("v_lshlrev_b32 v%d, 12, v%d" % (vWoff, vG))
    a("v_lshl_add_u32 v%d, v%d, 4, v%d" % (vWoff, vI, vWoff))
    a("v_add_u32 v%d, s%d, v%d" % (vWoff, sT, vWoff))
    a("v_lshlrev_b32 v%d, 5, v%d" % (vEPa, vI))
    a("v_lshl_add_u32 v%d, v%d, 4, v%d" % (vEPa, vG, vEPa))
    a("s_lshl_b32 s%d, s%d, 9" % (sT, sCb))
    a("v_add_u32 v%d, s%d, v%d" % (vYoff, sT, vEPa))
    a("s_lshl_b32 s%d, s%d, 9" % (sT + 11, sWave))
    a("v_add_u32 v%d, s%d, v%d" % (vEPa, sT + 11, vEPa))
    a("s_add_u32 s%d, s%d, %d" % (sPriv, sT + 11, L_PRIV))
    a("v_lshl_add_u32 v%d, v%d, 4, s%d" % (vPrd, vG, sPriv))
    a("s_lshl_b32 s%d, s%d, 11" % (sT, sRow))
    a("s_add_u32 s%d, s%d, s%d" % (sY, sWs, sT)); a("s_addc_u32 s%d, s%d, 0" % (sY + 1, sWs + 1))
    a("v_mov_b32 v%d, 1" % vOne)
    a("v_mov_b32 v%d, %s" % (vM, fbits(-3.0e38)))
    a("v_mul_f32 v%d, s%d, v%d" % (vMC, sC, vM))
    a("v_mov_b32 v%d, 0" % vL)
    for r in range(4): a("v_mov_b32 v%d, 0" % (vO + r))
    dual_wait("gate")
    a("v_mov_b32 v%d, 0" % vTmp)
    for r in range(4): a("v_dot2c_f32_bf16 v%d, v%d, v%d" % (vTmp, vS + r, vP + r))
    for m in ("quad_perm:[1,0,3,2]", "quad_perm:[2,3,0,1]", "row_half_mirror", "row_mirror"):
        a("v_add_f32_dpp v%d, v%d, v%d %s row_mask:0xf bank_mask:0xf" % (vTmp, vTmp, vTmp, m))
    for k in range(4): a("v_readlane_b32 s%d, v%d, %d" % (sT + k, vTmp, 16 * k))
    a("v_mov_b32 v%d, s%d" % (vTmp, sT))
    for k in range(1, 4): a("v_add_f32 v%d, s%d, v%d" % (vTmp, sT + k, vTmp))
    a("v_mul_f32 v%d, %s, v%d" % (vTmp, fbits(-LOG2E), vTmp))
    a("v_exp_f32 v%d, v%d" % (vTmp, vTmp))
    a("v_add_f32 v%d, 1.0, v%d" % (vTmp, vTmp))
    a("v_rcp_f32 v%d, v%d" % (vTmp, vTmp))
    a("v_readfirstlane_b32 s%d, v%d" % (sGate, vTmp))
    a("s_mov_b32 s%d, 0x01000100" % sT); a("s_mov_b32 s%d, 0x03020302" % (sT + 1))
    for u in range(4):
        for t in range(4):
            a("v_perm_b32 v%d, v%d, v%d, s%d" % (vQ + 4 * u + t, vT + 2 * u + t // 2, vT + 2 * u + t // 2, sT + (t & 1)))
    gemv(16, lambda n: vWA + 4 * n, lambda n: vQ + n, vS, waits=lambda n: dual_wait("wq%d" % (n // 4)) if n % 4 == 0 else None)
    a("s_mov_b32 exec_hi, 0")
    a("ds_write_b128 v%d, %s offset:%d" % (vEPa, vr(vS), L_QP))
    a("s_mov_b32 exec_hi, -1")
    a("v_mov_b32 v%d, %d" % (vT + 4, L_CLAIM))
    a("v_mov_b32 v%d, 0" % (vT + 6)); a("v_mov_b32 v%d, 0" % (vT + 7))
    a("s_mov_b64 exec, 1")
    a("ds_write_b64 v%d, v[%d:%d]" % (vT + 4, vT + 6, vT + 7))
    a("s_mov_b64 exec, -1")
    if not early: old_prefetch()
    a("s_waitcnt lgkmcnt(0)")
    a("s_barrier")
    a("s_cmp_lt_u32 s%d, 4" % sWave)
    a("s_cbranch_scc1 L_pf2")
    kv_prefetch()
    a("L_pf2:")
    vm.q = []
    for d in range(D): vm.note("K%d" % d, 4); vm.note("V%d" % d, 4)
    a("v_lshlrev_b32 v%d, 3, v%d" % (vTmp, vLane))
    tq = vQ
    for w in range(8):
        a("ds_read_b64 v[%d:%d], v%d offset:%d" % (tq + 2 * w, tq + 2 * w + 1, vTmp, L_QP + 512 * w))
    a("v_lshlrev_b32 v%d, 2, v%d" % (vPriv, vLane))
    a("v_add_u32 v%d, s%d, v%d" % (vPriv, sPriv, vPriv))
    a("s_waitcnt lgkmcnt(0)")
    for step in (4, 2, 1):
        for w in range(step):
            for k in range(2):
                a("v_add_f32 v%d, v%d, v%d" % (tq + 2 * w + k, tq + 2 * w + k, tq + 2 * (w + step) + k))
    a("v_cvt_pk_bf16_f32 v%d, v%d, v%d" % (vTmp, tq, tq + 1))
    a("ds_write_b32 v%d, v%d" % (vPriv, vTmp))
    a("s_waitcnt lgkmcnt(0)")
    for t in range(4):
        a("ds_read_b128 %s, v%d offset:%d" % (vr(vQ + 4 * t), vPrd, 64 * t))
    a("s_lshl_b32 s%d, s%d, 12" % (sOff, sWave))
    a("s_add_u32 s%d, s%d, %d" % (sOff, sOff, 4096 * W * D))
    a("s_waitcnt lgkmcnt(0)")
    xs(1)

    ntr = [0]; tramps = []
    tail_on = [False]; tail_extra = [0]; ntw = [0]; pending = []
    def kvwait(tag):
        if not tail_extra[0]:
            vm.wait(tag); return
        n = vm.count(tag)
        a("s_waitcnt vmcnt(%d)" % (n + tail_extra[0]))
        a("s_cmp_lg_u32 s%d, 0" % sTask)
        a("s_cbranch_scc1 L_tw%d" % ntw[0])
        a("s_waitcnt vmcnt(%d)" % n)
        a("L_tw%d:" % ntw[0]); ntw[0] += 1
        vm.q = vm.q[len(vm.q) - n:] if n else []
    def slot(k):
        if not tail_on[0] or not pending: return
        a("s_cmp_eq_u32 s%d, 0" % sTask)
        a("s_cbranch_scc1 L_sl%d" % ntw[0])
        for _ in range(min(k, len(pending))):
            for l in pending.pop(0): a(l)
            tail_extra[0] += 1
        a("L_sl%d:" % ntw[0]); ntw[0] += 1
    def tile(d, prefetch):
        kvwait("K%d" % d)
        for t in range(4):
            a("%s %s, %s, %s, %s" % (MF, vr(vS), vr(Kb(d) + 4 * t), vr(vQ + 4 * t), "0" if t == 0 else vr(vS)))
        if prefetch: kload(d)
        elif tail_on[0] and pending:
            slot(4)
            a("s_nop 7")
        a("v_max3_f32 v%d, v%d, v%d, v%d" % (vT, vS, vS + 1, vS + 2))
        a("v_max_f32 v%d, v%d, v%d" % (vT, vT, vS + 3))
        a("v_cmp_gt_f32 vcc, v%d, v%d" % (vT, vM))
        k = ntr[0]; ntr[0] += 1
        a("s_cbranch_vccnz L_tr%d" % k)
        a("L_back%d:" % k)
        tramps.append(k)
        for t in range(4): a("v_fma_f32 v%d, v%d, s%d, -v%d" % (vS + t, vS + t, sC, vMC))
        for t in range(4): a("v_exp_f32 v%d, v%d" % (vS + t, vS + t))
        a("v_add_f32 v%d, v%d, v%d" % (vT, vS, vS + 1))
        a("v_add_f32 v%d, v%d, v%d" % (vT + 1, vS + 2, vS + 3))
        for t in range(4): a("v_cvt_pk_bf16_f32 v%d, v%d, v%d" % (vP + t, vS + t, vS + t))
        a("v_add_f32 v%d, v%d, v%d" % (vT, vT, vT + 1))
        a("v_add_f32 v%d, v%d, v%d" % (vL, vL, vT))
        def ands(t):
            for r in range(4): a("v_and_b32 v%d, v%d, v%d" % (vA[t & 1] + r, vP + t, vMask + r))
        ands(0); ands(1)
        kvwait("V%d" % d)
        for t in range(4):
            a("%s %s, %s, %s, %s" % (MF, vr(vO), vr(vA[t & 1]), vr(Vb(d) + 4 * t), vr(vO)))
            if t + 2 < 4: ands(t + 2)
        if prefetch:
            vload(d)
            a("s_add_u32 s%d, s%d, %d" % (sOff, sOff, 4096 * W))
        else: slot(4)
    nl = (NT - D) // D
    rem = (NT - D) - nl * D
    m = 1
    while 2 * m <= nl - 3: m *= 2
    a("s_mul_i32 s%d, s%d, 3" % (sWoT, sH)); a("s_and_b32 s%d, s%d, %d" % (sWoT, sWoT, m - 1)); a("s_add_u32 s%d, s%d, %d" % (sWoT, sWoT, 4 if D == 2 else 3))
    a("s_cmp_lt_u32 s%d, 4" % sWave)
    a("s_cselect_b32 s%d, -1, s%d" % (sWoT, sWoT))
    a("s_cmp_eq_u32 s%d, 4" % sWave)
    a("s_cselect_b32 s%d, s%d, -1" % (sWoT, sWoT))
    a("s_cselect_b32 s%d, 2, -1" % sTask)
    a("v_mov_b32 v%d, -1" % vChk)
    a("s_mov_b32 s%d, %d" % (sCnt, nl))
    a("L_loop:")
    for it in range(D): tile(it, True)
    a("s_cmp_lg_u32 s%d, s%d" % (sCnt, sWoT))
    a("s_cbranch_scc1 L_norel")
    a("v_mov_b32 v%d, %d" % (vT + 2, L_CLAIM))
    a("s_mov_b64 exec, 1")
    a("ds_write_b32 v%d, v%d offset:4" % (vT + 2, vOne))
    a("s_mov_b64 exec, -1")
    a("L_norel:")
    if ffn:
        a("s_cmp_lg_u32 s%d, s%d" % (sCnt, sTask))
        a("s_cbranch_scc1 L_noclaim")
        a("s_lshr_b32 s%d, s2, 3" % sT)
        a("s_and_b32 s%d, s%d, %d" % (sT, sT, nsh - 1))
        a("s_lshl_b32 s%d, s%d, %d" % (sT + 1, sT, {1: 0, 2: 7, 4: 6, 8: 5}[nsh]))
        a("v_mov_b32 v%d, s%d" % (vT + 2, sT + 1))
        a("s_mov_b64 exec, 1")
        a("global_atomic_add v%d, v%d, v%d, %s sc0" % (vChk, vT + 2, vOne, sp(sDbg)))
        a("s_mov_b64 exec, -1")
        a("L_noclaim:")
    a("s_sub_u32 s%d, s%d, 1" % (sCnt, sCnt))
    a("s_cmp_lg_u32 s%d, 0" % sCnt)
    a("s_cbranch_scc1 L_loop")
    for it in range(rem): tile(it % D, True)
    a("s_mov_b32 s%d, 0" % sTask)
    fW1 = vWA; fW2 = vWA + 32; vB1 = vT + 5
    vF1, vF2, vF3 = vT + 3, vT + 4, vT + 6
    sF = sOff
    ffn_loads = []
    for n in range(8):
        u, t = divmod(n, 4)
        pre = ["s_mov_b32 s%d, %d" % (sF, (16 * u + t) * 3584)]
        ffn_loads.append(pre + ["buffer_load_dwordx4 %s, v%d, %s, s%d offen%s" % (vr(fW1 + 4 * n), vF1, sq(rW1), sF, P(fpol))])
    for n in range(8):
        u, t = divmod(n, 4)
        pre = ["s_mov_b32 s%d, %d" % (sF, 16384 * u)] if t == 0 else []
        ffn_loads.append(pre + ["buffer_load_dwordx4 %s, v%d, %s, s%d offen offset:%d%s" % (vr(fW2 + 4 * n), vF2, sq(rW2), sF, 1024 * t, P(fpol))])
    ffn_loads.append(["global_load_ushort v%d, v%d, %s" % (vB1, vF3, sp(sB1))])
    if ffn:
        a("s_cmp_lt_u32 s%d, 4" % sWave)
        a("s_cbranch_scc1 L_notask")
        a("v_mov_b32 v%d, %d" % (vT + 1, L_CLAIM))
        a("s_cmp_lg_u32 s%d, 4" % sWave)
        a("s_cbranch_scc1 L_spin")
        a("s_waitcnt vmcnt(%d)" % (8 * D))
        a("v_readfirstlane_b32 s%d, v%d" % (sSig, vChk))
        a("s_cmp_lg_u32 s%d, -1" % sSig)
        a("s_cbranch_scc1 L_have")
        a("s_waitcnt vmcnt(0)")
        a("v_readfirstlane_b32 s%d, v%d" % (sSig, vChk))
        a("L_have:")
        a("s_lshr_b32 s%d, s2, 3" % sT)
        a("s_and_b32 s%d, s%d, %d" % (sT, sT, nsh - 1))
        a("s_mul_i32 s%d, s%d, %d" % (sT, sT, NFF // nsh))
        a("s_add_u32 s%d, s%d, s%d" % (sT, sT, sSig))
        a("s_cmp_lt_u32 s%d, %d" % (sSig, NFF // nsh))
        a("s_cselect_b32 s%d, s%d, %d" % (sSig, sT, NFF))
        a("s_add_u32 s%d, s%d, 1" % (sT, sSig))
        a("v_mov_b32 v%d, s%d" % (vT + 2, sT))
        a("s_mov_b64 exec, 1")
        a("ds_write_b32 v%d, v%d" % (vT + 1, vT + 2))
        a("s_mov_b64 exec, -1")
        a("s_branch L_known")
        a("L_spin:")
        a("ds_read_b32 v%d, v%d" % (vT + 2, vT + 1))
        a("s_waitcnt lgkmcnt(0)")
        a("v_readfirstlane_b32 s%d, v%d" % (sSig, vT + 2))
        a("s_cmp_eq_u32 s%d, 0" % sSig)
        a("s_cbranch_scc1 L_spin")
        a("s_sub_u32 s%d, s%d, 1" % (sSig, sSig))
        a("L_known:")
        a("s_cmp_ge_u32 s%d, %d" % (sSig, 0 if "notask" in abl else NFF))
        a("s_cbranch_scc1 L_notask")
        a("s_mov_b32 s%d, 1" % sTask)
        sWy = sT + 9
        a("s_sub_u32 s%d, s%d, 4" % (sWy, sWave))
        a("s_lshl_b32 s%d, s%d, 6" % (sT, sSig))
        srd(rW1, sW1, sT, 1835008, sT)
        a("s_lshl_b32 s%d, s%d, 15" % (sT + 1, sSig))
        srd(rW2, sW2, sT + 1, 32768)
        a("s_add_u32 s%d, s%d, s%d" % (sB1, sB1, sT)); a("s_addc_u32 s%d, s%d, 0" % (sB1 + 1, sB1 + 1))
        a("s_lshl_b32 s%d, s%d, 7" % (sT + 2, sWy))
        a("v_lshrrev_b32 v%d, 2, v%d" % (vT + 1, vI))
        a("v_lshlrev_b32 v%d, 5, v%d" % (vT + 1, vT + 1))
        a("v_lshl_add_u32 v%d, v%d, 2, v%d" % (vT + 1, vG, vT + 1))
        a("v_add_u32 v%d, s%d, v%d" % (vT + 1, sT + 2, vT + 1))
        a("s_movk_i32 s%d, 3584" % (sT + 3))
        a("v_mul_lo_u32 v%d, v%d, s%d" % (vT + 1, vT + 1, sT + 3))
        a("v_and_b32 v%d, 3, v%d" % (vT + 2, vI))
        a("v_lshl_add_u32 v%d, v%d, 4, v%d" % (vT + 1, vT + 2, vT + 1))
        a("v_mov_b32 v%d, v%d" % (vF1, vT + 1))
        a("v_lshlrev_b32 v%d, 12, v%d" % (vF2, vG))
        a("v_lshl_add_u32 v%d, v%d, 4, v%d" % (vF2, vI, vF2))
        a("s_lshl_b32 s%d, s%d, 8" % (sT + 2, sWy))
        a("v_add_u32 v%d, s%d, v%d" % (vF2, sT + 2, vF2))
        a("v_and_b32 v%d, 31, v%d" % (vF3, vLane))
        a("v_lshlrev_b32 v%d, 1, v%d" % (vF3, vF3))
        a("L_notask:")
        if stamps:
            a("s_cmp_lt_u32 s%d, 4" % sWave)
            a("s_cbranch_scc1 L_nosig")
            a("s_mov_b32 s%d, s%d" % (sXS + 4, sSig)); a("s_mov_b32 s%d, 0" % (sXS + 5))
            a("L_nosig:")
    tail_on[0] = ffn
    pending[:] = list(ffn_loads) if ffn else []
    for it in range(D): tile((rem + it) % D, False)
    if ffn and pending: slot(len(pending))
    tail_on[0] = False
    xs(3)

    for k in range(4): a("v_readlane_b32 s%d, v%d, %d" % (sT + k, vL, 16 * k))
    a("s_lshl_b32 s%d, s%d, 3" % (sT + 4, sWave))
    a("v_mov_b32 v%d, s%d" % (vT + 1, sT))
    a("v_mov_b32 v%d, s%d" % (vT + 2, sT + 4))
    for k in range(1, 4): a("v_add_f32 v%d, s%d, v%d" % (vT + 1, sT + k, vT + 1))
    a("v_mov_b32 v%d, v%d" % (vT, vM))
    a("s_mov_b32 exec_hi, 0")
    a("ds_write_b128 v%d, %s offset:%d" % (vEPa, vr(vO), L_EP))
    a("s_mov_b32 exec_lo, 1")
    a("ds_write_b64 v%d, v[%d:%d] offset:%d" % (vT + 2, vT, vT + 1, L_ML))
    a("s_mov_b64 exec, -1")
    a("s_cmp_lt_u32 s%d, 4" % sWave)
    a("s_cbranch_scc1 L_old")
    a("s_waitcnt lgkmcnt(0)")
    a("s_barrier")
    if not ffn:
        a("s_branch L_fin")
    else:
        a("s_cmp_eq_u32 s%d, 0" % sTask)
        a("s_cbranch_scc1 L_fin")
        fX = vKV; fPl = vQ; fPh = vQ + 8
        sWy = sT + 9
        a("s_sub_u32 s%d, s%d, 4" % (sWy, sWave))
        a("s_lshl_b32 s%d, s%d, 7" % (sT + 2, sWy))
        a("v_lshrrev_b32 v%d, 3, v%d" % (vT, vI))
        a("v_lshlrev_b32 v%d, 5, v%d" % (vT, vT))
        a("v_lshl_add_u32 v%d, v%d, 2, v%d" % (vT, vG, vT))
        a("v_add_u32 v%d, s%d, v%d" % (vT, sT + 2, vT))
        a("v_lshlrev_b32 v%d, 1, v%d" % (vT, vT))
        for b in range(4):
            for hh_ in range(2):
                for u in range(2):
                    r0 = fX + 8 * b + 4 * hh_ + 2 * u
                    a("ds_read_b64 v[%d:%d], v%d offset:%d" % (r0, r0 + 1, vT, L_XS + 1024 * b + 128 * hh_ + 32 * u))
        a("v_lshrrev_b32 v%d, 2, v%d" % (vT + 4, vI))
        a("v_lshlrev_b32 v%d, 7, v%d" % (vT + 4, vT + 4))
        a("v_and_b32 v%d, 3, v%d" % (vT + 6, vI))
        a("v_lshl_add_u32 v%d, v%d, 5, v%d" % (vT + 4, vT + 6, vT + 4))
        a("v_and_b32 v%d, 1, v%d" % (vT + 6, vG))
        a("v_lshl_add_u32 v%d, v%d, 4, v%d" % (vT + 4, vT + 6, vT + 4))
        a("s_lshl_b32 s%d, s%d, 11" % (sT + 2, sWy))
        a("v_add_u32 v%d, s%d, v%d" % (vT + 4, sT + 2, vT + 4))
        a("s_mov_b32 s%d, 0x01000100" % (sT + 6)); a("s_mov_b32 s%d, 0x03020302" % (sT + 7))
        a("s_waitcnt vmcnt(9) lgkmcnt(0)")
        for b in range(4):
            for hh_ in range(2):
                for u in range(2):
                    for t in range(4):
                        src = fX + 8 * b + 4 * hh_ + 2 * u + t // 2
                        a("v_perm_b32 v%d, v%d, v%d, s%d" % (vQ + 8 * hh_ + 4 * u + t, src, src, sT + 6 + (t & 1)))
            gemv(8, lambda n: fW1 + 4 * n, lambda n: fPl + n, vS)
            gemv(8, lambda n: fW1 + 4 * n, lambda n: fPh + n, vP)
            a("s_mov_b32 exec_lo, 0x000f000f"); a("s_mov_b32 exec_hi, 0x00f000f0")
            a("ds_write_b128 v%d, %s offset:%d" % (vT + 4, vr(vS), L_HP + 512 * b))
            a("s_mov_b32 exec_lo, 0x0f000f00"); a("s_mov_b32 exec_hi, 0xf000f000")
            a("ds_write_b128 v%d, %s offset:%d" % (vT + 4, vr(vP), L_HP + 512 * b))
            a("s_mov_b64 exec, -1")
        a("s_waitcnt lgkmcnt(0)")
        a("s_barrier")
        a("v_and_b32 v%d, 31, v%d" % (vT + 4, vLane))
        a("v_lshlrev_b32 v%d, 2, v%d" % (vT + 4, vT + 4))
        a("v_lshrrev_b32 v%d, 5, v%d" % (vT + 6, vLane))
        a("v_lshl_add_u32 v%d, v%d, 8, v%d" % (vT + 6, vT + 6, vT + 4))
        a("s_lshl_b32 s%d, s%d, 9" % (sT + 2, sWy))
        a("v_add_u32 v%d, s%d, v%d" % (vT + 6, sT + 2, vT + 6))
        a("v_add_u32 v%d, %d, v%d" % (vT + 6, L_HP, vT + 6))
        for w in range(4):
            a("ds_read2_b32 v[%d:%d], v%d offset0:%d offset1:%d" % (vQ + 2 * w, vQ + 2 * w + 1, vT + 6, 0, 32) if w == 0 else
              "v_add_u32 v%d, 2048, v%d\nds_read2_b32 v[%d:%d], v%d offset0:0 offset1:32" % (vT + 6, vT + 6, vQ + 2 * w, vQ + 2 * w + 1, vT + 6))
        a("s_waitcnt vmcnt(0) lgkmcnt(0)")
        for w in range(4): a("v_add_f32 v%d, v%d, v%d" % (vQ + 2 * w, vQ + 2 * w, vQ + 2 * w + 1))
        a("v_add_f32 v%d, v%d, v%d" % (vQ, vQ, vQ + 2)); a("v_add_f32 v%d, v%d, v%d" % (vQ + 4, vQ + 4, vQ + 6))
        r = vQ
        a("v_add_f32 v%d, v%d, v%d" % (r, vQ, vQ + 4))
        a("v_mov_b32 v%d, v%d" % (r + 1, r))
        a("v_permlane32_swap_b32 v%d, v%d" % (r, r + 1))
        a("v_add_f32 v%d, v%d, v%d" % (r, r, r + 1))
        a("v_cvt_pk_bf16_f32 v%d, v%d, v%d" % (r, r, r))
        a("v_and_b32 v%d, 0xffff0000, v%d" % (r, r))
        a("v_lshlrev_b32 v%d, 16, v%d" % (vB1, vB1))
        a("v_add_f32 v%d, v%d, v%d" % (r, r, vB1))
        a("v_cvt_pk_bf16_f32 v%d, v%d, v%d" % (r, r, r))
        a("v_and_b32 v%d, 0xffff0000, v%d" % (r, r))
        a("v_max_f32 v%d, 0, v%d" % (r, r))
        a("v_mul_f32 v%d, v%d, v%d" % (r, r, r))
        a("v_cvt_pk_bf16_f32 v%d, v%d, v%d" % (r, r, r))
        a("s_lshl_b32 s%d, s%d, 7" % (sT + 2, sWy))
        a("v_add_u32 v%d, s%d, v%d" % (vT + 4, sT + 2, vT + 4))
        a("s_mov_b32 exec_hi, 0")
        a("ds_write_b32 v%d, v%d offset:%d" % (vT + 4, r, L_HH))
        a("s_mov_b32 exec_hi, -1")
        a("s_waitcnt lgkmcnt(0)")
        a("s_barrier")
        a("v_lshlrev_b32 v%d, 4, v%d" % (vT + 4, vG))
        for b in range(4):
            for u in range(2): a("ds_read_b128 %s, v%d offset:%d" % (vr(fX + 8 * b + 4 * u), vT + 4, L_HH + 128 * b + 64 * u))
        a("v_lshlrev_b32 v%d, 5, v%d" % (vT + 6, vI))
        a("v_lshl_add_u32 v%d, v%d, 4, v%d" % (vT + 6, vG, vT + 6))
        a("s_lshl_b32 s%d, s%d, 9" % (sT + 2, sWy))
        a("v_add_u32 v%d, s%d, v%d" % (vT + 6, sT + 2, vT + 6))
        a("s_lshl_b32 s%d, s%d, 11" % (sT + 2, sSig)); a("s_add_u32 s%d, s%d, 0x%x" % (sT + 2, sT + 2, WS_YF))
        a("s_add_u32 s%d, s%d, s%d" % (sY, sWs, sT + 2)); a("s_addc_u32 s%d, s%d, 0" % (sY + 1, sWs + 1))
        a("s_waitcnt lgkmcnt(0)")
        for b in range(4):
            acc = vS if b & 1 == 0 else vP
            gemv(8, lambda n: fW2 + 4 * n, lambda n: fX + 8 * b + n, acc)
            a("s_mov_b32 exec_hi, 0")
            a("global_store_dwordx4 v%d, %s, %s%s" % (vT + 6, vr(acc), sp(sY), P(stpol)))
            a("s_mov_b32 exec_hi, -1")
            if b < 3:
                a("s_add_u32 s%d, s%d, %d" % (sY, sY, NFF * 2048)); a("s_addc_u32 s%d, s%d, 0" % (sY + 1, sY + 1))
        a("s_branch L_fin")

    a("L_old:")
    if warm:
        a("s_cmp_lg_u32 s%d, 0" % sWave)
        a("s_cbranch_scc1 L_nowarm")
        a("v_mov_b32 v%d, 0" % vT)
        a("global_load_dword v%d, v%d, %s" % (vKV + 0, vT, sp(sDbg)))
        a("global_load_dword v%d, v%d, %s" % (vKV + 1, vT, sp(sY)))
        a("v_mov_b32 v%d, 0x%x" % (vT + 1, WS_ML))
        a("global_load_dword v%d, v%d, %s" % (vKV + 2, vT + 1, sp(sWs)))
        a("v_mov_b32 v%d, 0x%x" % (vT + 2, WS_YF))
        a("global_load_dword v%d, v%d, %s" % (vKV + 3, vT + 2, sp(sWs)))
        a("global_load_dword v%d, v%d, %s" % (vKV + 4, vT, sp(sW1)))
        a("global_load_dword v%d, v%d, %s" % (vKV + 5, vT, sp(sW2)))
        a("global_load_dword v%d, v%d, %s" % (vKV + 6, vT, sp(sB1)))
        a("global_load_dword v%d, v%d, %s" % (vKV + 7, vT, sp(sWo)))
        a("s_waitcnt vmcnt(0)")
        a("L_nowarm:")
    if ffn:
        a("s_lshl_b32 s%d, s%d, 10" % (sT, sWave))
        a("v_lshl_add_u32 v%d, v%d, 4, s%d" % (vT, vLane, sT))
        a("global_load_dwordx4 %s, v%d, %s" % (vr(vS), vT, sp(sX0)))
        a("s_waitcnt vmcnt(0)")
        a("ds_write_b128 v%d, %s offset:%d" % (vT, vr(vS), L_XS))
        a("s_waitcnt lgkmcnt(0)")
    a("v_mov_b32 v%d, %d" % (vT + 1, L_CLAIM))
    a("L_worel:")
    a("ds_read_b32 v%d, v%d offset:4" % (vT + 2, vT + 1))
    a("s_waitcnt lgkmcnt(0)")
    a("v_readfirstlane_b32 s%d, v%d" % (sT, vT + 2))
    a("s_cmp_eq_u32 s%d, 0" % sT)
    a("s_cbranch_scc1 L_worel")
    a("s_mov_b32 s%d, 0" % (sT + 8))
    for n in range(32):
        u, t = divmod(n, 4)
        a("buffer_load_dwordx4 %s, v%d, %s, s%d offen offset:%d%s" % (vr(vWO + 4 * n), vWoff, sq(rWo), sT + 8, 1024 * t, P(wopol)))
        if t == 3 and n < 31: a("s_add_u32 s%d, s%d, 16384" % (sT + 8, sT + 8))
    if pfk2:
        a("s_getpc_b64 %s" % sp(sT + 2))
        a("L_pc2:")
        a("s_add_u32 s%d, s%d, %s-L_pc2" % (sT + 2, sT + 2, K2))
        a("s_addc_u32 s%d, s%d, 0" % (sT + 3, sT + 3))
        a("v_lshlrev_b32 v%d, 6, v%d" % (vT + 2, vLane))
        a("s_mov_b32 s%d, L2_done-%s" % (sT + 4, K2))
        a("v_min_u32 v%d, s%d, v%d" % (vT + 2, sT + 4, vT + 2))
        a("global_load_dword v%d, v%d, %s" % (vT + 3, vT + 2, sp(sT + 2)))
    if dry:
        a("s_mov_b32 s%d, 1" % sTask)
        a("s_branch L_epi")
        a("L_epi_wait:")
        a("s_mov_b32 s%d, 0" % sTask)
    a("s_waitcnt vmcnt(0) lgkmcnt(0)")
    a("s_barrier")
    xs(2)
    a("L_epi:")
    a("v_mov_b32 v%d, 0" % vT)
    a("v_lshlrev_b32 v%d, 2, v%d" % (vT + 1, vLane))
    tm = vQ; to = vPP
    for k in range(4): a("ds_read_b128 %s, v%d offset:%d" % (vr(tm + 4 * k), vT, L_ML + 16 * k))
    for w in range(8):
        a("ds_read2st64_b32 v[%d:%d], v%d offset0:%d offset1:%d" % (to + 2 * w, to + 2 * w + 1, vT + 1, L_EP // 256 + 2 * w, L_EP // 256 + 2 * w + 1))
    a("s_waitcnt lgkmcnt(8)")
    a("v_max3_f32 v%d, v%d, v%d, v%d" % (vM, tm, tm + 2, tm + 4))
    a("v_max3_f32 v%d, v%d, v%d, v%d" % (vM, vM, tm + 6, tm + 8))
    a("v_max3_f32 v%d, v%d, v%d, v%d" % (vM, vM, tm + 10, tm + 12))
    a("v_max_f32 v%d, v%d, v%d" % (vM, vM, tm + 14))
    a("v_mul_f32 v%d, s%d, v%d" % (vMC, sC, vM))
    for w in range(8): a("v_fma_f32 v%d, v%d, s%d, -v%d" % (tm + 2 * w, tm + 2 * w, sC, vMC))
    for w in range(8): a("v_exp_f32 v%d, v%d" % (tm + 2 * w, tm + 2 * w))
    a("s_waitcnt lgkmcnt(0)")
    for k in range(2): a("v_mul_f32 v%d, v%d, v%d" % (vT + 2 + k, tm, to + k))
    for w in range(1, 8):
        for k in range(2): a("v_fmac_f32 v%d, v%d, v%d" % (vT + 2 + k, tm + 2 * w, to + 2 * w + k))
    for k in range(2): a("v_cvt_pk_bf16_f32 v%d, v%d, v%d" % (vT + 2 + k, vT + 2 + k, vT + 2 + k))
    a("ds_write2st64_b32 v%d, v%d, v%d offset0:0 offset1:1" % (vPriv, vT + 2, vT + 3))
    a("v_mul_f32 v%d, v%d, v%d" % (vL, tm, tm + 1))
    for w in range(1, 8): a("v_fmac_f32 v%d, v%d, v%d" % (vL, tm + 2 * w, tm + 2 * w + 1))
    a("s_waitcnt lgkmcnt(0)")
    for u in range(8): a("ds_read_b128 %s, v%d offset:%d" % (vr(vPP + 4 * u), vPrd, 64 * u))
    a("s_waitcnt lgkmcnt(7)")
    gemv(32, lambda n: vWO + 4 * n, lambda n: vPP + n, vS,
         waits=lambda n: a("s_waitcnt lgkmcnt(%d)" % max(0, 7 - (n + 1) // 4)) if (n + 1) % 4 == 0 and n < 31 else None)
    if dry:
        a("s_cmp_lg_u32 s%d, 0" % sTask)
        a("s_cbranch_scc1 L_epi_wait")
    a("s_mov_b32 exec_hi, 0")
    xs(4)
    a("global_store_dwordx4 v%d, %s, %s%s" % (vYoff, vr(vS), sp(sY), P(stpol)))
    a("s_mov_b64 exec, -1")
    a("s_cmp_lg_u32 s%d, 0" % sWave)
    a("s_cbranch_scc1 L_w0done")
    a("v_mov_b32 v%d, v%d" % (vT + 2, vMC))
    a("v_mov_b32 v%d, v%d" % (vT + 3, vL))
    a("v_mov_b32 v%d, s%d" % (vT + 4, sGate))
    a("v_sub_f32 v%d, 1.0, v%d" % (vT + 5, vT + 4))
    a("s_lshl_b32 s%d, s%d, 3" % (sT + 2, sRow)); a("s_add_u32 s%d, s%d, 0x%x" % (sT + 2, sT + 2, WS_ML))
    a("v_mov_b32 v%d, s%d" % (vT + 6, sT + 2))
    a("s_mov_b64 exec, 1")
    a("global_store_dwordx2 v%d, v[%d:%d], %s%s" % (vT + 6, vT + 2, vT + 3, sp(sWs), P(stpol)))
    a("s_and_b32 s%d, s%d, 63" % (sT + 3, sRow))
    a("s_cmp_lg_u32 s%d, 0" % (sT + 3))
    a("s_cbranch_scc1 L_nog")
    a("s_lshl_b32 s%d, s%d, 3" % (sT + 2, sB)); a("s_add_u32 s%d, s%d, 0x%x" % (sT + 2, sT + 2, WS_G))
    a("v_mov_b32 v%d, s%d" % (vT + 7, sT + 2))
    a("global_store_dwordx2 v%d, v[%d:%d], %s%s" % (vT + 7, vT + 4, vT + 5, sp(sWs), P(stpol)))
    a("L_nog:")
    a("s_mov_b64 exec, -1")
    a("L_w0done:")
    if stamps:
        a("s_cmp_lg_u32 s%d, 0" % sWave)
        a("s_cbranch_scc1 L_nost")
        a("s_mov_b64 exec, 1")
        a("s_memrealtime %s" % sp(sStamp + 2))
        a("s_waitcnt lgkmcnt(0)")
        for k in range(4): a("v_mov_b32 v%d, s%d" % (vQ + k, sStamp + k))
        a("s_lshl_b32 s%d, s2, 4" % sT); a("s_add_u32 s%d, s%d, 0x%x" % (sT, sT, WS_STAMP))
        a("v_mov_b32 v%d, s%d" % (vT + 2, sT))
        a("global_store_dwordx4 v%d, %s, %s" % (vT + 2, vr(vQ), sp(sWs)))
        a("s_mov_b64 exec, -1")
        a("L_nost:")
    a("L_fin:")
    if stamps:
        a("s_mov_b64 exec, 1")
        xs(5)
        a("s_waitcnt lgkmcnt(0)")
        for k in range(NXS):
            a("s_lshl_b32 s%d, s2, 3" % sT); a("s_add_u32 s%d, s%d, s%d" % (sT, sT, sWave)); a("s_lshl_b32 s%d, s%d, 3" % (sT, sT))
            a("s_add_u32 s%d, s%d, 0x%x" % (sT, sT, WS_STAMP + 0x40000 + 0x4000 * k))
            a("v_mov_b32 v%d, s%d" % (vT + 2, sT))
            a("v_mov_b32 v%d, s%d" % (vQ + 4, sXS + 2 * k)); a("v_mov_b32 v%d, s%d" % (vQ + 5, sXS + 2 * k + 1))
            a("global_store_dwordx2 v%d, v[%d:%d], %s" % (vT + 2, vQ + 4, vQ + 5, sp(sWs)))
            a("s_nop 1")
    a("L_done:")
    a("s_endpgm")
    for k in tramps:
        a("L_tr%d:" % k)
        a("s_swappc_b64 %s, %s" % (sp(sRet), sp(sRare)))
        a("s_branch L_back%d" % k)
    a("L_rare:")
    for k in range(4): a("v_readlane_b32 s%d, v%d, %d" % (sT + k, vT, 16 * k))
    a("v_mov_b32 v%d, s%d" % (vT + 1, sT))
    for k in range(1, 4): a("v_max_f32 v%d, s%d, v%d" % (vT + 1, sT + k, vT + 1))
    a("v_max_f32 v%d, v%d, v%d" % (vT + 1, vT + 1, vM))
    a("v_sub_f32 v%d, v%d, v%d" % (vT + 2, vM, vT + 1))
    a("v_mul_f32 v%d, s%d, v%d" % (vT + 2, sC, vT + 2))
    a("v_exp_f32 v%d, v%d" % (vT + 2, vT + 2))
    a("v_mov_b32 v%d, v%d" % (vM, vT + 1))
    a("v_mul_f32 v%d, s%d, v%d" % (vMC, sC, vT + 1))
    for r in range(4): a("v_mul_f32 v%d, v%d, v%d" % (vO + r, vO + r, vT + 2))
    a("v_mul_f32 v%d, v%d, v%d" % (vL, vL, vT + 2))
    a("s_nop 1")
    a("s_setpc_b64 %s" % sp(sRet))
    body1 = a.finish()

    def kernel2_wide():
        c = Asm()
        c("%s:" % K2)
        c("s_cmp_ge_u32 s2, 128")
        c("s_cbranch_scc1 L2_done")
        c("s_load_dwordx2 s[32:33], s[0:1], 72")
        c("s_load_dwordx2 s[4:5], s[0:1], 88")
        c("s_load_dwordx2 s[6:7], s[0:1], 104")
        if stamps: c("s_memrealtime s[36:37]")
        c("s_lshr_b32 s8, s2, 5")
        c("s_and_b32 s9, s2, 31")
        c("v_lshrrev_b32 v1, 2, v0")
        c("v_and_b32 v2, 3, v0")
        c("v_lshlrev_b32 v3, 13, v1")
        c("v_lshl_add_u32 v3, v2, 4, v3")
        c("v_lshlrev_b32 v4, 11, v1")
        c("v_lshl_add_u32 v4, v2, 4, v4")
        c("v_lshlrev_b32 v5, 5, v1")
        c("v_lshlrev_b32 v6, 3, v2")
        c("s_lshl_b32 s11, s9, 6")
        c("s_lshl_b32 s10, s8, 17"); c("s_add_u32 s10, s10, s11")
        c("s_mul_i32 s12, s8, %d" % (NFF * 2048)); c("s_add_u32 s12, s12, s11"); c("s_add_u32 s12, s12, 0x%x" % WS_YF)
        c("s_lshl_b32 s13, s8, 9"); c("s_add_u32 s13, s13, 0x%x" % WS_ML)
        c("s_movk_i32 s24, 4096")
        for k in range(1, 4): c("s_mov_b32 s%d, %d" % (41 + k, 32768 * k))
        c("s_lshl_b32 s31, s8, 3"); c("s_add_u32 s31, s31, 0x%x" % WS_G)
        c("v_mov_b32 v7, s31")
        c("s_lshl_b32 s35, s9, 5")
        c("s_waitcnt lgkmcnt(0)")
        c("s_add_u32 s14, s6, s13"); c("s_addc_u32 s15, s7, 0")
        for k in range(2): c("global_load_dwordx4 %s, v5, s[14:15] offset:%d" % (vr(8 + 4 * k), 16 * k))
        c("s_add_u32 s16, s6, s10"); c("s_addc_u32 s17, s7, 0"); c("s_mov_b32 s18, 0x20000"); c("s_mov_b32 s19, 0x20000")
        for j in range(4):
            c("buffer_load_dwordx4 %s, v3, s[16:19], %s offen offset:%d" % (vr(24 + 4 * j), "0" if j < 2 else "s24", 2048 * (j & 1)))
        c("s_add_u32 s20, s6, s12"); c("s_addc_u32 s21, s7, 0"); c("s_sub_u32 s22, %d, s11" % (NFF * 2048)); c("s_mov_b32 s23, 0x20000")
        for k in range(4):
            c("buffer_load_dwordx4 %s, v4, s[20:23], %s offen" % (vr(40 + 4 * k), "0" if k == 0 else "s%d" % (41 + k)))
        c("global_load_dwordx2 v[56:57], v7, s[6:7]")
        c("s_add_u32 s32, s32, s35"); c("s_addc_u32 s33, s33, 0")
        c("global_load_dwordx2 v[58:59], v6, s[32:33]")
        c("s_lshl_b32 s34, s8, 10"); c("s_add_u32 s34, s34, s35")
        c("s_add_u32 s4, s4, s34"); c("s_addc_u32 s5, s5, 0")
        c("v_cmp_eq_u32 vcc, 0, v1")
        c("s_waitcnt vmcnt(10)")
        for p in range(2):
            r = 8 + 4 * p
            c("v_max_f32 v%d, v%d, v%d" % (60 + p, r, r + 2))
        for p in range(2):
            r = 8 + 4 * p
            c("v_sub_f32 v%d, v%d, v%d" % (r, r, 60 + p)); c("v_sub_f32 v%d, v%d, v%d" % (r + 2, r + 2, 60 + p))
        for p in range(2):
            r = 8 + 4 * p
            c("v_exp_f32 v%d, v%d" % (r, r)); c("v_exp_f32 v%d, v%d" % (r + 2, r + 2))
        for p in range(2):
            r = 8 + 4 * p
            c("v_mul_f32 v%d, v%d, v%d" % (r + 1, r + 1, r))
        for p in range(2):
            r = 8 + 4 * p
            c("v_fmac_f32 v%d, v%d, v%d" % (r + 1, r + 3, r + 2))
        for p in range(2): c("v_rcp_f32 v%d, v%d" % (9 + 4 * p, 9 + 4 * p))
        c("s_nop 0")
        for p in range(2):
            r = 8 + 4 * p
            c("v_mul_f32 v%d, v%d, v%d" % (r, r, r + 1)); c("v_mul_f32 v%d, v%d, v%d" % (r + 2, r + 2, r + 1))
        c("s_waitcnt vmcnt(6)")
        for r in range(4): c("v_mul_f32 v%d, v8, v%d" % (64 + r, 24 + r))
        for j in range(1, 4):
            sc = 8 + 4 * (j // 2) + 2 * (j & 1)
            for r in range(4): c("v_fmac_f32 v%d, v%d, v%d" % (64 + r, sc, 24 + 4 * j + r))
        c("s_waitcnt vmcnt(0)")
        for r in range(4): c("v_add_f32 v%d, v%d, v%d" % (40 + r, 40 + r, 44 + r))
        for r in range(4): c("v_add_f32 v%d, v%d, v%d" % (48 + r, 48 + r, 52 + r))
        c("v_lshlrev_b32 v60, 16, v58"); c("v_and_b32 v61, 0xffff0000, v58"); c("v_lshlrev_b32 v62, 16, v59"); c("v_and_b32 v63, 0xffff0000, v59")
        for r in range(4): c("v_add_f32 v%d, v%d, v%d" % (40 + r, 40 + r, 48 + r))
        for r in range(4): c("v_cndmask_b32 v%d, 0, v%d, vcc" % (60 + r, 60 + r))
        for r in range(4): c("v_add_f32 v%d, v%d, v%d" % (40 + r, 40 + r, 60 + r))
        for r in range(4): c("v_mul_f32 v%d, v56, v%d" % (64 + r, 64 + r))
        for r in range(4): c("v_fmac_f32 v%d, v57, v%d" % (64 + r, 40 + r))
        for m_ in ("row_ror:4", "row_ror:8"):
            for r in range(4): c("v_add_f32_dpp v%d, v%d, v%d %s row_mask:0xf bank_mask:0xf" % (64 + r, 64 + r, 64 + r, m_))
        for sw in ("v_permlane16_swap_b32", "v_permlane32_swap_b32"):
            for r in range(4): c("v_mov_b32 v%d, v%d" % (60 + r, 64 + r))
            for r in range(4): c("%s v%d, v%d" % (sw, 64 + r, 60 + r))
            for r in range(4): c("v_add_f32 v%d, v%d, v%d" % (64 + r, 64 + r, 60 + r))
        c("v_cvt_pk_bf16_f32 v64, v64, v65")
        c("v_cvt_pk_bf16_f32 v65, v66, v67")
        c("s_mov_b64 exec, 0xf")
        c("global_store_dwordx2 v6, v[64:65], s[4:5]")
        if stamps:
            c("s_waitcnt vmcnt(0)")
            c("s_memrealtime s[38:39]")
            c("s_waitcnt lgkmcnt(0)")
            c("s_mov_b64 exec, 0x3")
            c("v_and_b32 v1, 1, v0")
            c("s_lshl_b32 s34, s2, 1")
            c("v_add_u32 v1, s34, v1")
            c("v_lshlrev_b32 v1, 3, v1")
            for k in range(2):
                c("v_add_u32 v2, 0x%x, v1" % (WS_STAMP + 0x10000 + 0x1000 * (5 + k)))
                c("v_mov_b32 v8, s%d" % (36 + 2 * k)); c("v_mov_b32 v9, s%d" % (37 + 2 * k))
                c("global_store_dwordx2 v2, v[8:9], s[6:7]")
                c("s_nop 1")
        c("L2_done:")
        c("s_endpgm")
        return c.finish()
    c = Asm()
    c("%s:" % K2)
    c("s_cmp_ge_u32 s2, 64")
    c("s_cbranch_scc1 L2_done")
    c("s_load_dwordx2 s[4:5], s[0:1], 88")
    c("s_load_dwordx2 s[6:7], s[0:1], 104")
    c("s_load_dwordx2 s[32:33], s[0:1], 72")
    if stamps: c("s_memrealtime s[36:37]")
    c("s_lshr_b32 s8, s2, 4")
    c("s_and_b32 s9, s2, 15")
    c("v_lshrrev_b32 v1, 3, v0")
    c("v_and_b32 v2, 7, v0")
    c("v_lshlrev_b32 v3, 14, v1")
    c("v_lshl_add_u32 v3, v2, 4, v3")
    c("v_lshlrev_b32 v4, 11, v1")
    c("v_lshl_add_u32 v4, v2, 4, v4")
    c("v_lshlrev_b32 v5, 6, v1")
    c("v_lshlrev_b32 v6, 3, v2")
    c("s_lshl_b32 s10, s8, 17"); c("s_lshl_b32 s11, s9, 7"); c("s_add_u32 s10, s10, s11")
    c("s_mul_i32 s12, s8, %d" % (NFF * 2048)); c("s_add_u32 s12, s12, s11"); c("s_add_u32 s12, s12, 0x%x" % WS_YF)
    c("s_lshl_b32 s13, s8, 9"); c("s_add_u32 s13, s13, 0x%x" % WS_ML)
    c("s_movk_i32 s24, 4096"); c("s_movk_i32 s25, 8192"); c("s_movk_i32 s26, 12288")
    for k in range(1, 7): c("s_mov_b32 s%d, %d" % (41 + k, 16384 * k))
    c("s_lshl_b32 s31, s8, 3"); c("s_add_u32 s31, s31, 0x%x" % WS_G)
    c("v_mov_b32 v7, s31")
    c("s_lshl_b32 s35, s9, 6")
    c("s_waitcnt lgkmcnt(0)")
    c("s_add_u32 s14, s6, s13"); c("s_addc_u32 s15, s7, 0")
    for k in range(4): c("global_load_dwordx4 %s, v5, s[14:15] offset:%d" % (vr(8 + 4 * k), 16 * k))
    c("s_add_u32 s16, s6, s10"); c("s_addc_u32 s17, s7, 0"); c("s_mov_b32 s18, 0x20000"); c("s_mov_b32 s19, 0x20000")
    for j in range(8):
        so = "0" if j < 2 else "s%d" % (24 + j // 2 - 1)
        c("buffer_load_dwordx4 %s, v3, s[16:19], %s offen offset:%d" % (vr(24 + 4 * j), so, 2048 * (j & 1)))
    c("s_add_u32 s20, s6, s12"); c("s_addc_u32 s21, s7, 0"); c("s_sub_u32 s22, %d, s11" % (NFF * 2048)); c("s_mov_b32 s23, 0x20000")
    for k in range(7):
        c("buffer_load_dwordx4 %s, v4, s[20:23], %s offen" % (vr(88 + 4 * k), "0" if k == 0 else "s%d" % (41 + k)))
    c("global_load_dwordx2 v[72:73], v7, s[6:7]")
    c("s_add_u32 s32, s32, s35"); c("s_addc_u32 s33, s33, 0")
    c("global_load_dwordx2 v[74:75], v6, s[32:33]")
    c("s_lshl_b32 s34, s8, 10"); c("s_add_u32 s34, s34, s35")
    c("s_add_u32 s4, s4, s34"); c("s_addc_u32 s5, s5, 0")
    c("s_waitcnt vmcnt(17)")
    for p in range(4):
        r = 8 + 4 * p
        c("v_max_f32 v84, v%d, v%d" % (r, r + 2))
        c("v_sub_f32 v%d, v%d, v84" % (r, r)); c("v_sub_f32 v%d, v%d, v84" % (r + 2, r + 2))
        c("v_exp_f32 v%d, v%d" % (r, r)); c("v_exp_f32 v%d, v%d" % (r + 2, r + 2))
        c("v_mul_f32 v%d, v%d, v%d" % (r + 1, r + 1, r))
        c("v_fmac_f32 v%d, v%d, v%d" % (r + 1, r + 3, r + 2))
        c("v_rcp_f32 v%d, v%d" % (r + 1, r + 1))
        c("v_mul_f32 v%d, v%d, v%d" % (r, r, r + 1)); c("v_mul_f32 v%d, v%d, v%d" % (r + 2, r + 2, r + 1))
    c("s_waitcnt vmcnt(9)")
    for r in range(4): c("v_mul_f32 v%d, v8, v%d" % (84 + r, 24 + r))
    for j in range(1, 8):
        sc = 8 + 4 * (j // 2) + 2 * (j & 1)
        for r in range(4): c("v_fmac_f32 v%d, v%d, v%d" % (84 + r, sc, 24 + 4 * j + r))
    c("s_waitcnt vmcnt(0)")
    for r in range(4): c("v_add_f32 v%d, v%d, v%d" % (56 + r, 88 + r, 92 + r))
    for k in range(2, 7):
        for r in range(4): c("v_add_f32 v%d, v%d, v%d" % (56 + r, 56 + r, 88 + 4 * k + r))
    c("v_lshlrev_b32 v76, 16, v74"); c("v_and_b32 v77, 0xffff0000, v74"); c("v_lshlrev_b32 v78, 16, v75"); c("v_and_b32 v79, 0xffff0000, v75")
    c("v_cmp_eq_u32 vcc, 0, v1")
    for r in range(4): c("v_cndmask_b32 v%d, 0, v%d, vcc" % (76 + r, 76 + r))
    for r in range(4): c("v_add_f32 v%d, v%d, v%d" % (56 + r, 56 + r, 76 + r))
    for r in range(4): c("v_mul_f32 v%d, v72, v%d" % (84 + r, 84 + r))
    for r in range(4): c("v_fmac_f32 v%d, v73, v%d" % (84 + r, 56 + r))
    for r in range(4): c("v_add_f32_dpp v%d, v%d, v%d row_ror:8 row_mask:0xf bank_mask:0xf" % (84 + r, 84 + r, 84 + r))
    for sw in ("v_permlane16_swap_b32", "v_permlane32_swap_b32"):
        for r in range(4): c("v_mov_b32 v%d, v%d" % (60 + r, 84 + r))
        for r in range(4): c("%s v%d, v%d" % (sw, 84 + r, 60 + r))
        for r in range(4): c("v_add_f32 v%d, v%d, v%d" % (84 + r, 84 + r, 60 + r))
    c("v_cvt_pk_bf16_f32 v84, v84, v85")
    c("v_cvt_pk_bf16_f32 v85, v86, v87")
    c("s_mov_b64 exec, 0xff")
    c("global_store_dwordx2 v6, v[84:85], s[4:5]")
    if stamps:
        c("s_waitcnt vmcnt(0)")
        c("s_memrealtime s[38:39]")
        c("s_waitcnt lgkmcnt(0)")
        c("s_mov_b64 exec, 0xf")
        c("v_and_b32 v1, 3, v0")
        c("s_lshl_b32 s34, s2, 2")
        c("v_add_u32 v1, s34, v1")
        c("v_lshlrev_b32 v1, 3, v1")
        for k in range(2):
            c("v_add_u32 v2, 0x%x, v1" % (WS_STAMP + 0x10000 + 0x1000 * (5 + k)))
            c("v_mov_b32 v8, s%d" % (36 + 2 * k)); c("v_mov_b32 v9, s%d" % (37 + 2 * k))
            c("global_store_dwordx2 v2, v[8:9], s[6:7]")
            c("s_nop 1")
    c("L2_done:")
    c("s_endpgm")
    body2 = c.finish() if not k2w else kernel2_wide()

    hdr = open("cdna_kernels/%s.s.ref" % NAME).read().split("; Override launch")[0]
    out = hdr
    out += "; @launch kernel=%s grid=(256,1,1) block=(%d,1,1) lds=%d\n" % (K1, 64 * W, L_END)
    out += "; @launch kernel=%s grid=(%d,1,1) block=(64,1,1) lds=0\n" % (K2, 128 if k2w else 64)
    out += '.amdgcn_target "amdgcn-amd-amdhsa--gfx950"\n.text\n'
    for k, body in ((K1, body1), (K2, body2)):
        out += ".globl %s\n.p2align 8\n.type %s,@function\n" % (k, k) + body
    out += '.section .rodata,"a"\n'
    for k, nv, ns in ((K1, NV, 100), (K2, 72 if k2w else 116, 56)):
        out += ".p2align 6\n.amdhsa_kernel %s\n" % k
        out += "  .amdhsa_next_free_vgpr %d\n  .amdhsa_next_free_sgpr %d\n  .amdhsa_accum_offset %d\n" % (nv, ns, (nv + 3) // 4 * 4)
        out += "  .amdhsa_group_segment_fixed_size 0\n  .amdhsa_kernarg_size 112\n  .amdhsa_user_sgpr_count 2\n"
        out += "  .amdhsa_user_sgpr_kernarg_segment_ptr 1\n  .amdhsa_system_sgpr_workgroup_id_x 1\n"
        out += "  .amdhsa_float_denorm_mode_32 3\n"
        out += ".end_amdhsa_kernel\n"
    return out

if __name__ == "__main__":
    import argparse
    ap = argparse.ArgumentParser()
    ap.add_argument("-o", default="cdna_kernels/%s.s" % NAME)
    ap.add_argument("--D", type=int, default=2)
    ap.add_argument("--kvpol", default="nt")
    ap.add_argument("--wqpol", default="")
    ap.add_argument("--wopol", default="")
    ap.add_argument("--fpol", default="")
    ap.add_argument("--stpol", default="")
    ap.add_argument("--stamps", action="store_true")
    ap.add_argument("--noffn", action="store_true")
    ap.add_argument("--abl", default="")
    ap.add_argument("--early", action="store_true")
    ap.add_argument("--touch", action="store_true")
    ap.add_argument("--pretab", default="00000000")
    ap.add_argument("--preidx", default="r")
    ap.add_argument("--nsh", type=int, default=8)
    ap.add_argument("--warm", action="store_true")
    ap.add_argument("--dry", action="store_true")
    ap.add_argument("--pfk2", action="store_true")
    ap.add_argument("--k2w", action="store_true")
    x = ap.parse_args()
    open(x.o, "w").write(gen(D=x.D, kvpol=x.kvpol, wqpol=x.wqpol, wopol=x.wopol, fpol=x.fpol, stpol=x.stpol,
                             stamps=x.stamps, ffn=not x.noffn, abl=tuple(x.abl.split(",")), early=x.early, touch=x.touch, pretab=tuple(int(ch) for ch in x.pretab), preidx=x.preidx, nsh=x.nsh, warm=x.warm, dry=x.dry, pfk2=x.pfk2, k2w=x.k2w))
    print("wrote", x.o)
```

```python
import sys, os, struct
sys.path.insert(0, os.path.dirname(os.path.abspath(__file__)))
from asmlib import Asm, VmQueue

NAME = "gated_mix__mha_block_cached__dense_activation_squared_relu__decode"
K1 = NAME + "_kernel"
K2 = "final_reduce_kernel"

def fbits(x): return "0x%08x" % struct.unpack("<I", struct.pack("<f", x))[0]
LOG2E = 1.4426950408889634
CSCALE = LOG2E * (128 ** -0.5)

NFF = 56
WS_Y, WS_YF, WS_ML, WS_G = 0, 0x80000, 0x100000, 0x101000
WS_STAMP = 0x20000000
L_QP, L_PRIV, L_EP, L_ML, L_CLAIM, L_HH, L_HP, L_XS, L_END = 0, 4096, 8192, 12288, 12416, 12544, 13568, 13568 + 8192, 13568 + 8192 + 4096

def vr(b, n=4): return "v[%d:%d]" % (b, b + n - 1)
def sp(b): return "s[%d:%d]" % (b, b + 1)
def sq(b): return "s[%d:%d]" % (b, b + 3)

def gen(D=2, kvpol="nt", wqpol="", wopol="", fpol="", stpol="", stamps=False, ffn=True, abl=(), early=False, touch=False, pretab=(0,) * 8, preidx="r", nsh=8, warm=False, dry=False, pfk2=False, k2w=False, prio=False, kvtouch=False):
    W = 8
    NT = 4096 // 16 // W
    a = Asm()
    P = lambda p: (" " + p) if p else ""
    MF = "v_mfma_f32_16x16x32_bf16"
    vLane, vG, vI = 1, 2, 3
    vKoff, vVoff, vL, vM, vMC = 4, 5, 6, 7, 8
    vEPa, vPriv, vTmp = 9, 10, 11
    vMask = 12
    vQ = 16; vS = 32; vP = 36; vA = [40, 44]; vO = 48; vT = 52
    vWoff, vYoff, vPrd, vOne = 60, 61, 62, 63
    vChk = vT + 7
    vKV = 64
    vWA = vKV + 32 * D
    NV = max(vWA + 64, 64 + 128 + 32)
    assert NV <= 256
    Kb = lambda d: vKV + 32 * d
    Vb = lambda d: vKV + 32 * d + 16
    vWO = vKV
    vPP = vWO + 128
    vTch = Vb(D - 1)
    sX, sK, sV, sWq, sWo, sBx, sW1, sB1 = 4, 6, 8, 10, 12, 14, 16, 18
    sW2, sB2, sGw, sOut, sDbg, sWs = 20, 22, 24, 26, 28, 30
    sWave, sH, sB, sSp, sRot, sRow = 3, 32, 33, 34, 35, 36
    sOff, sCnt, sC, sGate = 37, 38, 39, 40
    sPriv, sCb, sSig = 41, 42, 43
    sWoT, sPre, sTask = 96, 97, 98
    rK, rV, rWq, rWo = 44, 48, 52, 56
    rW1, rW2 = 44, 48
    sT = 60
    sRet, sRare = 72, 74
    sY = 76
    sX0 = 78
    sStamp = 80
    sXS = 84
    NXS = 6
    vm = VmQueue(a)
    def xs(k):
        if stamps: a("s_memrealtime %s" % sp(sXS + 2 * k))
    def srd(r, base, off, nrec, nrec_sub=None):
        a("s_add_u32 s%d, s%d, s%d" % (r, base, off)); a("s_addc_u32 s%d, s%d, 0" % (r + 1, base + 1))
        if nrec_sub is None: a("s_mov_b32 s%d, 0x%x" % (r + 2, nrec))
        else: a("s_sub_u32 s%d, 0x%x, s%d" % (r + 2, nrec, nrec_sub))
        a("s_mov_b32 s%d, 0x20000" % (r + 3))
    def gemv(nld, Wreg, Preg, acc, waits=None):
        def ands(n):
            for r in range(4): a("v_and_b32 v%d, v%d, v%d" % (vA[n & 1] + r, Preg(n), vMask + r))
        ands(0)
        for n in range(nld):
            if waits: waits(n)
            if n + 1 < nld: ands(n + 1)
            a("%s %s, %s, %s, %s" % (MF, vr(acc), vr(vA[n & 1]), vr(Wreg(n)), "0" if n == 0 else vr(acc)))

    a("%s:" % K1)
    a("s_cmp_ge_u32 s2, 256")
    a("s_cbranch_scc1 L_done")
    a("s_load_dwordx16 s[4:19], s[0:1], 0")
    a("s_load_dwordx8 s[20:27], s[0:1], 64")
    a("s_load_dwordx4 s[28:31], s[0:1], 96")
    if stamps: a("s_memrealtime %s" % sp(sStamp))
    a("v_lshrrev_b32 v%d, 6, v0" % vTmp)
    a("v_and_b32 v%d, 63, v0" % vLane)
    a("v_readfirstlane_b32 s%d, v%d" % (sWave, vTmp))
    a("v_lshrrev_b32 v%d, 4, v%d" % (vG, vLane))
    a("v_and_b32 v%d, 15, v%d" % (vI, vLane))
    a("s_and_b32 s%d, s2, 7" % sT)
    a("s_lshr_b32 s%d, s2, 3" % (sT + 1))
    a("s_and_b32 s%d, s%d, 3" % (sT + 2, sT + 1))
    a("s_lshl_b32 s%d, s%d, 2" % (sH, sT))
    a("s_add_u32 s%d, s%d, s%d" % (sH, sH, sT + 2))
    a("s_lshr_b32 s%d, s%d, 2" % (sRot, sT + 1))
    a("s_lshr_b32 s%d, s%d, 3" % (sB, sT + 1))
    a("s_and_b32 s%d, s%d, 1" % (sSp, sRot))
    a("s_add_u32 s%d, s%d, s%d" % (sT + 3, sWave, sRot)); a("s_and_b32 s%d, s%d, 7" % (sT + 3, sT + 3))
    a("s_lshl_b32 s%d, s%d, 6" % (sT + 4, sT + 3))
    a("v_lshl_add_u32 v%d, v%d, 2, s%d" % (vA[0], vG, sT + 4))
    a("v_lshlrev_b32 v%d, 13, v%d" % (vA[1], vA[0]))
    a("v_lshl_add_u32 v%d, v%d, 4, v%d" % (vA[1], vI, vA[1]))
    a("v_lshlrev_b32 v%d, 1, v%d" % (vTmp, vA[0]))
    a("s_lshl_b32 s%d, s%d, 8" % (sT + 5, sH))
    a("s_lshl_b32 s%d, s%d, 10" % (sT + 6, sB))
    a("s_mov_b32 s%d, 0" % (sT + 8))
    a("s_waitcnt lgkmcnt(0)")
    srd(rWq, sWq, sT + 5, 4194304, sT + 5)
    if "nowq" in abl: a("s_mov_b32 s%d, 0" % (rWq + 2))
    a("s_mov_b32 s%d, s%d" % (sX0, sX)); a("s_mov_b32 s%d, s%d" % (sX0 + 1, sX + 1))
    a("s_add_u32 s%d, s%d, s%d" % (sX, sX, sT + 6)); a("s_addc_u32 s%d, s%d, 0" % (sX + 1, sX + 1))
    for u in range(4):
        vm.issue("gate", "global_load_dwordx2 v[%d:%d], v%d, %s offset:%d" % (vT + 2 * u, vT + 2 * u + 1, vTmp, sp(sX), 32 * u))
    if touch:
        a("s_cmp_lg_u32 s%d, 0" % sWave)
        a("s_cbranch_scc1 L_notouch")
        a("s_lshl_b32 s%d, s%d, 6" % (sT + 9, sRot))
        a("v_add_u32 v%d, s%d, v%d" % (vTch, sT + 9, vLane))
        a("v_lshlrev_b32 v%d, 13, v%d" % (vTch, vTch))
        a("buffer_load_dword v%d, v%d, %s, 0 offen%s" % (vTch + 1, vTch, sq(rWq), P(wqpol)))
        a("buffer_load_dword v%d, v%d, %s, 0 offen offset:128%s" % (vTch + 2, vTch, sq(rWq), P(wqpol)))
        a("L_notouch:")
    a("v_lshlrev_b32 v%d, 8, v%d" % (vKoff, vI))
    a("v_lshl_add_u32 v%d, v%d, 4, v%d" % (vKoff, vG, vKoff))
    a("v_lshlrev_b32 v%d, 10, v%d" % (vVoff, vG))
    a("v_lshl_add_u32 v%d, v%d, 4, v%d" % (vVoff, vI, vVoff))
    a("s_lshl_b32 s%d, s%d, 5" % (sRow, sB))
    a("s_add_u32 s%d, s%d, s%d" % (sRow, sRow, sH))
    a("s_lshl_b32 s%d, s%d, 1" % (sRow, sRow))
    a("s_add_u32 s%d, s%d, s%d" % (sRow, sRow, sSp))
    a("s_lshl_b32 s%d, s%d, 20" % (sT + 3, sRow))
    srd(rK, sK, sT + 3, 0x100000)
    srd(rV, sV, sT + 3, 0x100000)
    pol = P(kvpol)
    if kvtouch:
        a("s_cmp_lg_u32 s%d, 1" % sWave)
        a("s_cbranch_scc1 L_nokvt")
        a("v_mov_b32 v%d, 0" % (vTch + 3))
        a("s_mov_b64 exec, 1")
        a("buffer_load_dword v%d, v%d, %s, 0 offen%s" % (vTch + 4, vTch + 3, sq(rK), pol))
        a("buffer_load_dword v%d, v%d, %s, 0 offen%s" % (vTch + 5, vTch + 3, sq(rV), pol))
        a("s_mov_b64 exec, -1")
        a("L_nokvt:")
    def kload(d):
        for t in range(4):
            vm.issue("K%d" % d, "buffer_load_dwordx4 %s, v%d, %s, s%d offen offset:%d%s" % (vr(Kb(d) + 4 * t), vKoff, sq(rK), sOff, 64 * t, pol))
    def vload(d):
        for t in range(4):
            vm.issue("V%d" % d, "buffer_load_dwordx4 %s, v%d, %s, s%d offen offset:%d%s" % (vr(Vb(d) + 4 * t), vVoff, sq(rV), sOff, 256 * t, pol))
    def kv_prefetch(d0=0, d1=None):
        save = list(vm.q)
        a("s_lshl_b32 s%d, s%d, 12" % (sOff, sWave))
        if d0: a("s_add_u32 s%d, s%d, %d" % (sOff, sOff, 4096 * W * d0))
        for d in range(d0, D if d1 is None else d1):
            kload(d); vload(d)
            a("s_add_u32 s%d, s%d, %d" % (sOff, sOff, 4096 * W))
        vm.q = save
    pack = sum(p << (4 * i) for i, p in enumerate(pretab))
    npre = max(pretab)
    if preidx == "r": a("s_lshl_b32 s%d, s%d, 2" % (sPre, sRot))
    elif preidx == "h":
        a("s_and_b32 s%d, s%d, 7" % (sPre, sH)); a("s_lshl_b32 s%d, s%d, 2" % (sPre, sPre))
    elif preidx == "x":
        a("s_and_b32 s%d, s2, 7" % sPre); a("s_lshl_b32 s%d, s%d, 2" % (sPre, sPre))
    elif preidx == "hs":
        a("s_and_b32 s%d, s%d, 3" % (sPre, sH)); a("s_lshl_b32 s%d, s%d, 1" % (sPre, sPre)); a("s_add_u32 s%d, s%d, s%d" % (sPre, sPre, sSp))
        a("s_lshl_b32 s%d, s%d, 2" % (sPre, sPre))
    a("s_lshr_b32 s%d, 0x%x, s%d" % (sPre, pack, sPre))
    a("s_and_b32 s%d, s%d, 15" % (sPre, sPre))
    a("s_cmp_ge_u32 s%d, 4" % sWave)
    a("s_cselect_b32 s%d, 0, s%d" % (sPre, sPre))
    for d in range(npre):
        a("s_cmp_le_u32 s%d, %d" % (sPre, d))
        a("s_cbranch_scc1 L_pre%d" % d)
        kv_prefetch(d, d + 1)
        a("L_pre%d:" % d)
    for n in range(16):
        u, t = divmod(n, 4)
        vm.issue("wq%d" % u, "buffer_load_dwordx4 %s, v%d, %s, s%d offen%s" % (vr(vWA + 4 * n), vA[1], sq(rWq), sT + 8, P(wqpol)))
        if n < 15: a("s_add_u32 s%d, s%d, %d" % (sT + 8, sT + 8, 8192 if t < 3 else 13 * 8192))
    a("s_barrier")
    def old_prefetch():
        a("s_cmp_ge_u32 s%d, 4" % sWave)
        a("s_cbranch_scc1 L_pf1")
        for d in range(npre):
            a("s_cmp_gt_u32 s%d, %d" % (sPre, d))
            a("s_cbranch_scc1 L_pfs%d" % d)
            kv_prefetch(d, d + 1)
            a("L_pfs%d:" % d)
        if npre < D: kv_prefetch(npre)
        a("L_pf1:")
    if early: old_prefetch()
    xs(0)
    nw = [0]
    def dual_wait(tag):
        n = vm.count(tag)
        if not early:
            vm.wait(tag); return
        a("s_waitcnt vmcnt(%d)" % (n + 8 * D))
        for k in range(1, npre + 1):
            a("s_cmp_lt_u32 s%d, %d" % (sPre, k))
            a("s_cbranch_scc1 L_dx%d_%d" % (nw[0], k))
            a("s_waitcnt vmcnt(%d)" % (n + 8 * (D - k)))
            a("L_dx%d_%d:" % (nw[0], k))
        a("s_cmp_lt_u32 s%d, 4" % sWave)
        a("s_cbranch_scc1 L_dw%d" % nw[0])
        a("s_waitcnt vmcnt(%d)" % n)
        a("L_dw%d:" % nw[0]); nw[0] += 1
        vm.q = vm.q[len(vm.q) - n:] if n else []
    a("s_lshl_b32 s%d, s%d, 17" % (sT + 6, sH))
    srd(rWo, sWo, sT + 6, 131072)
    if "nowo" in abl: a("s_mov_b32 s%d, 0" % (rWo + 2))
    a("s_mov_b32 s%d, %s" % (sC, fbits(CSCALE)))
    a("s_mov_b32 s%d, 0" % sGate)
    a("s_getpc_b64 %s" % sp(sRare))
    a("L_pc:")
    a("s_add_u32 s%d, s%d, L_rare-L_pc" % (sRare, sRare))
    a("s_addc_u32 s%d, s%d, 0" % (sRare + 1, sRare + 1))
    a("v_and_b32 v%d, 7, v%d" % (vTmp, vI))
    a("v_lshrrev_b32 v%d, 1, v%d" % (vA[1] + 1, vTmp))
    a("v_and_b32 v%d, 1, v%d" % (vTmp, vTmp))
    a("v_lshlrev_b32 v%d, 4, v%d" % (vTmp, vTmp))
    a("v_mov_b32 v%d, 0xffff" % (vA[1] + 2))
    a("v_lshlrev_b32 v%d, v%d, v%d" % (vA[1] + 2, vTmp, vA[1] + 2))
    for r in range(4):
        a("v_cmp_eq_u32 vcc, %d, v%d" % (r, vA[1] + 1))
        a("v_cndmask_b32 v%d, 0, v%d, vcc" % (vMask + r, vA[1] + 2))
    a("s_add_u32 s%d, s%d, s%d" % (sCb, sWave, sRot)); a("s_and_b32 s%d, s%d, 3" % (sCb, sCb))
    a("s_lshl_b32 s%d, s%d, 8" % (sT, sCb))
    a("v_lshlrev_b32 v%d, 12, v%d" % (vWoff, vG))
    a("v_lshl_add_u32 v%d, v%d, 4, v%d" % (vWoff, vI, vWoff))
    a("v_add_u32 v%d, s%d, v%d" % (vWoff, sT, vWoff))
    a("v_lshlrev_b32 v%d, 5, v%d" % (vEPa, vI))
    a("v_lshl_add_u32 v%d, v%d, 4, v%d" % (vEPa, vG, vEPa))
    a("s_lshl_b32 s%d, s%d, 9" % (sT, sCb))
    a("v_add_u32 v%d, s%d, v%d" % (vYoff, sT, vEPa))
    a("s_lshl_b32 s%d, s%d, 9" % (sT + 11, sWave))
    a("v_add_u32 v%d, s%d, v%d" % (vEPa, sT + 11, vEPa))
    a("s_add_u32 s%d, s%d, %d" % (sPriv, sT + 11, L_PRIV))
    a("v_lshl_add_u32 v%d, v%d, 4, s%d" % (vPrd, vG, sPriv))
    a("s_lshl_b32 s%d, s%d, 11" % (sT, sRow))
    a("s_add_u32 s%d, s%d, s%d" % (sY, sWs, sT)); a("s_addc_u32 s%d, s%d, 0" % (sY + 1, sWs + 1))
    a("v_mov_b32 v%d, 1" % vOne)
    a("v_mov_b32 v%d, %s" % (vM, fbits(-3.0e38)))
    a("v_mul_f32 v%d, s%d, v%d" % (vMC, sC, vM))
    a("v_mov_b32 v%d, 0" % vL)
    for r in range(4): a("v_mov_b32 v%d, 0" % (vO + r))
    dual_wait("gate")
    a("s_mov_b32 s%d, 0x01000100" % sT); a("s_mov_b32 s%d, 0x03020302" % (sT + 1))
    for u in range(4):
        for t in range(4):
            a("v_perm_b32 v%d, v%d, v%d, s%d" % (vQ + 4 * u + t, vT + 2 * u + t // 2, vT + 2 * u + t // 2, sT + (t & 1)))
    gemv(16, lambda n: vWA + 4 * n, lambda n: vQ + n, vS, waits=lambda n: dual_wait("wq%d" % (n // 4)) if n % 4 == 0 else None)
    a("s_mov_b32 exec_hi, 0")
    a("ds_write_b128 v%d, %s offset:%d" % (vEPa, vr(vS), L_QP))
    a("s_mov_b32 exec_hi, -1")
    a("v_mov_b32 v%d, %d" % (vT + 4, L_CLAIM))
    a("v_mov_b32 v%d, 0" % (vT + 6)); a("v_mov_b32 v%d, 0" % (vT + 7))
    a("s_mov_b64 exec, 1")
    a("ds_write_b64 v%d, v[%d:%d]" % (vT + 4, vT + 6, vT + 7))
    a("s_mov_b64 exec, -1")
    if not early: old_prefetch()
    a("s_waitcnt lgkmcnt(0)")
    a("s_barrier")
    a("s_cmp_lt_u32 s%d, 4" % sWave)
    a("s_cbranch_scc1 L_pf2")
    kv_prefetch()
    a("L_pf2:")
    vm.q = []
    for d in range(D): vm.note("K%d" % d, 4); vm.note("V%d" % d, 4)
    a("v_lshlrev_b32 v%d, 3, v%d" % (vTmp, vLane))
    tq = vQ
    for w in range(8):
        a("ds_read_b64 v[%d:%d], v%d offset:%d" % (tq + 2 * w, tq + 2 * w + 1, vTmp, L_QP + 512 * w))
    a("v_lshlrev_b32 v%d, 2, v%d" % (vPriv, vLane))
    a("v_add_u32 v%d, s%d, v%d" % (vPriv, sPriv, vPriv))
    a("s_waitcnt lgkmcnt(0)")
    for step in (4, 2, 1):
        for w in range(step):
            for k in range(2):
                a("v_add_f32 v%d, v%d, v%d" % (tq + 2 * w + k, tq + 2 * w + k, tq + 2 * (w + step) + k))
    a("v_cvt_pk_bf16_f32 v%d, v%d, v%d" % (vTmp, tq, tq + 1))
    a("ds_write_b32 v%d, v%d" % (vPriv, vTmp))
    a("s_waitcnt lgkmcnt(0)")
    for t in range(4):
        a("ds_read_b128 %s, v%d offset:%d" % (vr(vQ + 4 * t), vPrd, 64 * t))
    a("s_lshl_b32 s%d, s%d, 12" % (sOff, sWave))
    a("s_add_u32 s%d, s%d, %d" % (sOff, sOff, 4096 * W * D))
    a("s_waitcnt lgkmcnt(0)")
    xs(1)
    if prio:
        a("s_cmp_lt_u32 s%d, 4" % sWave)
        a("s_cbranch_scc1 L_noprio")
        a("s_setprio 1")
        a("L_noprio:")

    ntr = [0]; tramps = []
    tail_on = [False]; tail_extra = [0]; ntw = [0]; pending = []
    def kvwait(tag):
        if not tail_extra[0]:
            vm.wait(tag); return
        n = vm.count(tag)
        a("s_waitcnt vmcnt(%d)" % (n + tail_extra[0]))
        a("s_cmp_lg_u32 s%d, 0" % sTask)
        a("s_cbranch_scc1 L_tw%d" % ntw[0])
        a("s_waitcnt vmcnt(%d)" % n)
        a("L_tw%d:" % ntw[0]); ntw[0] += 1
        vm.q = vm.q[len(vm.q) - n:] if n else []
    def slot(k):
        if not tail_on[0] or not pending: return
        a("s_cmp_eq_u32 s%d, 0" % sTask)
        a("s_cbranch_scc1 L_sl%d" % ntw[0])
        for _ in range(min(k, len(pending))):
            for l in pending.pop(0): a(l)
            tail_extra[0] += 1
        a("L_sl%d:" % ntw[0]); ntw[0] += 1
    def tile(d, prefetch):
        kvwait("K%d" % d)
        for t in range(4):
            a("%s %s, %s, %s, %s" % (MF, vr(vS), vr(Kb(d) + 4 * t), vr(vQ + 4 * t), "0" if t == 0 else vr(vS)))
        if prefetch: kload(d)
        elif tail_on[0] and pending:
            slot(4)
            a("s_nop 7")
        a("v_max3_f32 v%d, v%d, v%d, v%d" % (vT, vS, vS + 1, vS + 2))
        a("v_max_f32 v%d, v%d, v%d" % (vT, vT, vS + 3))
        a("v_cmp_gt_f32 vcc, v%d, v%d" % (vT, vM))
        k = ntr[0]; ntr[0] += 1
        a("s_cbranch_vccnz L_tr%d" % k)
        a("L_back%d:" % k)
        tramps.append(k)
        for t in range(4): a("v_fma_f32 v%d, v%d, s%d, -v%d" % (vS + t, vS + t, sC, vMC))
        for t in range(4): a("v_exp_f32 v%d, v%d" % (vS + t, vS + t))
        a("v_add_f32 v%d, v%d, v%d" % (vT, vS, vS + 1))
        a("v_add_f32 v%d, v%d, v%d" % (vT + 1, vS + 2, vS + 3))
        for t in range(4): a("v_cvt_pk_bf16_f32 v%d, v%d, v%d" % (vP + t, vS + t, vS + t))
        a("v_add_f32 v%d, v%d, v%d" % (vT, vT, vT + 1))
        a("v_add_f32 v%d, v%d, v%d" % (vL, vL, vT))
        def ands(t):
            for r in range(4): a("v_and_b32 v%d, v%d, v%d" % (vA[t & 1] + r, vP + t, vMask + r))
        ands(0); ands(1)
        kvwait("V%d" % d)
        for t in range(4):
            a("%s %s, %s, %s, %s" % (MF, vr(vO), vr(vA[t & 1]), vr(Vb(d) + 4 * t), vr(vO)))
            if t + 2 < 4: ands(t + 2)
        if prefetch:
            vload(d)
            a("s_add_u32 s%d, s%d, %d" % (sOff, sOff, 4096 * W))
        else: slot(4)
    nl = (NT - D) // D
    rem = (NT - D) - nl * D
    m = 1
    while 2 * m <= nl - 3: m *= 2
    a("s_mul_i32 s%d, s%d, 3" % (sWoT, sH)); a("s_and_b32 s%d, s%d, %d" % (sWoT, sWoT, m - 1)); a("s_add_u32 s%d, s%d, %d" % (sWoT, sWoT, 4 if D == 2 else 3))
    a("s_cmp_lt_u32 s%d, 4" % sWave)
    a("s_cselect_b32 s%d, -1, s%d" % (sWoT, sWoT))
    a("s_cmp_eq_u32 s%d, 4" % sWave)
    a("s_cselect_b32 s%d, s%d, -1" % (sWoT, sWoT))
    a("s_cselect_b32 s%d, 2, -1" % sTask)
    a("v_mov_b32 v%d, -1" % vChk)
    a("s_mov_b32 s%d, %d" % (sCnt, nl))
    a("L_loop:")
    for it in range(D): tile(it, True)
    a("s_cmp_lg_u32 s%d, s%d" % (sCnt, sWoT))
    a("s_cbranch_scc1 L_norel")
    a("v_mov_b32 v%d, %d" % (vT + 2, L_CLAIM))
    a("s_mov_b64 exec, 1")
    a("ds_write_b32 v%d, v%d offset:4" % (vT + 2, vOne))
    a("s_mov_b64 exec, -1")
    a("L_norel:")
    if ffn:
        a("s_cmp_lg_u32 s%d, s%d" % (sCnt, sTask))
        a("s_cbranch_scc1 L_noclaim")
        a("s_lshr_b32 s%d, s2, 3" % sT)
        a("s_and_b32 s%d, s%d, %d" % (sT, sT, nsh - 1))
        a("s_lshl_b32 s%d, s%d, %d" % (sT + 1, sT, {1: 0, 2: 7, 4: 6, 8: 5}[nsh]))
        a("v_mov_b32 v%d, s%d" % (vT + 2, sT + 1))
        a("s_mov_b64 exec, 1")
        a("global_atomic_add v%d, v%d, v%d, %s sc0" % (vChk, vT + 2, vOne, sp(sDbg)))
        a("s_mov_b64 exec, -1")
        a("L_noclaim:")
    a("s_sub_u32 s%d, s%d, 1" % (sCnt, sCnt))
    a("s_cmp_lg_u32 s%d, 0" % sCnt)
    a("s_cbranch_scc1 L_loop")
    for it in range(rem): tile(it % D, True)
    a("s_mov_b32 s%d, 0" % sTask)
    fW1 = vWA; fW2 = vWA + 32; vB1 = vT + 5
    vF1, vF2, vF3 = vT + 3, vT + 4, vT + 6
    sF = sOff
    ffn_loads = []
    for n in range(8):
        u, t = divmod(n, 4)
        pre = ["s_mov_b32 s%d, %d" % (sF, (16 * u + t) * 3584)]
        ffn_loads.append(pre + ["buffer_load_dwordx4 %s, v%d, %s, s%d offen%s" % (vr(fW1 + 4 * n), vF1, sq(rW1), sF, P(fpol))])
    for n in range(8):
        u, t = divmod(n, 4)
        pre = ["s_mov_b32 s%d, %d" % (sF, 16384 * u)] if t == 0 else []
        ffn_loads.append(pre + ["buffer_load_dwordx4 %s, v%d, %s, s%d offen offset:%d%s" % (vr(fW2 + 4 * n), vF2, sq(rW2), sF, 1024 * t, P(fpol))])
    ffn_loads.append(["global_load_ushort v%d, v%d, %s" % (vB1, vF3, sp(sB1))])
    if ffn:
        a("s_cmp_lt_u32 s%d, 4" % sWave)
        a("s_cbranch_scc1 L_notask")
        a("v_mov_b32 v%d, %d" % (vT + 1, L_CLAIM))
        a("s_cmp_lg_u32 s%d, 4" % sWave)
        a("s_cbranch_scc1 L_spin")
        a("s_waitcnt vmcnt(%d)" % (8 * D))
        a("v_readfirstlane_b32 s%d, v%d" % (sSig, vChk))
        a("s_cmp_lg_u32 s%d, -1" % sSig)
        a("s_cbranch_scc1 L_have")
        a("s_waitcnt vmcnt(0)")
        a("v_readfirstlane_b32 s%d, v%d" % (sSig, vChk))
        a("L_have:")
        a("s_lshr_b32 s%d, s2, 3" % sT)
        a("s_and_b32 s%d, s%d, %d" % (sT, sT, nsh - 1))
        a("s_mul_i32 s%d, s%d, %d" % (sT, sT, NFF // nsh))
        a("s_add_u32 s%d, s%d, s%d" % (sT, sT, sSig))
        a("s_cmp_lt_u32 s%d, %d" % (sSig, NFF // nsh))
        a("s_cselect_b32 s%d, s%d, %d" % (sSig, sT, NFF))
        a("s_add_u32 s%d, s%d, 1" % (sT, sSig))
        a("v_mov_b32 v%d, s%d" % (vT + 2, sT))
        a("s_mov_b64 exec, 1")
        a("ds_write_b32 v%d, v%d" % (vT + 1, vT + 2))
        a("s_mov_b64 exec, -1")
        a("s_branch L_known")
        a("L_spin:")
        a("ds_read_b32 v%d, v%d" % (vT + 2, vT + 1))
        a("s_waitcnt lgkmcnt(0)")
        a("v_readfirstlane_b32 s%d, v%d" % (sSig, vT + 2))
        a("s_cmp_eq_u32 s%d, 0" % sSig)
        a("s_cbranch_scc1 L_spin")
        a("s_sub_u32 s%d, s%d, 1" % (sSig, sSig))
        a("L_known:")
        a("s_cmp_ge_u32 s%d, %d" % (sSig, 0 if "notask" in abl else NFF))
        a("s_cbranch_scc1 L_notask")
        a("s_mov_b32 s%d, 1" % sTask)
        sWy = sT + 9
        a("s_sub_u32 s%d, s%d, 4" % (sWy, sWave))
        a("s_lshl_b32 s%d, s%d, 6" % (sT, sSig))
        srd(rW1, sW1, sT, 1835008, sT)
        a("s_lshl_b32 s%d, s%d, 15" % (sT + 1, sSig))
        srd(rW2, sW2, sT + 1, 32768)
        a("s_add_u32 s%d, s%d, s%d" % (sB1, sB1, sT)); a("s_addc_u32 s%d, s%d, 0" % (sB1 + 1, sB1 + 1))
        a("s_lshl_b32 s%d, s%d, 7" % (sT + 2, sWy))
        a("v_lshrrev_b32 v%d, 2, v%d" % (vT + 1, vI))
        a("v_lshlrev_b32 v%d, 5, v%d" % (vT + 1, vT + 1))
        a("v_lshl_add_u32 v%d, v%d, 2, v%d" % (vT + 1, vG, vT + 1))
        a("v_add_u32 v%d, s%d, v%d" % (vT + 1, sT + 2, vT + 1))
        a("s_movk_i32 s%d, 3584" % (sT + 3))
        a("v_mul_lo_u32 v%d, v%d, s%d" % (vT + 1, vT + 1, sT + 3))
        a("v_and_b32 v%d, 3, v%d" % (vT + 2, vI))
        a("v_lshl_add_u32 v%d, v%d, 4, v%d" % (vT + 1, vT + 2, vT + 1))
        a("v_mov_b32 v%d, v%d" % (vF1, vT + 1))
        a("v_lshlrev_b32 v%d, 12, v%d" % (vF2, vG))
        a("v_lshl_add_u32 v%d, v%d, 4, v%d" % (vF2, vI, vF2))
        a("s_lshl_b32 s%d, s%d, 8" % (sT + 2, sWy))
        a("v_add_u32 v%d, s%d, v%d" % (vF2, sT + 2, vF2))
        a("v_and_b32 v%d, 31, v%d" % (vF3, vLane))
        a("v_lshlrev_b32 v%d, 1, v%d" % (vF3, vF3))
        a("L_notask:")
        if stamps:
            a("s_cmp_lt_u32 s%d, 4" % sWave)
            a("s_cbranch_scc1 L_nosig")
            a("s_mov_b32 s%d, s%d" % (sXS + 4, sSig)); a("s_mov_b32 s%d, 0" % (sXS + 5))
            a("L_nosig:")
    tail_on[0] = ffn
    pending[:] = list(ffn_loads) if ffn else []
    for it in range(D): tile((rem + it) % D, False)
    if ffn and pending: slot(len(pending))
    tail_on[0] = False
    xs(3)

    for k in range(4): a("v_readlane_b32 s%d, v%d, %d" % (sT + k, vL, 16 * k))
    a("s_lshl_b32 s%d, s%d, 3" % (sT + 4, sWave))
    a("v_mov_b32 v%d, s%d" % (vT + 1, sT))
    a("v_mov_b32 v%d, s%d" % (vT + 2, sT + 4))
    for k in range(1, 4): a("v_add_f32 v%d, s%d, v%d" % (vT + 1, sT + k, vT + 1))
    a("v_mov_b32 v%d, v%d" % (vT, vM))
    a("s_mov_b32 exec_hi, 0")
    a("ds_write_b128 v%d, %s offset:%d" % (vEPa, vr(vO), L_EP))
    a("s_mov_b32 exec_lo, 1")
    a("ds_write_b64 v%d, v[%d:%d] offset:%d" % (vT + 2, vT, vT + 1, L_ML))
    a("s_mov_b64 exec, -1")
    a("s_cmp_lt_u32 s%d, 4" % sWave)
    a("s_cbranch_scc1 L_old")
    a("s_waitcnt lgkmcnt(0)")
    a("s_barrier")
    if prio: a("s_setprio 0")
    if not ffn:
        a("s_branch L_fin")
    else:
        a("s_cmp_eq_u32 s%d, 0" % sTask)
        a("s_cbranch_scc1 L_fin")
        fX = vKV; fPl = vQ; fPh = vQ + 8
        sWy = sT + 9
        a("s_sub_u32 s%d, s%d, 4" % (sWy, sWave))
        a("s_lshl_b32 s%d, s%d, 7" % (sT + 2, sWy))
        a("v_lshrrev_b32 v%d, 3, v%d" % (vT, vI))
        a("v_lshlrev_b32 v%d, 5, v%d" % (vT, vT))
        a("v_lshl_add_u32 v%d, v%d, 2, v%d" % (vT, vG, vT))
        a("v_add_u32 v%d, s%d, v%d" % (vT, sT + 2, vT))
        a("v_lshlrev_b32 v%d, 1, v%d" % (vT, vT))
        for b in range(4):
            for hh_ in range(2):
                for u in range(2):
                    r0 = fX + 8 * b + 4 * hh_ + 2 * u
                    a("ds_read_b64 v[%d:%d], v%d offset:%d" % (r0, r0 + 1, vT, L_XS + 1024 * b + 128 * hh_ + 32 * u))
        a("v_lshrrev_b32 v%d, 2, v%d" % (vT + 4, vI))
        a("v_lshlrev_b32 v%d, 7, v%d" % (vT + 4, vT + 4))
        a("v_and_b32 v%d, 3, v%d" % (vT + 6, vI))
        a("v_lshl_add_u32 v%d, v%d, 5, v%d" % (vT + 4, vT + 6, vT + 4))
        a("v_and_b32 v%d, 1, v%d" % (vT + 6, vG))
        a("v_lshl_add_u32 v%d, v%d, 4, v%d" % (vT + 4, vT + 6, vT + 4))
        a("s_lshl_b32 s%d, s%d, 11" % (sT + 2, sWy))
        a("v_add_u32 v%d, s%d, v%d" % (vT + 4, sT + 2, vT + 4))
        a("s_mov_b32 s%d, 0x01000100" % (sT + 6)); a("s_mov_b32 s%d, 0x03020302" % (sT + 7))
        a("s_waitcnt vmcnt(9) lgkmcnt(0)")
        for b in range(4):
            for hh_ in range(2):
                for u in range(2):
                    for t in range(4):
                        src = fX + 8 * b + 4 * hh_ + 2 * u + t // 2
                        a("v_perm_b32 v%d, v%d, v%d, s%d" % (vQ + 8 * hh_ + 4 * u + t, src, src, sT + 6 + (t & 1)))
            gemv(8, lambda n: fW1 + 4 * n, lambda n: fPl + n, vS)
            gemv(8, lambda n: fW1 + 4 * n, lambda n: fPh + n, vP)
            a("s_mov_b32 exec_lo, 0x000f000f"); a("s_mov_b32 exec_hi, 0x00f000f0")
            a("ds_write_b128 v%d, %s offset:%d" % (vT + 4, vr(vS), L_HP + 512 * b))
            a("s_mov_b32 exec_lo, 0x0f000f00"); a("s_mov_b32 exec_hi, 0xf000f000")
            a("ds_write_b128 v%d, %s offset:%d" % (vT + 4, vr(vP), L_HP + 512 * b))
            a("s_mov_b64 exec, -1")
        a("s_waitcnt lgkmcnt(0)")
        a("s_barrier")
        a("v_and_b32 v%d, 31, v%d" % (vT + 4, vLane))
        a("v_lshlrev_b32 v%d, 2, v%d" % (vT + 4, vT + 4))
        a("v_lshrrev_b32 v%d, 5, v%d" % (vT + 6, vLane))
        a("v_lshl_add_u32 v%d, v%d, 8, v%d" % (vT + 6, vT + 6, vT + 4))
        a("s_lshl_b32 s%d, s%d, 9" % (sT + 2, sWy))
        a("v_add_u32 v%d, s%d, v%d" % (vT + 6, sT + 2, vT + 6))
        a("v_add_u32 v%d, %d, v%d" % (vT + 6, L_HP, vT + 6))
        for w in range(4):
            a("ds_read2_b32 v[%d:%d], v%d offset0:%d offset1:%d" % (vQ + 2 * w, vQ + 2 * w + 1, vT + 6, 0, 32) if w == 0 else
              "v_add_u32 v%d, 2048, v%d\nds_read2_b32 v[%d:%d], v%d offset0:0 offset1:32" % (vT + 6, vT + 6, vQ + 2 * w, vQ + 2 * w + 1, vT + 6))
        a("s_waitcnt vmcnt(0) lgkmcnt(0)")
        for w in range(4): a("v_add_f32 v%d, v%d, v%d" % (vQ + 2 * w, vQ + 2 * w, vQ + 2 * w + 1))
        a("v_add_f32 v%d, v%d, v%d" % (vQ, vQ, vQ + 2)); a("v_add_f32 v%d, v%d, v%d" % (vQ + 4, vQ + 4, vQ + 6))
        r = vQ
        a("v_add_f32 v%d, v%d, v%d" % (r, vQ, vQ + 4))
        a("v_mov_b32 v%d, v%d" % (r + 1, r))
        a("v_permlane32_swap_b32 v%d, v%d" % (r, r + 1))
        a("v_add_f32 v%d, v%d, v%d" % (r, r, r + 1))
        a("v_cvt_pk_bf16_f32 v%d, v%d, v%d" % (r, r, r))
        a("v_and_b32 v%d, 0xffff0000, v%d" % (r, r))
        a("v_lshlrev_b32 v%d, 16, v%d" % (vB1, vB1))
        a("v_add_f32 v%d, v%d, v%d" % (r, r, vB1))
        a("v_cvt_pk_bf16_f32 v%d, v%d, v%d" % (r, r, r))
        a("v_and_b32 v%d, 0xffff0000, v%d" % (r, r))
        a("v_max_f32 v%d, 0, v%d" % (r, r))
        a("v_mul_f32 v%d, v%d, v%d" % (r, r, r))
        a("v_cvt_pk_bf16_f32 v%d, v%d, v%d" % (r, r, r))
        a("s_lshl_b32 s%d, s%d, 7" % (sT + 2, sWy))
        a("v_add_u32 v%d, s%d, v%d" % (vT + 4, sT + 2, vT + 4))
        a("s_mov_b32 exec_hi, 0")
        a("ds_write_b32 v%d, v%d offset:%d" % (vT + 4, r, L_HH))
        a("s_mov_b32 exec_hi, -1")
        a("s_waitcnt lgkmcnt(0)")
        a("s_barrier")
        a("v_lshlrev_b32 v%d, 4, v%d" % (vT + 4, vG))
        for b in range(4):
            for u in range(2): a("ds_read_b128 %s, v%d offset:%d" % (vr(fX + 8 * b + 4 * u), vT + 4, L_HH + 128 * b + 64 * u))
        a("v_lshlrev_b32 v%d, 5, v%d" % (vT + 6, vI))
        a("v_lshl_add_u32 v%d, v%d, 4, v%d" % (vT + 6, vG, vT + 6))
        a("s_lshl_b32 s%d, s%d, 9" % (sT + 2, sWy))
        a("v_add_u32 v%d, s%d, v%d" % (vT + 6, sT + 2, vT + 6))
        a("s_lshl_b32 s%d, s%d, 11" % (sT + 2, sSig)); a("s_add_u32 s%d, s%d, 0x%x" % (sT + 2, sT + 2, WS_YF))
        a("s_add_u32 s%d, s%d, s%d" % (sY, sWs, sT + 2)); a("s_addc_u32 s%d, s%d, 0" % (sY + 1, sWs + 1))
        a("s_waitcnt lgkmcnt(0)")
        for b in range(4):
            acc = vS if b & 1 == 0 else vP
            gemv(8, lambda n: fW2 + 4 * n, lambda n: fX + 8 * b + n, acc)
            a("s_mov_b32 exec_hi, 0")
            a("global_store_dwordx4 v%d, %s, %s%s" % (vT + 6, vr(acc), sp(sY), P(stpol)))
            a("s_mov_b32 exec_hi, -1")
            if b < 3:
                a("s_add_u32 s%d, s%d, %d" % (sY, sY, NFF * 2048)); a("s_addc_u32 s%d, s%d, 0" % (sY + 1, sY + 1))
        a("s_branch L_fin")

    a("L_old:")
    a("s_and_b32 s%d, s%d, 63" % (sT, sRow))
    a("s_or_b32 s%d, s%d, s%d" % (sT, sT, sWave))
    a("s_cmp_lg_u32 s%d, 0" % sT)
    a("s_cbranch_scc1 L_nogate")
    a("v_lshlrev_b32 v%d, 4, v%d" % (vT, vLane))
    a("global_load_dwordx4 %s, v%d, %s" % (vr(vS), vT, sp(sX)))
    a("global_load_dwordx4 %s, v%d, %s" % (vr(vP), vT, sp(sGw)))
    a("s_waitcnt vmcnt(0)")
    a("v_mov_b32 v%d, 0" % vTmp)
    for r in range(4): a("v_dot2c_f32_bf16 v%d, v%d, v%d" % (vTmp, vS + r, vP + r))
    for m_ in ("quad_perm:[1,0,3,2]", "quad_perm:[2,3,0,1]", "row_half_mirror", "row_mirror"):
        a("v_add_f32_dpp v%d, v%d, v%d %s row_mask:0xf bank_mask:0xf" % (vTmp, vTmp, vTmp, m_))
    for k in range(4): a("v_readlane_b32 s%d, v%d, %d" % (sT + k, vTmp, 16 * k))
    a("v_mov_b32 v%d, s%d" % (vTmp, sT))
    for k in range(1, 4): a("v_add_f32 v%d, s%d, v%d" % (vTmp, sT + k, vTmp))
    a("v_mul_f32 v%d, %s, v%d" % (vTmp, fbits(-LOG2E), vTmp))
    a("v_exp_f32 v%d, v%d" % (vTmp, vTmp))
    a("v_add_f32 v%d, 1.0, v%d" % (vTmp, vTmp))
    a("v_rcp_f32 v%d, v%d" % (vTmp, vTmp))
    a("v_readfirstlane_b32 s%d, v%d" % (sGate, vTmp))
    a("L_nogate:")
    if warm:
        a("s_cmp_lg_u32 s%d, 0" % sWave)
        a("s_cbranch_scc1 L_nowarm")
        a("v_mov_b32 v%d, 0" % vT)
        a("global_load_dword v%d, v%d, %s" % (vKV + 0, vT, sp(sDbg)))
        a("global_load_dword v%d, v%d, %s" % (vKV + 1, vT, sp(sY)))
        a("v_mov_b32 v%d, 0x%x" % (vT + 1, WS_ML))
        a("global_load_dword v%d, v%d, %s" % (vKV + 2, vT + 1, sp(sWs)))
        a("v_mov_b32 v%d, 0x%x" % (vT + 2, WS_YF))
        a("global_load_dword v%d, v%d, %s" % (vKV + 3, vT + 2, sp(sWs)))
        a("global_load_dword v%d, v%d, %s" % (vKV + 4, vT, sp(sW1)))
        a("global_load_dword v%d, v%d, %s" % (vKV + 5, vT, sp(sW2)))
        a("global_load_dword v%d, v%d, %s" % (vKV + 6, vT, sp(sB1)))
        a("global_load_dword v%d, v%d, %s" % (vKV + 7, vT, sp(sWo)))
        a("s_waitcnt vmcnt(0)")
        a("L_nowarm:")
    if ffn:
        a("s_lshl_b32 s%d, s%d, 10" % (sT, sWave))
        a("v_lshl_add_u32 v%d, v%d, 4, s%d" % (vT, vLane, sT))
        a("global_load_dwordx4 %s, v%d, %s" % (vr(vS), vT, sp(sX0)))
        a("s_waitcnt vmcnt(0)")
        a("ds_write_b128 v%d, %s offset:%d" % (vT, vr(vS), L_XS))
        a("s_waitcnt lgkmcnt(0)")
    a("v_mov_b32 v%d, %d" % (vT + 1, L_CLAIM))
    a("L_worel:")
    a("ds_read_b32 v%d, v%d offset:4" % (vT + 2, vT + 1))
    a("s_waitcnt lgkmcnt(0)")
    a("v_readfirstlane_b32 s%d, v%d" % (sT, vT + 2))
    a("s_cmp_eq_u32 s%d, 0" % sT)
    a("s_cbranch_scc1 L_worel")
    a("s_mov_b32 s%d, 0" % (sT + 8))
    for n in range(32):
        u, t = divmod(n, 4)
        a("buffer_load_dwordx4 %s, v%d, %s, s%d offen offset:%d%s" % (vr(vWO + 4 * n), vWoff, sq(rWo), sT + 8, 1024 * t, P(wopol)))
        if t == 3 and n < 31: a("s_add_u32 s%d, s%d, 16384" % (sT + 8, sT + 8))
    if pfk2:
        a("s_getpc_b64 %s" % sp(sT + 2))
        a("L_pc2:")
        a("s_add_u32 s%d, s%d, %s-L_pc2" % (sT + 2, sT + 2, K2))
        a("s_addc_u32 s%d, s%d, 0" % (sT + 3, sT + 3))
        a("v_lshlrev_b32 v%d, 6, v%d" % (vT + 2, vLane))
        a("s_mov_b32 s%d, L2_done-%s" % (sT + 4, K2))
        a("v_min_u32 v%d, s%d, v%d" % (vT + 2, sT + 4, vT + 2))
        a("global_load_dword v%d, v%d, %s" % (vT + 3, vT + 2, sp(sT + 2)))
    if dry:
        a("s_mov_b32 s%d, 1" % sTask)
        a("s_branch L_epi")
        a("L_epi_wait:")
        a("s_mov_b32 s%d, 0" % sTask)
    a("s_waitcnt vmcnt(0) lgkmcnt(0)")
    if prio: a("s_setprio 2")
    a("s_barrier")
    xs(2)
    a("L_epi:")
    a("v_mov_b32 v%d, 0" % vT)
    a("v_lshlrev_b32 v%d, 2, v%d" % (vT + 1, vLane))
    tm = vQ; to = vPP
    for k in range(4): a("ds_read_b128 %s, v%d offset:%d" % (vr(tm + 4 * k), vT, L_ML + 16 * k))
    for w in range(8):
        a("ds_read2st64_b32 v[%d:%d], v%d offset0:%d offset1:%d" % (to + 2 * w, to + 2 * w + 1, vT + 1, L_EP // 256 + 2 * w, L_EP // 256 + 2 * w + 1))
    a("s_waitcnt lgkmcnt(8)")
    a("v_max3_f32 v%d, v%d, v%d, v%d" % (vM, tm, tm + 2, tm + 4))
    a("v_max3_f32 v%d, v%d, v%d, v%d" % (vM, vM, tm + 6, tm + 8))
    a("v_max3_f32 v%d, v%d, v%d, v%d" % (vM, vM, tm + 10, tm + 12))
    a("v_max_f32 v%d, v%d, v%d" % (vM, vM, tm + 14))
    a("v_mul_f32 v%d, s%d, v%d" % (vMC, sC, vM))
    for w in range(8): a("v_fma_f32 v%d, v%d, s%d, -v%d" % (tm + 2 * w, tm + 2 * w, sC, vMC))
    for w in range(8): a("v_exp_f32 v%d, v%d" % (tm + 2 * w, tm + 2 * w))
    a("s_waitcnt lgkmcnt(0)")
    for k in range(2): a("v_mul_f32 v%d, v%d, v%d" % (vT + 2 + k, tm, to + k))
    for w in range(1, 8):
        for k in range(2): a("v_fmac_f32 v%d, v%d, v%d" % (vT + 2 + k, tm + 2 * w, to + 2 * w + k))
    for k in range(2): a("v_cvt_pk_bf16_f32 v%d, v%d, v%d" % (vT + 2 + k, vT + 2 + k, vT + 2 + k))
    a("ds_write2st64_b32 v%d, v%d, v%d offset0:0 offset1:1" % (vPriv, vT + 2, vT + 3))
    a("v_mul_f32 v%d, v%d, v%d" % (vL, tm, tm + 1))
    for w in range(1, 8): a("v_fmac_f32 v%d, v%d, v%d" % (vL, tm + 2 * w, tm + 2 * w + 1))
    a("s_waitcnt lgkmcnt(0)")
    for u in range(8): a("ds_read_b128 %s, v%d offset:%d" % (vr(vPP + 4 * u), vPrd, 64 * u))
    a("s_waitcnt lgkmcnt(7)")
    gemv(32, lambda n: vWO + 4 * n, lambda n: vPP + n, vS,
         waits=lambda n: a("s_waitcnt lgkmcnt(%d)" % max(0, 7 - (n + 1) // 4)) if (n + 1) % 4 == 0 and n < 31 else None)
    if dry:
        a("s_cmp_lg_u32 s%d, 0" % sTask)
        a("s_cbranch_scc1 L_epi_wait")
    a("s_mov_b32 exec_hi, 0")
    xs(4)
    a("global_store_dwordx4 v%d, %s, %s%s" % (vYoff, vr(vS), sp(sY), P(stpol)))
    a("s_mov_b64 exec, -1")
    a("s_cmp_lg_u32 s%d, 0" % sWave)
    a("s_cbranch_scc1 L_w0done")
    a("v_mov_b32 v%d, v%d" % (vT + 2, vMC))
    a("v_mov_b32 v%d, v%d" % (vT + 3, vL))
    a("v_mov_b32 v%d, s%d" % (vT + 4, sGate))
    a("v_sub_f32 v%d, 1.0, v%d" % (vT + 5, vT + 4))
    a("s_lshl_b32 s%d, s%d, 3" % (sT + 2, sRow)); a("s_add_u32 s%d, s%d, 0x%x" % (sT + 2, sT + 2, WS_ML))
    a("v_mov_b32 v%d, s%d" % (vT + 6, sT + 2))
    a("s_mov_b64 exec, 1")
    a("global_store_dwordx2 v%d, v[%d:%d], %s%s" % (vT + 6, vT + 2, vT + 3, sp(sWs), P(stpol)))
    a("s_and_b32 s%d, s%d, 63" % (sT + 3, sRow))
    a("s_cmp_lg_u32 s%d, 0" % (sT + 3))
    a("s_cbranch_scc1 L_nog")
    a("s_lshl_b32 s%d, s%d, 3" % (sT + 2, sB)); a("s_add_u32 s%d, s%d, 0x%x" % (sT + 2, sT + 2, WS_G))
    a("v_mov_b32 v%d, s%d" % (vT + 7, sT + 2))
    a("global_store_dwordx2 v%d, v[%d:%d], %s%s" % (vT + 7, vT + 4, vT + 5, sp(sWs), P(stpol)))
    a("L_nog:")
    a("s_mov_b64 exec, -1")
    a("L_w0done:")
    if stamps:
        a("s_cmp_lg_u32 s%d, 0" % sWave)
        a("s_cbranch_scc1 L_nost")
        a("s_mov_b64 exec, 1")
        a("s_memrealtime %s" % sp(sStamp + 2))
        a("s_waitcnt lgkmcnt(0)")
        for k in range(4): a("v_mov_b32 v%d, s%d" % (vQ + k, sStamp + k))
        a("s_lshl_b32 s%d, s2, 4" % sT); a("s_add_u32 s%d, s%d, 0x%x" % (sT, sT, WS_STAMP))
        a("v_mov_b32 v%d, s%d" % (vT + 2, sT))
        a("global_store_dwordx4 v%d, %s, %s" % (vT + 2, vr(vQ), sp(sWs)))
        a("s_mov_b64 exec, -1")
        a("L_nost:")
    a("L_fin:")
    if stamps:
        a("s_mov_b64 exec, 1")
        xs(5)
        a("s_waitcnt lgkmcnt(0)")
        for k in range(NXS):
            a("s_lshl_b32 s%d, s2, 3" % sT); a("s_add_u32 s%d, s%d, s%d" % (sT, sT, sWave)); a("s_lshl_b32 s%d, s%d, 3" % (sT, sT))
            a("s_add_u32 s%d, s%d, 0x%x" % (sT, sT, WS_STAMP + 0x40000 + 0x4000 * k))
            a("v_mov_b32 v%d, s%d" % (vT + 2, sT))
            a("v_mov_b32 v%d, s%d" % (vQ + 4, sXS + 2 * k)); a("v_mov_b32 v%d, s%d" % (vQ + 5, sXS + 2 * k + 1))
            a("global_store_dwordx2 v%d, v[%d:%d], %s" % (vT + 2, vQ + 4, vQ + 5, sp(sWs)))
            a("s_nop 1")
    a("L_done:")
    a("s_endpgm")
    for k in tramps:
        a("L_tr%d:" % k)
        a("s_swappc_b64 %s, %s" % (sp(sRet), sp(sRare)))
        a("s_branch L_back%d" % k)
    a("L_rare:")
    for k in range(4): a("v_readlane_b32 s%d, v%d, %d" % (sT + k, vT, 16 * k))
    a("v_mov_b32 v%d, s%d" % (vT + 1, sT))
    for k in range(1, 4): a("v_max_f32 v%d, s%d, v%d" % (vT + 1, sT + k, vT + 1))
    a("v_max_f32 v%d, v%d, v%d" % (vT + 1, vT + 1, vM))
    a("v_sub_f32 v%d, v%d, v%d" % (vT + 2, vM, vT + 1))
    a("v_mul_f32 v%d, s%d, v%d" % (vT + 2, sC, vT + 2))
    a("v_exp_f32 v%d, v%d" % (vT + 2, vT + 2))
    a("v_mov_b32 v%d, v%d" % (vM, vT + 1))
    a("v_mul_f32 v%d, s%d, v%d" % (vMC, sC, vT + 1))
    for r in range(4): a("v_mul_f32 v%d, v%d, v%d" % (vO + r, vO + r, vT + 2))
    a("v_mul_f32 v%d, v%d, v%d" % (vL, vL, vT + 2))
    a("s_nop 1")
    a("s_setpc_b64 %s" % sp(sRet))
    body1 = a.finish()

    def kernel2_wide():
        c = Asm()
        c("%s:" % K2)
        c("s_cmp_ge_u32 s2, 128")
        c("s_cbranch_scc1 L2_done")
        c("s_load_dwordx2 s[32:33], s[0:1], 72")
        c("s_load_dwordx2 s[4:5], s[0:1], 88")
        c("s_load_dwordx2 s[6:7], s[0:1], 104")
        if stamps: c("s_memrealtime s[36:37]")
        c("s_lshr_b32 s8, s2, 5")
        c("s_and_b32 s9, s2, 31")
        c("v_lshrrev_b32 v1, 2, v0")
        c("v_and_b32 v2, 3, v0")
        c("v_lshlrev_b32 v3, 13, v1")
        c("v_lshl_add_u32 v3, v2, 4, v3")
        c("v_lshlrev_b32 v4, 11, v1")
        c("v_lshl_add_u32 v4, v2, 4, v4")
        c("v_lshlrev_b32 v5, 5, v1")
        c("v_lshlrev_b32 v6, 3, v2")
        c("s_lshl_b32 s11, s9, 6")
        c("s_lshl_b32 s10, s8, 17"); c("s_add_u32 s10, s10, s11")
        c("s_mul_i32 s12, s8, %d" % (NFF * 2048)); c("s_add_u32 s12, s12, s11"); c("s_add_u32 s12, s12, 0x%x" % WS_YF)
        c("s_lshl_b32 s13, s8, 9"); c("s_add_u32 s13, s13, 0x%x" % WS_ML)
        c("s_movk_i32 s24, 4096")
        for k in range(1, 4): c("s_mov_b32 s%d, %d" % (41 + k, 32768 * k))
        c("s_lshl_b32 s31, s8, 3"); c("s_add_u32 s31, s31, 0x%x" % WS_G)
        c("v_mov_b32 v7, s31")
        c("s_lshl_b32 s35, s9, 5")
        c("s_waitcnt lgkmcnt(0)")
        c("s_add_u32 s14, s6, s13"); c("s_addc_u32 s15, s7, 0")
        for k in range(2): c("global_load_dwordx4 %s, v5, s[14:15] offset:%d" % (vr(8 + 4 * k), 16 * k))
        c("s_add_u32 s16, s6, s10"); c("s_addc_u32 s17, s7, 0"); c("s_mov_b32 s18, 0x20000"); c("s_mov_b32 s19, 0x20000")
        for j in range(4):
            c("buffer_load_dwordx4 %s, v3, s[16:19], %s offen offset:%d" % (vr(24 + 4 * j), "0" if j < 2 else "s24", 2048 * (j & 1)))
        c("s_add_u32 s20, s6, s12"); c("s_addc_u32 s21, s7, 0"); c("s_sub_u32 s22, %d, s11" % (NFF * 2048)); c("s_mov_b32 s23, 0x20000")
        for k in range(4):
            c("buffer_load_dwordx4 %s, v4, s[20:23], %s offen" % (vr(40 + 4 * k), "0" if k == 0 else "s%d" % (41 + k)))
        c("global_load_dwordx2 v[56:57], v7, s[6:7]")
        c("s_add_u32 s32, s32, s35"); c("s_addc_u32 s33, s33, 0")
        c("global_load_dwordx2 v[58:59], v6, s[32:33]")
        c("s_lshl_b32 s34, s8, 10"); c("s_add_u32 s34, s34, s35")
        c("s_add_u32 s4, s4, s34"); c("s_addc_u32 s5, s5, 0")
        c("v_cmp_eq_u32 vcc, 0, v1")
        c("s_waitcnt vmcnt(10)")
        for p in range(2):
            r = 8 + 4 * p
            c("v_max_f32 v%d, v%d, v%d" % (60 + p, r, r + 2))
        for p in range(2):
            r = 8 + 4 * p
            c("v_sub_f32 v%d, v%d, v%d" % (r, r, 60 + p)); c("v_sub_f32 v%d, v%d, v%d" % (r + 2, r + 2, 60 + p))
        for p in range(2):
            r = 8 + 4 * p
            c("v_exp_f32 v%d, v%d" % (r, r)); c("v_exp_f32 v%d, v%d" % (r + 2, r + 2))
        for p in range(2):
            r = 8 + 4 * p
            c("v_mul_f32 v%d, v%d, v%d" % (r + 1, r + 1, r))
        for p in range(2):
            r = 8 + 4 * p
            c("v_fmac_f32 v%d, v%d, v%d" % (r + 1, r + 3, r + 2))
        for p in range(2): c("v_rcp_f32 v%d, v%d" % (9 + 4 * p, 9 + 4 * p))
        c("s_nop 0")
        for p in range(2):
            r = 8 + 4 * p
            c("v_mul_f32 v%d, v%d, v%d" % (r, r, r + 1)); c("v_mul_f32 v%d, v%d, v%d" % (r + 2, r + 2, r + 1))
        c("s_waitcnt vmcnt(6)")
        for r in range(4): c("v_mul_f32 v%d, v8, v%d" % (64 + r, 24 + r))
        for j in range(1, 4):
            sc = 8 + 4 * (j // 2) + 2 * (j & 1)
            for r in range(4): c("v_fmac_f32 v%d, v%d, v%d" % (64 + r, sc, 24 + 4 * j + r))
        c("s_waitcnt vmcnt(0)")
        for r in range(4): c("v_add_f32 v%d, v%d, v%d" % (40 + r, 40 + r, 44 + r))
        for r in range(4): c("v_add_f32 v%d, v%d, v%d" % (48 + r, 48 + r, 52 + r))
        c("v_lshlrev_b32 v60, 16, v58"); c("v_and_b32 v61, 0xffff0000, v58"); c("v_lshlrev_b32 v62, 16, v59"); c("v_and_b32 v63, 0xffff0000, v59")
        for r in range(4): c("v_add_f32 v%d, v%d, v%d" % (40 + r, 40 + r, 48 + r))
        for r in range(4): c("v_cndmask_b32 v%d, 0, v%d, vcc" % (60 + r, 60 + r))
        for r in range(4): c("v_add_f32 v%d, v%d, v%d" % (40 + r, 40 + r, 60 + r))
        for r in range(4): c("v_mul_f32 v%d, v56, v%d" % (64 + r, 64 + r))
        for r in range(4): c("v_fmac_f32 v%d, v57, v%d" % (64 + r, 40 + r))
        for m_ in ("row_ror:4", "row_ror:8"):
            for r in range(4): c("v_add_f32_dpp v%d, v%d, v%d %s row_mask:0xf bank_mask:0xf" % (64 + r, 64 + r, 64 + r, m_))
        for sw in ("v_permlane16_swap_b32", "v_permlane32_swap_b32"):
            for r in range(4): c("v_mov_b32 v%d, v%d" % (60 + r, 64 + r))
            for r in range(4): c("%s v%d, v%d" % (sw, 64 + r, 60 + r))
            for r in range(4): c("v_add_f32 v%d, v%d, v%d" % (64 + r, 64 + r, 60 + r))
        c("v_cvt_pk_bf16_f32 v64, v64, v65")
        c("v_cvt_pk_bf16_f32 v65, v66, v67")
        c("s_mov_b64 exec, 0xf")
        c("global_store_dwordx2 v6, v[64:65], s[4:5]")
        if stamps:
            c("s_waitcnt vmcnt(0)")
            c("s_memrealtime s[38:39]")
            c("s_waitcnt lgkmcnt(0)")
            c("s_mov_b64 exec, 0x3")
            c("v_and_b32 v1, 1, v0")
            c("s_lshl_b32 s34, s2, 1")
            c("v_add_u32 v1, s34, v1")
            c("v_lshlrev_b32 v1, 3, v1")
            for k in range(2):
                c("v_add_u32 v2, 0x%x, v1" % (WS_STAMP + 0x10000 + 0x1000 * (5 + k)))
                c("v_mov_b32 v8, s%d" % (36 + 2 * k)); c("v_mov_b32 v9, s%d" % (37 + 2 * k))
                c("global_store_dwordx2 v2, v[8:9], s[6:7]")
                c("s_nop 1")
        c("L2_done:")
        c("s_endpgm")
        return c.finish()
    c = Asm()
    c("%s:" % K2)
    c("s_cmp_ge_u32 s2, 64")
    c("s_cbranch_scc1 L2_done")
    c("s_load_dwordx2 s[4:5], s[0:1], 88")
    c("s_load_dwordx2 s[6:7], s[0:1], 104")
    c("s_load_dwordx2 s[32:33], s[0:1], 72")
    if stamps: c("s_memrealtime s[36:37]")
    c("s_lshr_b32 s8, s2, 4")
    c("s_and_b32 s9, s2, 15")
    c("v_lshrrev_b32 v1, 3, v0")
    c("v_and_b32 v2, 7, v0")
    c("v_lshlrev_b32 v3, 14, v1")
    c("v_lshl_add_u32 v3, v2, 4, v3")
    c("v_lshlrev_b32 v4, 11, v1")
    c("v_lshl_add_u32 v4, v2, 4, v4")
    c("v_lshlrev_b32 v5, 6, v1")
    c("v_lshlrev_b32 v6, 3, v2")
    c("s_lshl_b32 s10, s8, 17"); c("s_lshl_b32 s11, s9, 7"); c("s_add_u32 s10, s10, s11")
    c("s_mul_i32 s12, s8, %d" % (NFF * 2048)); c("s_add_u32 s12, s12, s11"); c("s_add_u32 s12, s12, 0x%x" % WS_YF)
    c("s_lshl_b32 s13, s8, 9"); c("s_add_u32 s13, s13, 0x%x" % WS_ML)
    c("s_movk_i32 s24, 4096"); c("s_movk_i32 s25, 8192"); c("s_movk_i32 s26, 12288")
    for k in range(1, 7): c("s_mov_b32 s%d, %d" % (41 + k, 16384 * k))
    c("s_lshl_b32 s31, s8, 3"); c("s_add_u32 s31, s31, 0x%x" % WS_G)
    c("v_mov_b32 v7, s31")
    c("s_lshl_b32 s35, s9, 6")
    c("s_waitcnt lgkmcnt(0)")
    c("s_add_u32 s14, s6, s13"); c("s_addc_u32 s15, s7, 0")
    for k in range(4): c("global_load_dwordx4 %s, v5, s[14:15] offset:%d" % (vr(8 + 4 * k), 16 * k))
    c("s_add_u32 s16, s6, s10"); c("s_addc_u32 s17, s7, 0"); c("s_mov_b32 s18, 0x20000"); c("s_mov_b32 s19, 0x20000")
    for j in range(8):
        so = "0" if j < 2 else "s%d" % (24 + j // 2 - 1)
        c("buffer_load_dwordx4 %s, v3, s[16:19], %s offen offset:%d" % (vr(24 + 4 * j), so, 2048 * (j & 1)))
    c("s_add_u32 s20, s6, s12"); c("s_addc_u32 s21, s7, 0"); c("s_sub_u32 s22, %d, s11" % (NFF * 2048)); c("s_mov_b32 s23, 0x20000")
    for k in range(7):
        c("buffer_load_dwordx4 %s, v4, s[20:23], %s offen" % (vr(88 + 4 * k), "0" if k == 0 else "s%d" % (41 + k)))
    c("global_load_dwordx2 v[72:73], v7, s[6:7]")
    c("s_add_u32 s32, s32, s35"); c("s_addc_u32 s33, s33, 0")
    c("global_load_dwordx2 v[74:75], v6, s[32:33]")
    c("s_lshl_b32 s34, s8, 10"); c("s_add_u32 s34, s34, s35")
    c("s_add_u32 s4, s4, s34"); c("s_addc_u32 s5, s5, 0")
    c("s_waitcnt vmcnt(17)")
    for p in range(4):
        r = 8 + 4 * p
        c("v_max_f32 v84, v%d, v%d" % (r, r + 2))
        c("v_sub_f32 v%d, v%d, v84" % (r, r)); c("v_sub_f32 v%d, v%d, v84" % (r + 2, r + 2))
        c("v_exp_f32 v%d, v%d" % (r, r)); c("v_exp_f32 v%d, v%d" % (r + 2, r + 2))
        c("v_mul_f32 v%d, v%d, v%d" % (r + 1, r + 1, r))
        c("v_fmac_f32 v%d, v%d, v%d" % (r + 1, r + 3, r + 2))
        c("v_rcp_f32 v%d, v%d" % (r + 1, r + 1))
        c("v_mul_f32 v%d, v%d, v%d" % (r, r, r + 1)); c("v_mul_f32 v%d, v%d, v%d" % (r + 2, r + 2, r + 1))
    c("s_waitcnt vmcnt(9)")
    for r in range(4): c("v_mul_f32 v%d, v8, v%d" % (84 + r, 24 + r))
    for j in range(1, 8):
        sc = 8 + 4 * (j // 2) + 2 * (j & 1)
        for r in range(4): c("v_fmac_f32 v%d, v%d, v%d" % (84 + r, sc, 24 + 4 * j + r))
    c("s_waitcnt vmcnt(0)")
    for r in range(4): c("v_add_f32 v%d, v%d, v%d" % (56 + r, 88 + r, 92 + r))
    for k in range(2, 7):
        for r in range(4): c("v_add_f32 v%d, v%d, v%d" % (56 + r, 56 + r, 88 + 4 * k + r))
    c("v_lshlrev_b32 v76, 16, v74"); c("v_and_b32 v77, 0xffff0000, v74"); c("v_lshlrev_b32 v78, 16, v75"); c("v_and_b32 v79, 0xffff0000, v75")
    c("v_cmp_eq_u32 vcc, 0, v1")
    for r in range(4): c("v_cndmask_b32 v%d, 0, v%d, vcc" % (76 + r, 76 + r))
    for r in range(4): c("v_add_f32 v%d, v%d, v%d" % (56 + r, 56 + r, 76 + r))
    for r in range(4): c("v_mul_f32 v%d, v72, v%d" % (84 + r, 84 + r))
    for r in range(4): c("v_fmac_f32 v%d, v73, v%d" % (84 + r, 56 + r))
    for r in range(4): c("v_add_f32_dpp v%d, v%d, v%d row_ror:8 row_mask:0xf bank_mask:0xf" % (84 + r, 84 + r, 84 + r))
    for sw in ("v_permlane16_swap_b32", "v_permlane32_swap_b32"):
        for r in range(4): c("v_mov_b32 v%d, v%d" % (60 + r, 84 + r))
        for r in range(4): c("%s v%d, v%d" % (sw, 84 + r, 60 + r))
        for r in range(4): c("v_add_f32 v%d, v%d, v%d" % (84 + r, 84 + r, 60 + r))
    c("v_cvt_pk_bf16_f32 v84, v84, v85")
    c("v_cvt_pk_bf16_f32 v85, v86, v87")
    c("s_mov_b64 exec, 0xff")
    c("global_store_dwordx2 v6, v[84:85], s[4:5]")
    if stamps:
        c("s_waitcnt vmcnt(0)")
        c("s_memrealtime s[38:39]")
        c("s_waitcnt lgkmcnt(0)")
        c("s_mov_b64 exec, 0xf")
        c("v_and_b32 v1, 3, v0")
        c("s_lshl_b32 s34, s2, 2")
        c("v_add_u32 v1, s34, v1")
        c("v_lshlrev_b32 v1, 3, v1")
        for k in range(2):
            c("v_add_u32 v2, 0x%x, v1" % (WS_STAMP + 0x10000 + 0x1000 * (5 + k)))
            c("v_mov_b32 v8, s%d" % (36 + 2 * k)); c("v_mov_b32 v9, s%d" % (37 + 2 * k))
            c("global_store_dwordx2 v2, v[8:9], s[6:7]")
            c("s_nop 1")
    c("L2_done:")
    c("s_endpgm")
    body2 = c.finish() if not k2w else kernel2_wide()

    hdr = open("cdna_kernels/%s.s.ref" % NAME).read().split("; Override launch")[0]
    out = hdr
    out += "; @launch kernel=%s grid=(256,1,1) block=(%d,1,1) lds=%d\n" % (K1, 64 * W, L_END)
    out += "; @launch kernel=%s grid=(%d,1,1) block=(64,1,1) lds=0\n" % (K2, 128 if k2w else 64)
    out += '.amdgcn_target "amdgcn-amd-amdhsa--gfx950"\n.text\n'
    for k, body in ((K1, body1), (K2, body2)):
        out += ".globl %s\n.p2align 8\n.type %s,@function\n" % (k, k) + body
    out += '.section .rodata,"a"\n'
    for k, nv, ns in ((K1, NV, 100), (K2, 72 if k2w else 116, 56)):
        out += ".p2align 6\n.amdhsa_kernel %s\n" % k
        out += "  .amdhsa_next_free_vgpr %d\n  .amdhsa_next_free_sgpr %d\n  .amdhsa_accum_offset %d\n" % (nv, ns, (nv + 3) // 4 * 4)
        out += "  .amdhsa_group_segment_fixed_size 0\n  .amdhsa_kernarg_size 112\n  .amdhsa_user_sgpr_count 2\n"
        out += "  .amdhsa_user_sgpr_kernarg_segment_ptr 1\n  .amdhsa_system_sgpr_workgroup_id_x 1\n"
        out += "  .amdhsa_float_denorm_mode_32 3\n"
        out += ".end_amdhsa_kernel\n"
    return out

if __name__ == "__main__":
    import argparse
    ap = argparse.ArgumentParser()
    ap.add_argument("-o", default="cdna_kernels/%s.s" % NAME)
    ap.add_argument("--D", type=int, default=2)
    ap.add_argument("--kvpol", default="nt")
    ap.add_argument("--wqpol", default="")
    ap.add_argument("--wopol", default="")
    ap.add_argument("--fpol", default="")
    ap.add_argument("--stpol", default="")
    ap.add_argument("--stamps", action="store_true")
    ap.add_argument("--noffn", action="store_true")
    ap.add_argument("--abl", default="")
    ap.add_argument("--early", action="store_true")
    ap.add_argument("--touch", action="store_true")
    ap.add_argument("--pretab", default="00000000")
    ap.add_argument("--preidx", default="r")
    ap.add_argument("--nsh", type=int, default=8)
    ap.add_argument("--warm", action="store_true")
    ap.add_argument("--dry", action="store_true")
    ap.add_argument("--pfk2", action="store_true")
    ap.add_argument("--k2w", action="store_true")
    ap.add_argument("--prio", action="store_true")
    ap.add_argument("--kvtouch", action="store_true")
    x = ap.parse_args()
    open(x.o, "w").write(gen(D=x.D, kvpol=x.kvpol, wqpol=x.wqpol, wopol=x.wopol, fpol=x.fpol, stpol=x.stpol,
                             stamps=x.stamps, ffn=not x.noffn, abl=tuple(x.abl.split(",")), early=x.early, touch=x.touch, pretab=tuple(int(ch) for ch in x.pretab), preidx=x.preidx, nsh=x.nsh, warm=x.warm, dry=x.dry, pfk2=x.pfk2, k2w=x.k2w, prio=x.prio, kvtouch=x.kvtouch))
    print("wrote", x.o)
```

```python
import sys, os, struct
sys.path.insert(0, os.path.dirname(os.path.abspath(__file__)))
from asmlib import Asm, VmQueue

NAME = "gated_mix__mha_block_cached__dense_activation_squared_relu__decode"
K1 = NAME + "_kernel"
K2 = "final_reduce_kernel"

def fbits(x): return "0x%08x" % struct.unpack("<I", struct.pack("<f", x))[0]
LOG2E = 1.4426950408889634
CSCALE = LOG2E * (128 ** -0.5)

NFF = 56
WS_Y, WS_YF, WS_ML, WS_G = 0, 0x80000, 0x100000, 0x101000
WS_STAMP = 0x20000000
L_QP, L_PRIV, L_EP, L_ML, L_CLAIM, L_HH, L_HP, L_XS, L_END = 0, 4096, 8192, 12288, 12416, 12544, 13568, 13568 + 8192, 13568 + 8192 + 4096

DESCRIPTION = """; ---------------------------------------------------------------------------------------------------
; ---------------------------------------------------------------------------------------------------
"""

def vr(b, n=4): return "v[%d:%d]" % (b, b + n - 1)
def sp(b): return "s[%d:%d]" % (b, b + 1)
def sq(b): return "s[%d:%d]" % (b, b + 3)

def gen(D=2, kvpol="nt", wqpol="", wopol="", fpol="", stpol="", stamps=False, ffn=True, abl=(), early=False, touch=False, pretab=(0,) * 8, preidx="r", nsh=8, warm=False, dry=False, pfk2=False, k2w=False, prio=False, kvtouch=False):
    W = 8
    NT = 4096 // 16 // W
    a = Asm()
    P = lambda p: (" " + p) if p else ""
    MF = "v_mfma_f32_16x16x32_bf16"
    vLane, vG, vI = 1, 2, 3
    vKoff, vVoff, vL, vM, vMC = 4, 5, 6, 7, 8
    vEPa, vPriv, vTmp = 9, 10, 11
    vMask = 12
    vQ = 16; vS = 32; vP = 36; vA = [40, 44]; vO = 48; vT = 52
    vWoff, vYoff, vPrd, vOne = 60, 61, 62, 63
    vChk = vT + 7
    vKV = 64
    vWA = vKV + 32 * D
    NV = max(vWA + 64, 64 + 128 + 32)
    assert NV <= 256
    Kb = lambda d: vKV + 32 * d
    Vb = lambda d: vKV + 32 * d + 16
    vWO = vKV
    vPP = vWO + 128
    vTch = Vb(D - 1)
    sX, sK, sV, sWq, sWo, sBx, sW1, sB1 = 4, 6, 8, 10, 12, 14, 16, 18
    sW2, sB2, sGw, sOut, sDbg, sWs = 20, 22, 24, 26, 28, 30
    sWave, sH, sB, sSp, sRot, sRow = 3, 32, 33, 34, 35, 36
    sOff, sCnt, sC, sGate = 37, 38, 39, 40
    sPriv, sCb, sSig = 41, 42, 43
    sWoT, sPre, sTask = 96, 97, 98
    rK, rV, rWq, rWo = 44, 48, 52, 56
    rW1, rW2 = 44, 48
    sT = 60
    sRet, sRare = 72, 74
    sY = 76
    sX0 = 78
    sStamp = 80
    sXS = 84
    NXS = 6
    vm = VmQueue(a)
    def xs(k):
        if stamps: a("s_memrealtime %s" % sp(sXS + 2 * k))
    def srd(r, base, off, nrec, nrec_sub=None):
        a("s_add_u32 s%d, s%d, s%d" % (r, base, off)); a("s_addc_u32 s%d, s%d, 0" % (r + 1, base + 1))
        if nrec_sub is None: a("s_mov_b32 s%d, 0x%x" % (r + 2, nrec))
        else: a("s_sub_u32 s%d, 0x%x, s%d" % (r + 2, nrec, nrec_sub))
        a("s_mov_b32 s%d, 0x20000" % (r + 3))
    def gemv(nld, Wreg, Preg, acc, waits=None):
        def ands(n):
            for r in range(4): a("v_and_b32 v%d, v%d, v%d" % (vA[n & 1] + r, Preg(n), vMask + r))
        ands(0)
        for n in range(nld):
            if waits: waits(n)
            if n + 1 < nld: ands(n + 1)
            a("%s %s, %s, %s, %s" % (MF, vr(acc), vr(vA[n & 1]), vr(Wreg(n)), "0" if n == 0 else vr(acc)))

    a("%s:" % K1)
    a("s_cmp_ge_u32 s2, 256")
    a("s_cbranch_scc1 L_done")
    a("s_load_dwordx16 s[4:19], s[0:1], 0")
    a("s_load_dwordx8 s[20:27], s[0:1], 64")
    a("s_load_dwordx4 s[28:31], s[0:1], 96")
    if stamps: a("s_memrealtime %s" % sp(sStamp))
    a("v_lshrrev_b32 v%d, 6, v0" % vTmp)
    a("v_and_b32 v%d, 63, v0" % vLane)
    a("v_readfirstlane_b32 s%d, v%d" % (sWave, vTmp))
    a("v_lshrrev_b32 v%d, 4, v%d" % (vG, vLane))
    a("v_and_b32 v%d, 15, v%d" % (vI, vLane))
    a("s_and_b32 s%d, s2, 7" % sT)
    a("s_lshr_b32 s%d, s2, 3" % (sT + 1))
    a("s_and_b32 s%d, s%d, 3" % (sT + 2, sT + 1))
    a("s_lshl_b32 s%d, s%d, 2" % (sH, sT))
    a("s_add_u32 s%d, s%d, s%d" % (sH, sH, sT + 2))
    a("s_lshr_b32 s%d, s%d, 2" % (sRot, sT + 1))
    a("s_lshr_b32 s%d, s%d, 3" % (sB, sT + 1))
    a("s_and_b32 s%d, s%d, 1" % (sSp, sRot))
    a("s_add_u32 s%d, s%d, s%d" % (sT + 3, sWave, sRot)); a("s_and_b32 s%d, s%d, 7" % (sT + 3, sT + 3))
    a("s_lshl_b32 s%d, s%d, 6" % (sT + 4, sT + 3))
    a("v_lshl_add_u32 v%d, v%d, 2, s%d" % (vA[0], vG, sT + 4))
    a("v_lshlrev_b32 v%d, 13, v%d" % (vA[1], vA[0]))
    a("v_lshl_add_u32 v%d, v%d, 4, v%d" % (vA[1], vI, vA[1]))
    a("v_lshlrev_b32 v%d, 1, v%d" % (vTmp, vA[0]))
    a("s_lshl_b32 s%d, s%d, 8" % (sT + 5, sH))
    a("s_lshl_b32 s%d, s%d, 10" % (sT + 6, sB))
    a("s_mov_b32 s%d, 0" % (sT + 8))
    a("s_waitcnt lgkmcnt(0)")
    srd(rWq, sWq, sT + 5, 4194304, sT + 5)
    if "nowq" in abl: a("s_mov_b32 s%d, 0" % (rWq + 2))
    a("s_mov_b32 s%d, s%d" % (sX0, sX)); a("s_mov_b32 s%d, s%d" % (sX0 + 1, sX + 1))
    a("s_add_u32 s%d, s%d, s%d" % (sX, sX, sT + 6)); a("s_addc_u32 s%d, s%d, 0" % (sX + 1, sX + 1))
    for u in range(4):
        vm.issue("gate", "global_load_dwordx2 v[%d:%d], v%d, %s offset:%d" % (vT + 2 * u, vT + 2 * u + 1, vTmp, sp(sX), 32 * u))
    if touch:
        a("s_cmp_lg_u32 s%d, 0" % sWave)
        a("s_cbranch_scc1 L_notouch")
        a("s_lshl_b32 s%d, s%d, 6" % (sT + 9, sRot))
        a("v_add_u32 v%d, s%d, v%d" % (vTch, sT + 9, vLane))
        a("v_lshlrev_b32 v%d, 13, v%d" % (vTch, vTch))
        a("buffer_load_dword v%d, v%d, %s, 0 offen%s" % (vTch + 1, vTch, sq(rWq), P(wqpol)))
        a("buffer_load_dword v%d, v%d, %s, 0 offen offset:128%s" % (vTch + 2, vTch, sq(rWq), P(wqpol)))
        a("L_notouch:")
    a("v_lshlrev_b32 v%d, 8, v%d" % (vKoff, vI))
    a("v_lshl_add_u32 v%d, v%d, 4, v%d" % (vKoff, vG, vKoff))
    a("v_lshlrev_b32 v%d, 10, v%d" % (vVoff, vG))
    a("v_lshl_add_u32 v%d, v%d, 4, v%d" % (vVoff, vI, vVoff))
    a("s_lshl_b32 s%d, s%d, 5" % (sRow, sB))
    a("s_add_u32 s%d, s%d, s%d" % (sRow, sRow, sH))
    a("s_lshl_b32 s%d, s%d, 1" % (sRow, sRow))
    a("s_add_u32 s%d, s%d, s%d" % (sRow, sRow, sSp))
    a("s_lshl_b32 s%d, s%d, 20" % (sT + 3, sRow))
    srd(rK, sK, sT + 3, 0x100000)
    srd(rV, sV, sT + 3, 0x100000)
    pol = P(kvpol)
    if kvtouch:
        a("s_cmp_lg_u32 s%d, 1" % sWave)
        a("s_cbranch_scc1 L_nokvt")
        a("v_mov_b32 v%d, 0" % (vTch + 3))
        a("s_mov_b64 exec, 1")
        a("buffer_load_dword v%d, v%d, %s, 0 offen%s" % (vTch + 4, vTch + 3, sq(rK), pol))
        a("buffer_load_dword v%d, v%d, %s, 0 offen%s" % (vTch + 5, vTch + 3, sq(rV), pol))
        a("s_mov_b64 exec, -1")
        a("L_nokvt:")
    def kload(d):
        for t in range(4):
            vm.issue("K%d" % d, "buffer_load_dwordx4 %s, v%d, %s, s%d offen offset:%d%s" % (vr(Kb(d) + 4 * t), vKoff, sq(rK), sOff, 64 * t, pol))
    def vload(d):
        for t in range(4):
            vm.issue("V%d" % d, "buffer_load_dwordx4 %s, v%d, %s, s%d offen offset:%d%s" % (vr(Vb(d) + 4 * t), vVoff, sq(rV), sOff, 256 * t, pol))
    def kv_prefetch(d0=0, d1=None):
        save = list(vm.q)
        a("s_lshl_b32 s%d, s%d, 12" % (sOff, sWave))
        if d0: a("s_add_u32 s%d, s%d, %d" % (sOff, sOff, 4096 * W * d0))
        for d in range(d0, D if d1 is None else d1):
            kload(d); vload(d)
            a("s_add_u32 s%d, s%d, %d" % (sOff, sOff, 4096 * W))
        vm.q = save
    pack = sum(p << (4 * i) for i, p in enumerate(pretab))
    npre = max(pretab)
    if preidx == "r": a("s_lshl_b32 s%d, s%d, 2" % (sPre, sRot))
    elif preidx == "h":
        a("s_and_b32 s%d, s%d, 7" % (sPre, sH)); a("s_lshl_b32 s%d, s%d, 2" % (sPre, sPre))
    elif preidx == "x":
        a("s_and_b32 s%d, s2, 7" % sPre); a("s_lshl_b32 s%d, s%d, 2" % (sPre, sPre))
    elif preidx == "hs":
        a("s_and_b32 s%d, s%d, 3" % (sPre, sH)); a("s_lshl_b32 s%d, s%d, 1" % (sPre, sPre)); a("s_add_u32 s%d, s%d, s%d" % (sPre, sPre, sSp))
        a("s_lshl_b32 s%d, s%d, 2" % (sPre, sPre))
    a("s_lshr_b32 s%d, 0x%x, s%d" % (sPre, pack, sPre))
    a("s_and_b32 s%d, s%d, 15" % (sPre, sPre))
    a("s_cmp_ge_u32 s%d, 4" % sWave)
    a("s_cselect_b32 s%d, 0, s%d" % (sPre, sPre))
    for d in range(npre):
        a("s_cmp_le_u32 s%d, %d" % (sPre, d))
        a("s_cbranch_scc1 L_pre%d" % d)
        kv_prefetch(d, d + 1)
        a("L_pre%d:" % d)
    for n in range(16):
        u, t = divmod(n, 4)
        vm.issue("wq%d" % u, "buffer_load_dwordx4 %s, v%d, %s, s%d offen%s" % (vr(vWA + 4 * n), vA[1], sq(rWq), sT + 8, P(wqpol)))
        if n < 15: a("s_add_u32 s%d, s%d, %d" % (sT + 8, sT + 8, 8192 if t < 3 else 13 * 8192))
    a("s_barrier")
    def old_prefetch():
        a("s_cmp_ge_u32 s%d, 4" % sWave)
        a("s_cbranch_scc1 L_pf1")
        for d in range(npre):
            a("s_cmp_gt_u32 s%d, %d" % (sPre, d))
            a("s_cbranch_scc1 L_pfs%d" % d)
            kv_prefetch(d, d + 1)
            a("L_pfs%d:" % d)
        if npre < D: kv_prefetch(npre)
        a("L_pf1:")
    if early: old_prefetch()
    xs(0)
    nw = [0]
    def dual_wait(tag):
        n = vm.count(tag)
        if not early:
            vm.wait(tag); return
        a("s_waitcnt vmcnt(%d)" % (n + 8 * D))
        for k in range(1, npre + 1):
            a("s_cmp_lt_u32 s%d, %d" % (sPre, k))
            a("s_cbranch_scc1 L_dx%d_%d" % (nw[0], k))
            a("s_waitcnt vmcnt(%d)" % (n + 8 * (D - k)))
            a("L_dx%d_%d:" % (nw[0], k))
        a("s_cmp_lt_u32 s%d, 4" % sWave)
        a("s_cbranch_scc1 L_dw%d" % nw[0])
        a("s_waitcnt vmcnt(%d)" % n)
        a("L_dw%d:" % nw[0]); nw[0] += 1
        vm.q = vm.q[len(vm.q) - n:] if n else []
    a("s_lshl_b32 s%d, s%d, 17" % (sT + 6, sH))
    srd(rWo, sWo, sT + 6, 131072)
    if "nowo" in abl: a("s_mov_b32 s%d, 0" % (rWo + 2))
    a("s_mov_b32 s%d, %s" % (sC, fbits(CSCALE)))
    a("s_mov_b32 s%d, 0" % sGate)
    a("s_getpc_b64 %s" % sp(sRare))
    a("L_pc:")
    a("s_add_u32 s%d, s%d, L_rare-L_pc" % (sRare, sRare))
    a("s_addc_u32 s%d, s%d, 0" % (sRare + 1, sRare + 1))
    a("v_and_b32 v%d, 7, v%d" % (vTmp, vI))
    a("v_lshrrev_b32 v%d, 1, v%d" % (vA[1] + 1, vTmp))
    a("v_and_b32 v%d, 1, v%d" % (vTmp, vTmp))
    a("v_lshlrev_b32 v%d, 4, v%d" % (vTmp, vTmp))
    a("v_mov_b32 v%d, 0xffff" % (vA[1] + 2))
    a("v_lshlrev_b32 v%d, v%d, v%d" % (vA[1] + 2, vTmp, vA[1] + 2))
    for r in range(4):
        a("v_cmp_eq_u32 vcc, %d, v%d" % (r, vA[1] + 1))
        a("v_cndmask_b32 v%d, 0, v%d, vcc" % (vMask + r, vA[1] + 2))
    a("s_add_u32 s%d, s%d, s%d" % (sCb, sWave, sRot)); a("s_and_b32 s%d, s%d, 3" % (sCb, sCb))
    a("s_lshl_b32 s%d, s%d, 8" % (sT, sCb))
    a("v_lshlrev_b32 v%d, 12, v%d" % (vWoff, vG))
    a("v_lshl_add_u32 v%d, v%d, 4, v%d" % (vWoff, vI, vWoff))
    a("v_add_u32 v%d, s%d, v%d" % (vWoff, sT, vWoff))
    a("v_lshlrev_b32 v%d, 5, v%d" % (vEPa, vI))
    a("v_lshl_add_u32 v%d, v%d, 4, v%d" % (vEPa, vG, vEPa))
    a("s_lshl_b32 s%d, s%d, 9" % (sT, sCb))
    a("v_add_u32 v%d, s%d, v%d" % (vYoff, sT, vEPa))
    a("s_lshl_b32 s%d, s%d, 9" % (sT + 11, sWave))
    a("v_add_u32 v%d, s%d, v%d" % (vEPa, sT + 11, vEPa))
    a("s_add_u32 s%d, s%d, %d" % (sPriv, sT + 11, L_PRIV))
    a("v_lshl_add_u32 v%d, v%d, 4, s%d" % (vPrd, vG, sPriv))
    a("s_lshl_b32 s%d, s%d, 11" % (sT, sRow))
    a("s_add_u32 s%d, s%d, s%d" % (sY, sWs, sT)); a("s_addc_u32 s%d, s%d, 0" % (sY + 1, sWs + 1))
    a("v_mov_b32 v%d, 1" % vOne)
    a("v_mov_b32 v%d, %s" % (vM, fbits(-3.0e38)))
    a("v_mul_f32 v%d, s%d, v%d" % (vMC, sC, vM))
    a("v_mov_b32 v%d, 0" % vL)
    for r in range(4): a("v_mov_b32 v%d, 0" % (vO + r))
    dual_wait("gate")
    a("s_mov_b32 s%d, 0x01000100" % sT); a("s_mov_b32 s%d, 0x03020302" % (sT + 1))
    for u in range(4):
        for t in range(4):
            a("v_perm_b32 v%d, v%d, v%d, s%d" % (vQ + 4 * u + t, vT + 2 * u + t // 2, vT + 2 * u + t // 2, sT + (t & 1)))
    gemv(16, lambda n: vWA + 4 * n, lambda n: vQ + n, vS, waits=lambda n: dual_wait("wq%d" % (n // 4)) if n % 4 == 0 else None)
    a("s_mov_b32 exec_hi, 0")
    a("ds_write_b128 v%d, %s offset:%d" % (vEPa, vr(vS), L_QP))
    a("s_mov_b32 exec_hi, -1")
    a("v_mov_b32 v%d, %d" % (vT + 4, L_CLAIM))
    a("v_mov_b32 v%d, 0" % (vT + 6)); a("v_mov_b32 v%d, 0" % (vT + 7))
    a("s_mov_b64 exec, 1")
    a("ds_write_b64 v%d, v[%d:%d]" % (vT + 4, vT + 6, vT + 7))
    a("s_mov_b64 exec, -1")
    if not early: old_prefetch()
    a("s_waitcnt lgkmcnt(0)")
    a("s_barrier")
    a("s_cmp_lt_u32 s%d, 4" % sWave)
    a("s_cbranch_scc1 L_pf2")
    kv_prefetch()
    a("L_pf2:")
    vm.q = []
    for d in range(D): vm.note("K%d" % d, 4); vm.note("V%d" % d, 4)
    a("v_lshlrev_b32 v%d, 3, v%d" % (vTmp, vLane))
    tq = vQ
    for w in range(8):
        a("ds_read_b64 v[%d:%d], v%d offset:%d" % (tq + 2 * w, tq + 2 * w + 1, vTmp, L_QP + 512 * w))
    a("v_lshlrev_b32 v%d, 2, v%d" % (vPriv, vLane))
    a("v_add_u32 v%d, s%d, v%d" % (vPriv, sPriv, vPriv))
    a("s_waitcnt lgkmcnt(0)")
    for step in (4, 2, 1):
        for w in range(step):
            for k in range(2):
                a("v_add_f32 v%d, v%d, v%d" % (tq + 2 * w + k, tq + 2 * w + k, tq + 2 * (w + step) + k))
    a("v_cvt_pk_bf16_f32 v%d, v%d, v%d" % (vTmp, tq, tq + 1))
    a("ds_write_b32 v%d, v%d" % (vPriv, vTmp))
    a("s_waitcnt lgkmcnt(0)")
    for t in range(4):
        a("ds_read_b128 %s, v%d offset:%d" % (vr(vQ + 4 * t), vPrd, 64 * t))
    a("s_lshl_b32 s%d, s%d, 12" % (sOff, sWave))
    a("s_add_u32 s%d, s%d, %d" % (sOff, sOff, 4096 * W * D))
    a("s_waitcnt lgkmcnt(0)")
    xs(1)
    if prio:
        a("s_cmp_lt_u32 s%d, 4" % sWave)
        a("s_cbranch_scc1 L_noprio")
        a("s_setprio 1")
        a("L_noprio:")

    ntr = [0]; tramps = []
    tail_on = [False]; tail_extra = [0]; ntw = [0]; pending = []
    def kvwait(tag):
        if not tail_extra[0]:
            vm.wait(tag); return
        n = vm.count(tag)
        a("s_waitcnt vmcnt(%d)" % (n + tail_extra[0]))
        a("s_cmp_lg_u32 s%d, 0" % sTask)
        a("s_cbranch_scc1 L_tw%d" % ntw[0])
        a("s_waitcnt vmcnt(%d)" % n)
        a("L_tw%d:" % ntw[0]); ntw[0] += 1
        vm.q = vm.q[len(vm.q) - n:] if n else []
    def slot(k):
        if not tail_on[0] or not pending: return
        a("s_cmp_eq_u32 s%d, 0" % sTask)
        a("s_cbranch_scc1 L_sl%d" % ntw[0])
        for _ in range(min(k, len(pending))):
            for l in pending.pop(0): a(l)
            tail_extra[0] += 1
        a("L_sl%d:" % ntw[0]); ntw[0] += 1
    def tile(d, prefetch):
        kvwait("K%d" % d)
        for t in range(4):
            a("%s %s, %s, %s, %s" % (MF, vr(vS), vr(Kb(d) + 4 * t), vr(vQ + 4 * t), "0" if t == 0 else vr(vS)))
        if prefetch: kload(d)
        elif tail_on[0] and pending:
            slot(4)
            a("s_nop 7")
        a("v_max3_f32 v%d, v%d, v%d, v%d" % (vT, vS, vS + 1, vS + 2))
        a("v_max_f32 v%d, v%d, v%d" % (vT, vT, vS + 3))
        a("v_cmp_gt_f32 vcc, v%d, v%d" % (vT, vM))
        k = ntr[0]; ntr[0] += 1
        a("s_cbranch_vccnz L_tr%d" % k)
        a("L_back%d:" % k)
        tramps.append(k)
        for t in range(4): a("v_fma_f32 v%d, v%d, s%d, -v%d" % (vS + t, vS + t, sC, vMC))
        for t in range(4): a("v_exp_f32 v%d, v%d" % (vS + t, vS + t))
        a("v_add_f32 v%d, v%d, v%d" % (vT, vS, vS + 1))
        a("v_add_f32 v%d, v%d, v%d" % (vT + 1, vS + 2, vS + 3))
        for t in range(4): a("v_cvt_pk_bf16_f32 v%d, v%d, v%d" % (vP + t, vS + t, vS + t))
        a("v_add_f32 v%d, v%d, v%d" % (vT, vT, vT + 1))
        a("v_add_f32 v%d, v%d, v%d" % (vL, vL, vT))
        def ands(t):
            for r in range(4): a("v_and_b32 v%d, v%d, v%d" % (vA[t & 1] + r, vP + t, vMask + r))
        ands(0); ands(1)
        kvwait("V%d" % d)
        for t in range(4):
            a("%s %s, %s, %s, %s" % (MF, vr(vO), vr(vA[t & 1]), vr(Vb(d) + 4 * t), vr(vO)))
            if t + 2 < 4: ands(t + 2)
        if prefetch:
            vload(d)
            a("s_add_u32 s%d, s%d, %d" % (sOff, sOff, 4096 * W))
        else: slot(4)
    nl = (NT - D) // D
    rem = (NT - D) - nl * D
    m = 1
    while 2 * m <= nl - 3: m *= 2
    a("s_mul_i32 s%d, s%d, 3" % (sWoT, sH)); a("s_and_b32 s%d, s%d, %d" % (sWoT, sWoT, m - 1)); a("s_add_u32 s%d, s%d, %d" % (sWoT, sWoT, 4 if D == 2 else 3))
    a("s_cmp_lt_u32 s%d, 4" % sWave)
    a("s_cselect_b32 s%d, -1, s%d" % (sWoT, sWoT))
    a("s_cmp_eq_u32 s%d, 4" % sWave)
    a("s_cselect_b32 s%d, s%d, -1" % (sWoT, sWoT))
    a("s_cselect_b32 s%d, 2, -1" % sTask)
    a("v_mov_b32 v%d, -1" % vChk)
    a("s_mov_b32 s%d, %d" % (sCnt, nl))
    a("L_loop:")
    for it in range(D): tile(it, True)
    a("s_cmp_lg_u32 s%d, s%d" % (sCnt, sWoT))
    a("s_cbranch_scc1 L_norel")
    a("v_mov_b32 v%d, %d" % (vT + 2, L_CLAIM))
    a("s_mov_b64 exec, 1")
    a("ds_write_b32 v%d, v%d offset:4" % (vT + 2, vOne))
    a("s_mov_b64 exec, -1")
    a("L_norel:")
    if ffn:
        a("s_cmp_lg_u32 s%d, s%d" % (sCnt, sTask))
        a("s_cbranch_scc1 L_noclaim")
        a("s_lshr_b32 s%d, s2, 3" % sT)
        a("s_and_b32 s%d, s%d, %d" % (sT, sT, nsh - 1))
        a("s_lshl_b32 s%d, s%d, %d" % (sT + 1, sT, {1: 0, 2: 7, 4: 6, 8: 5}[nsh]))
        a("v_mov_b32 v%d, s%d" % (vT + 2, sT + 1))
        a("s_mov_b64 exec, 1")
        a("global_atomic_add v%d, v%d, v%d, %s sc0" % (vChk, vT + 2, vOne, sp(sDbg)))
        a("s_mov_b64 exec, -1")
        a("L_noclaim:")
    a("s_sub_u32 s%d, s%d, 1" % (sCnt, sCnt))
    a("s_cmp_lg_u32 s%d, 0" % sCnt)
    a("s_cbranch_scc1 L_loop")
    for it in range(rem): tile(it % D, True)
    a("s_mov_b32 s%d, 0" % sTask)
    fW1 = vWA; fW2 = vWA + 32; vB1 = vT + 5
    vF1, vF2, vF3 = vT + 3, vT + 4, vT + 6
    sF = sOff
    ffn_loads = []
    for n in range(8):
        u, t = divmod(n, 4)
        pre = ["s_mov_b32 s%d, %d" % (sF, (16 * u + t) * 3584)]
        ffn_loads.append(pre + ["buffer_load_dwordx4 %s, v%d, %s, s%d offen%s" % (vr(fW1 + 4 * n), vF1, sq(rW1), sF, P(fpol))])
    for n in range(8):
        u, t = divmod(n, 4)
        pre = ["s_mov_b32 s%d, %d" % (sF, 16384 * u)] if t == 0 else []
        ffn_loads.append(pre + ["buffer_load_dwordx4 %s, v%d, %s, s%d offen offset:%d%s" % (vr(fW2 + 4 * n), vF2, sq(rW2), sF, 1024 * t, P(fpol))])
    ffn_loads.append(["global_load_ushort v%d, v%d, %s" % (vB1, vF3, sp(sB1))])
    if ffn:
        a("s_cmp_lt_u32 s%d, 4" % sWave)
        a("s_cbranch_scc1 L_notask")
        a("v_mov_b32 v%d, %d" % (vT + 1, L_CLAIM))
        a("s_cmp_lg_u32 s%d, 4" % sWave)
        a("s_cbranch_scc1 L_spin")
        a("s_waitcnt vmcnt(%d)" % (8 * D))
        a("v_readfirstlane_b32 s%d, v%d" % (sSig, vChk))
        a("s_cmp_lg_u32 s%d, -1" % sSig)
        a("s_cbranch_scc1 L_have")
        a("s_waitcnt vmcnt(0)")
        a("v_readfirstlane_b32 s%d, v%d" % (sSig, vChk))
        a("L_have:")
        a("s_lshr_b32 s%d, s2, 3" % sT)
        a("s_and_b32 s%d, s%d, %d" % (sT, sT, nsh - 1))
        a("s_mul_i32 s%d, s%d, %d" % (sT, sT, NFF // nsh))
        a("s_add_u32 s%d, s%d, s%d" % (sT, sT, sSig))
        a("s_cmp_lt_u32 s%d, %d" % (sSig, NFF // nsh))
        a("s_cselect_b32 s%d, s%d, %d" % (sSig, sT, NFF))
        a("s_add_u32 s%d, s%d, 1" % (sT, sSig))
        a("v_mov_b32 v%d, s%d" % (vT + 2, sT))
        a("s_mov_b64 exec, 1")
        a("ds_write_b32 v%d, v%d" % (vT + 1, vT + 2))
        a("s_mov_b64 exec, -1")
        a("s_branch L_known")
        a("L_spin:")
        a("ds_read_b32 v%d, v%d" % (vT + 2, vT + 1))
        a("s_waitcnt lgkmcnt(0)")
        a("v_readfirstlane_b32 s%d, v%d" % (sSig, vT + 2))
        a("s_cmp_eq_u32 s%d, 0" % sSig)
        a("s_cbranch_scc1 L_spin")
        a("s_sub_u32 s%d, s%d, 1" % (sSig, sSig))
        a("L_known:")
        a("s_cmp_ge_u32 s%d, %d" % (sSig, 0 if "notask" in abl else NFF))
        a("s_cbranch_scc1 L_notask")
        a("s_mov_b32 s%d, 1" % sTask)
        sWy = sT + 9
        a("s_sub_u32 s%d, s%d, 4" % (sWy, sWave))
        a("s_lshl_b32 s%d, s%d, 6" % (sT, sSig))
        srd(rW1, sW1, sT, 1835008, sT)
        a("s_lshl_b32 s%d, s%d, 15" % (sT + 1, sSig))
        srd(rW2, sW2, sT + 1, 32768)
        a("s_add_u32 s%d, s%d, s%d" % (sB1, sB1, sT)); a("s_addc_u32 s%d, s%d, 0" % (sB1 + 1, sB1 + 1))
        a("s_lshl_b32 s%d, s%d, 7" % (sT + 2, sWy))
        a("v_lshrrev_b32 v%d, 2, v%d" % (vT + 1, vI))
        a("v_lshlrev_b32 v%d, 5, v%d" % (vT + 1, vT + 1))
        a("v_lshl_add_u32 v%d, v%d, 2, v%d" % (vT + 1, vG, vT + 1))
        a("v_add_u32 v%d, s%d, v%d" % (vT + 1, sT + 2, vT + 1))
        a("s_movk_i32 s%d, 3584" % (sT + 3))
        a("v_mul_lo_u32 v%d, v%d, s%d" % (vT + 1, vT + 1, sT + 3))
        a("v_and_b32 v%d, 3, v%d" % (vT + 2, vI))
        a("v_lshl_add_u32 v%d, v%d, 4, v%d" % (vT + 1, vT + 2, vT + 1))
        a("v_mov_b32 v%d, v%d" % (vF1, vT + 1))
        a("v_lshlrev_b32 v%d, 12, v%d" % (vF2, vG))
        a("v_lshl_add_u32 v%d, v%d, 4, v%d" % (vF2, vI, vF2))
        a("s_lshl_b32 s%d, s%d, 8" % (sT + 2, sWy))
        a("v_add_u32 v%d, s%d, v%d" % (vF2, sT + 2, vF2))
        a("v_and_b32 v%d, 31, v%d" % (vF3, vLane))
        a("v_lshlrev_b32 v%d, 1, v%d" % (vF3, vF3))
        a("L_notask:")
        if stamps:
            a("s_cmp_lt_u32 s%d, 4" % sWave)
            a("s_cbranch_scc1 L_nosig")
            a("s_mov_b32 s%d, s%d" % (sXS + 4, sSig)); a("s_mov_b32 s%d, 0" % (sXS + 5))
            a("L_nosig:")
    tail_on[0] = ffn
    pending[:] = list(ffn_loads) if ffn else []
    for it in range(D): tile((rem + it) % D, False)
    if ffn and pending: slot(len(pending))
    tail_on[0] = False
    xs(3)

    for k in range(4): a("v_readlane_b32 s%d, v%d, %d" % (sT + k, vL, 16 * k))
    a("s_lshl_b32 s%d, s%d, 3" % (sT + 4, sWave))
    a("v_mov_b32 v%d, s%d" % (vT + 1, sT))
    a("v_mov_b32 v%d, s%d" % (vT + 2, sT + 4))
    for k in range(1, 4): a("v_add_f32 v%d, s%d, v%d" % (vT + 1, sT + k, vT + 1))
    a("v_mov_b32 v%d, v%d" % (vT, vM))
    a("s_mov_b32 exec_hi, 0")
    a("ds_write_b128 v%d, %s offset:%d" % (vEPa, vr(vO), L_EP))
    a("s_mov_b32 exec_lo, 1")
    a("ds_write_b64 v%d, v[%d:%d] offset:%d" % (vT + 2, vT, vT + 1, L_ML))
    a("s_mov_b64 exec, -1")
    a("s_cmp_lt_u32 s%d, 4" % sWave)
    a("s_cbranch_scc1 L_old")
    a("s_waitcnt lgkmcnt(0)")
    a("s_barrier")
    if prio: a("s_setprio 0")
    if not ffn:
        a("s_branch L_fin")
    else:
        a("s_cmp_eq_u32 s%d, 0" % sTask)
        a("s_cbranch_scc1 L_fin")
        fX = vKV; fPl = vQ; fPh = vQ + 8
        sWy = sT + 9
        a("s_sub_u32 s%d, s%d, 4" % (sWy, sWave))
        a("s_lshl_b32 s%d, s%d, 7" % (sT + 2, sWy))
        a("v_lshrrev_b32 v%d, 3, v%d" % (vT, vI))
        a("v_lshlrev_b32 v%d, 5, v%d" % (vT, vT))
        a("v_lshl_add_u32 v%d, v%d, 2, v%d" % (vT, vG, vT))
        a("v_add_u32 v%d, s%d, v%d" % (vT, sT + 2, vT))
        a("v_lshlrev_b32 v%d, 1, v%d" % (vT, vT))
        for b in range(4):
            for hh_ in range(2):
                for u in range(2):
                    r0 = fX + 8 * b + 4 * hh_ + 2 * u
                    a("ds_read_b64 v[%d:%d], v%d offset:%d" % (r0, r0 + 1, vT, L_XS + 1024 * b + 128 * hh_ + 32 * u))
        a("v_lshrrev_b32 v%d, 2, v%d" % (vT + 4, vI))
        a("v_lshlrev_b32 v%d, 7, v%d" % (vT + 4, vT + 4))
        a("v_and_b32 v%d, 3, v%d" % (vT + 6, vI))
        a("v_lshl_add_u32 v%d, v%d, 5, v%d" % (vT + 4, vT + 6, vT + 4))
        a("v_and_b32 v%d, 1, v%d" % (vT + 6, vG))
        a("v_lshl_add_u32 v%d, v%d, 4, v%d" % (vT + 4, vT + 6, vT + 4))
        a("s_lshl_b32 s%d, s%d, 11" % (sT + 2, sWy))
        a("v_add_u32 v%d, s%d, v%d" % (vT + 4, sT + 2, vT + 4))
        a("s_mov_b32 s%d, 0x01000100" % (sT + 6)); a("s_mov_b32 s%d, 0x03020302" % (sT + 7))
        a("s_waitcnt vmcnt(9) lgkmcnt(0)")
        for b in range(4):
            for hh_ in range(2):
                for u in range(2):
                    for t in range(4):
                        src = fX + 8 * b + 4 * hh_ + 2 * u + t // 2
                        a("v_perm_b32 v%d, v%d, v%d, s%d" % (vQ + 8 * hh_ + 4 * u + t, src, src, sT + 6 + (t & 1)))
            gemv(8, lambda n: fW1 + 4 * n, lambda n: fPl + n, vS)
            gemv(8, lambda n: fW1 + 4 * n, lambda n: fPh + n, vP)
            a("s_mov_b32 exec_lo, 0x000f000f"); a("s_mov_b32 exec_hi, 0x00f000f0")
            a("ds_write_b128 v%d, %s offset:%d" % (vT + 4, vr(vS), L_HP + 512 * b))
            a("s_mov_b32 exec_lo, 0x0f000f00"); a("s_mov_b32 exec_hi, 0xf000f000")
            a("ds_write_b128 v%d, %s offset:%d" % (vT + 4, vr(vP), L_HP + 512 * b))
            a("s_mov_b64 exec, -1")
        a("s_waitcnt lgkmcnt(0)")
        a("s_barrier")
        a("v_and_b32 v%d, 31, v%d" % (vT + 4, vLane))
        a("v_lshlrev_b32 v%d, 2, v%d" % (vT + 4, vT + 4))
        a("v_lshrrev_b32 v%d, 5, v%d" % (vT + 6, vLane))
        a("v_lshl_add_u32 v%d, v%d, 8, v%d" % (vT + 6, vT + 6, vT + 4))
        a("s_lshl_b32 s%d, s%d, 9" % (sT + 2, sWy))
        a("v_add_u32 v%d, s%d, v%d" % (vT + 6, sT + 2, vT + 6))
        a("v_add_u32 v%d, %d, v%d" % (vT + 6, L_HP, vT + 6))
        for w in range(4):
            a("ds_read2_b32 v[%d:%d], v%d offset0:%d offset1:%d" % (vQ + 2 * w, vQ + 2 * w + 1, vT + 6, 0, 32) if w == 0 else
              "v_add_u32 v%d, 2048, v%d\nds_read2_b32 v[%d:%d], v%d offset0:0 offset1:32" % (vT + 6, vT + 6, vQ + 2 * w, vQ + 2 * w + 1, vT + 6))
        a("s_waitcnt vmcnt(0) lgkmcnt(0)")
        for w in range(4): a("v_add_f32 v%d, v%d, v%d" % (vQ + 2 * w, vQ + 2 * w, vQ + 2 * w + 1))
        a("v_add_f32 v%d, v%d, v%d" % (vQ, vQ, vQ + 2)); a("v_add_f32 v%d, v%d, v%d" % (vQ + 4, vQ + 4, vQ + 6))
        r = vQ
        a("v_add_f32 v%d, v%d, v%d" % (r, vQ, vQ + 4))
        a("v_mov_b32 v%d, v%d" % (r + 1, r))
        a("v_permlane32_swap_b32 v%d, v%d" % (r, r + 1))
        a("v_add_f32 v%d, v%d, v%d" % (r, r, r + 1))
        a("v_cvt_pk_bf16_f32 v%d, v%d, v%d" % (r, r, r))
        a("v_and_b32 v%d, 0xffff0000, v%d" % (r, r))
        a("v_lshlrev_b32 v%d, 16, v%d" % (vB1, vB1))
        a("v_add_f32 v%d, v%d, v%d" % (r, r, vB1))
        a("v_cvt_pk_bf16_f32 v%d, v%d, v%d" % (r, r, r))
        a("v_and_b32 v%d, 0xffff0000, v%d" % (r, r))
        a("v_max_f32 v%d, 0, v%d" % (r, r))
        a("v_mul_f32 v%d, v%d, v%d" % (r, r, r))
        a("v_cvt_pk_bf16_f32 v%d, v%d, v%d" % (r, r, r))
        a("s_lshl_b32 s%d, s%d, 7" % (sT + 2, sWy))
        a("v_add_u32 v%d, s%d, v%d" % (vT + 4, sT + 2, vT + 4))
        a("s_mov_b32 exec_hi, 0")
        a("ds_write_b32 v%d, v%d offset:%d" % (vT + 4, r, L_HH))
        a("s_mov_b32 exec_hi, -1")
        a("s_waitcnt lgkmcnt(0)")
        a("s_barrier")
        a("v_lshlrev_b32 v%d, 4, v%d" % (vT + 4, vG))
        for b in range(4):
            for u in range(2): a("ds_read_b128 %s, v%d offset:%d" % (vr(fX + 8 * b + 4 * u), vT + 4, L_HH + 128 * b + 64 * u))
        a("v_lshlrev_b32 v%d, 5, v%d" % (vT + 6, vI))
        a("v_lshl_add_u32 v%d, v%d, 4, v%d" % (vT + 6, vG, vT + 6))
        a("s_lshl_b32 s%d, s%d, 9" % (sT + 2, sWy))
        a("v_add_u32 v%d, s%d, v%d" % (vT + 6, sT + 2, vT + 6))
        a("s_lshl_b32 s%d, s%d, 11" % (sT + 2, sSig)); a("s_add_u32 s%d, s%d, 0x%x" % (sT + 2, sT + 2, WS_YF))
        a("s_add_u32 s%d, s%d, s%d" % (sY, sWs, sT + 2)); a("s_addc_u32 s%d, s%d, 0" % (sY + 1, sWs + 1))
        a("s_waitcnt lgkmcnt(0)")
        for b in range(4):
            acc = vS if b & 1 == 0 else vP
            gemv(8, lambda n: fW2 + 4 * n, lambda n: fX + 8 * b + n, acc)
            a("s_mov_b32 exec_hi, 0")
            a("global_store_dwordx4 v%d, %s, %s%s" % (vT + 6, vr(acc), sp(sY), P(stpol)))
            a("s_mov_b32 exec_hi, -1")
            if b < 3:
                a("s_add_u32 s%d, s%d, %d" % (sY, sY, NFF * 2048)); a("s_addc_u32 s%d, s%d, 0" % (sY + 1, sY + 1))
        a("s_branch L_fin")

    a("L_old:")
    a("s_and_b32 s%d, s%d, 63" % (sT, sRow))
    a("s_or_b32 s%d, s%d, s%d" % (sT, sT, sWave))
    a("s_cmp_lg_u32 s%d, 0" % sT)
    a("s_cbranch_scc1 L_nogate")
    a("v_lshlrev_b32 v%d, 4, v%d" % (vT, vLane))
    a("global_load_dwordx4 %s, v%d, %s" % (vr(vS), vT, sp(sX)))
    a("global_load_dwordx4 %s, v%d, %s" % (vr(vP), vT, sp(sGw)))
    a("s_waitcnt vmcnt(0)")
    a("v_mov_b32 v%d, 0" % vTmp)
    for r in range(4): a("v_dot2c_f32_bf16 v%d, v%d, v%d" % (vTmp, vS + r, vP + r))
    for m_ in ("quad_perm:[1,0,3,2]", "quad_perm:[2,3,0,1]", "row_half_mirror", "row_mirror"):
        a("v_add_f32_dpp v%d, v%d, v%d %s row_mask:0xf bank_mask:0xf" % (vTmp, vTmp, vTmp, m_))
    for k in range(4): a("v_readlane_b32 s%d, v%d, %d" % (sT + k, vTmp, 16 * k))
    a("v_mov_b32 v%d, s%d" % (vTmp, sT))
    for k in range(1, 4): a("v_add_f32 v%d, s%d, v%d" % (vTmp, sT + k, vTmp))
    a("v_mul_f32 v%d, %s, v%d" % (vTmp, fbits(-LOG2E), vTmp))
    a("v_exp_f32 v%d, v%d" % (vTmp, vTmp))
    a("v_add_f32 v%d, 1.0, v%d" % (vTmp, vTmp))
    a("v_rcp_f32 v%d, v%d" % (vTmp, vTmp))
    a("v_readfirstlane_b32 s%d, v%d" % (sGate, vTmp))
    a("L_nogate:")
    if warm:
        a("s_cmp_lg_u32 s%d, 0" % sWave)
        a("s_cbranch_scc1 L_nowarm")
        a("v_mov_b32 v%d, 0" % vT)
        a("global_load_dword v%d, v%d, %s" % (vKV + 0, vT, sp(sDbg)))
        a("global_load_dword v%d, v%d, %s" % (vKV + 1, vT, sp(sY)))
        a("v_mov_b32 v%d, 0x%x" % (vT + 1, WS_ML))
        a("global_load_dword v%d, v%d, %s" % (vKV + 2, vT + 1, sp(sWs)))
        a("v_mov_b32 v%d, 0x%x" % (vT + 2, WS_YF))
        a("global_load_dword v%d, v%d, %s" % (vKV + 3, vT + 2, sp(sWs)))
        a("global_load_dword v%d, v%d, %s" % (vKV + 4, vT, sp(sW1)))
        a("global_load_dword v%d, v%d, %s" % (vKV + 5, vT, sp(sW2)))
        a("global_load_dword v%d, v%d, %s" % (vKV + 6, vT, sp(sB1)))
        a("global_load_dword v%d, v%d, %s" % (vKV + 7, vT, sp(sWo)))
        a("s_waitcnt vmcnt(0)")
        a("L_nowarm:")
    if ffn:
        a("s_lshl_b32 s%d, s%d, 10" % (sT, sWave))
        a("v_lshl_add_u32 v%d, v%d, 4, s%d" % (vT, vLane, sT))
        a("global_load_dwordx4 %s, v%d, %s" % (vr(vS), vT, sp(sX0)))
        a("s_waitcnt vmcnt(0)")
        a("ds_write_b128 v%d, %s offset:%d" % (vT, vr(vS), L_XS))
        a("s_waitcnt lgkmcnt(0)")
    a("v_mov_b32 v%d, %d" % (vT + 1, L_CLAIM))
    a("L_worel:")
    a("ds_read_b32 v%d, v%d offset:4" % (vT + 2, vT + 1))
    a("s_waitcnt lgkmcnt(0)")
    a("v_readfirstlane_b32 s%d, v%d" % (sT, vT + 2))
    a("s_cmp_eq_u32 s%d, 0" % sT)
    a("s_cbranch_scc1 L_worel")
    a("s_mov_b32 s%d, 0" % (sT + 8))
    for n in range(32):
        u, t = divmod(n, 4)
        a("buffer_load_dwordx4 %s, v%d, %s, s%d offen offset:%d%s" % (vr(vWO + 4 * n), vWoff, sq(rWo), sT + 8, 1024 * t, P(wopol)))
        if t == 3 and n < 31: a("s_add_u32 s%d, s%d, 16384" % (sT + 8, sT + 8))
    if pfk2:
        a("s_getpc_b64 %s" % sp(sT + 2))
        a("L_pc2:")
        a("s_add_u32 s%d, s%d, %s-L_pc2" % (sT + 2, sT + 2, K2))
        a("s_addc_u32 s%d, s%d, 0" % (sT + 3, sT + 3))
        a("v_lshlrev_b32 v%d, 6, v%d" % (vT + 2, vLane))
        a("s_mov_b32 s%d, L2_done-%s" % (sT + 4, K2))
        a("v_min_u32 v%d, s%d, v%d" % (vT + 2, sT + 4, vT + 2))
        a("global_load_dword v%d, v%d, %s" % (vT + 3, vT + 2, sp(sT + 2)))
    if dry:
        a("s_mov_b32 s%d, 1" % sTask)
        a("s_branch L_epi")
        a("L_epi_wait:")
        a("s_mov_b32 s%d, 0" % sTask)
    a("s_waitcnt vmcnt(0) lgkmcnt(0)")
    if prio: a("s_setprio 2")
    a("s_barrier")
    xs(2)
    a("L_epi:")
    a("v_mov_b32 v%d, 0" % vT)
    a("v_lshlrev_b32 v%d, 2, v%d" % (vT + 1, vLane))
    tm = vQ; to = vPP
    for k in range(4): a("ds_read_b128 %s, v%d offset:%d" % (vr(tm + 4 * k), vT, L_ML + 16 * k))
    for w in range(8):
        a("ds_read2st64_b32 v[%d:%d], v%d offset0:%d offset1:%d" % (to + 2 * w, to + 2 * w + 1, vT + 1, L_EP // 256 + 2 * w, L_EP // 256 + 2 * w + 1))
    a("s_waitcnt lgkmcnt(8)")
    a("v_max3_f32 v%d, v%d, v%d, v%d" % (vM, tm, tm + 2, tm + 4))
    a("v_max3_f32 v%d, v%d, v%d, v%d" % (vM, vM, tm + 6, tm + 8))
    a("v_max3_f32 v%d, v%d, v%d, v%d" % (vM, vM, tm + 10, tm + 12))
    a("v_max_f32 v%d, v%d, v%d" % (vM, vM, tm + 14))
    a("v_mul_f32 v%d, s%d, v%d" % (vMC, sC, vM))
    for w in range(8): a("v_fma_f32 v%d, v%d, s%d, -v%d" % (tm + 2 * w, tm + 2 * w, sC, vMC))
    for w in range(8): a("v_exp_f32 v%d, v%d" % (tm + 2 * w, tm + 2 * w))
    a("s_waitcnt lgkmcnt(0)")
    for k in range(2): a("v_mul_f32 v%d, v%d, v%d" % (vT + 2 + k, tm, to + k))
    for w in range(1, 8):
        for k in range(2): a("v_fmac_f32 v%d, v%d, v%d" % (vT + 2 + k, tm + 2 * w, to + 2 * w + k))
    for k in range(2): a("v_cvt_pk_bf16_f32 v%d, v%d, v%d" % (vT + 2 + k, vT + 2 + k, vT + 2 + k))
    a("ds_write2st64_b32 v%d, v%d, v%d offset0:0 offset1:1" % (vPriv, vT + 2, vT + 3))
    a("v_mul_f32 v%d, v%d, v%d" % (vL, tm, tm + 1))
    for w in range(1, 8): a("v_fmac_f32 v%d, v%d, v%d" % (vL, tm + 2 * w, tm + 2 * w + 1))
    a("s_waitcnt lgkmcnt(0)")
    for u in range(8): a("ds_read_b128 %s, v%d offset:%d" % (vr(vPP + 4 * u), vPrd, 64 * u))
    a("s_waitcnt lgkmcnt(7)")
    gemv(32, lambda n: vWO + 4 * n, lambda n: vPP + n, vS,
         waits=lambda n: a("s_waitcnt lgkmcnt(%d)" % max(0, 7 - (n + 1) // 4)) if (n + 1) % 4 == 0 and n < 31 else None)
    if dry:
        a("s_cmp_lg_u32 s%d, 0" % sTask)
        a("s_cbranch_scc1 L_epi_wait")
    a("s_mov_b32 exec_hi, 0")
    xs(4)
    a("global_store_dwordx4 v%d, %s, %s%s" % (vYoff, vr(vS), sp(sY), P(stpol)))
    a("s_mov_b64 exec, -1")
    a("s_cmp_lg_u32 s%d, 0" % sWave)
    a("s_cbranch_scc1 L_w0done")
    a("v_mov_b32 v%d, v%d" % (vT + 2, vMC))
    a("v_mov_b32 v%d, v%d" % (vT + 3, vL))
    a("v_mov_b32 v%d, s%d" % (vT + 4, sGate))
    a("v_sub_f32 v%d, 1.0, v%d" % (vT + 5, vT + 4))
    a("s_lshl_b32 s%d, s%d, 3" % (sT + 2, sRow)); a("s_add_u32 s%d, s%d, 0x%x" % (sT + 2, sT + 2, WS_ML))
    a("v_mov_b32 v%d, s%d" % (vT + 6, sT + 2))
    a("s_mov_b64 exec, 1")
    a("global_store_dwordx2 v%d, v[%d:%d], %s%s" % (vT + 6, vT + 2, vT + 3, sp(sWs), P(stpol)))
    a("s_and_b32 s%d, s%d, 63" % (sT + 3, sRow))
    a("s_cmp_lg_u32 s%d, 0" % (sT + 3))
    a("s_cbranch_scc1 L_nog")
    a("s_lshl_b32 s%d, s%d, 3" % (sT + 2, sB)); a("s_add_u32 s%d, s%d, 0x%x" % (sT + 2, sT + 2, WS_G))
    a("v_mov_b32 v%d, s%d" % (vT + 7, sT + 2))
    a("global_store_dwordx2 v%d, v[%d:%d], %s%s" % (vT + 7, vT + 4, vT + 5, sp(sWs), P(stpol)))
    a("L_nog:")
    a("s_mov_b64 exec, -1")
    a("L_w0done:")
    if stamps:
        a("s_cmp_lg_u32 s%d, 0" % sWave)
        a("s_cbranch_scc1 L_nost")
        a("s_mov_b64 exec, 1")
        a("s_memrealtime %s" % sp(sStamp + 2))
        a("s_waitcnt lgkmcnt(0)")
        for k in range(4): a("v_mov_b32 v%d, s%d" % (vQ + k, sStamp + k))
        a("s_lshl_b32 s%d, s2, 4" % sT); a("s_add_u32 s%d, s%d, 0x%x" % (sT, sT, WS_STAMP))
        a("v_mov_b32 v%d, s%d" % (vT + 2, sT))
        a("global_store_dwordx4 v%d, %s, %s" % (vT + 2, vr(vQ), sp(sWs)))
        a("s_mov_b64 exec, -1")
        a("L_nost:")
    a("L_fin:")
    if stamps:
        a("s_mov_b64 exec, 1")
        xs(5)
        a("s_waitcnt lgkmcnt(0)")
        for k in range(NXS):
            a("s_lshl_b32 s%d, s2, 3" % sT); a("s_add_u32 s%d, s%d, s%d" % (sT, sT, sWave)); a("s_lshl_b32 s%d, s%d, 3" % (sT, sT))
            a("s_add_u32 s%d, s%d, 0x%x" % (sT, sT, WS_STAMP + 0x40000 + 0x4000 * k))
            a("v_mov_b32 v%d, s%d" % (vT + 2, sT))
            a("v_mov_b32 v%d, s%d" % (vQ + 4, sXS + 2 * k)); a("v_mov_b32 v%d, s%d" % (vQ + 5, sXS + 2 * k + 1))
            a("global_store_dwordx2 v%d, v[%d:%d], %s" % (vT + 2, vQ + 4, vQ + 5, sp(sWs)))
            a("s_nop 1")
    a("L_done:")
    a("s_endpgm")
    for k in tramps:
        a("L_tr%d:" % k)
        a("s_swappc_b64 %s, %s" % (sp(sRet), sp(sRare)))
        a("s_branch L_back%d" % k)
    a("L_rare:")
    for k in range(4): a("v_readlane_b32 s%d, v%d, %d" % (sT + k, vT, 16 * k))
    a("v_mov_b32 v%d, s%d" % (vT + 1, sT))
    for k in range(1, 4): a("v_max_f32 v%d, s%d, v%d" % (vT + 1, sT + k, vT + 1))
    a("v_max_f32 v%d, v%d, v%d" % (vT + 1, vT + 1, vM))
    a("v_sub_f32 v%d, v%d, v%d" % (vT + 2, vM, vT + 1))
    a("v_mul_f32 v%d, s%d, v%d" % (vT + 2, sC, vT + 2))
    a("v_exp_f32 v%d, v%d" % (vT + 2, vT + 2))
    a("v_mov_b32 v%d, v%d" % (vM, vT + 1))
    a("v_mul_f32 v%d, s%d, v%d" % (vMC, sC, vT + 1))
    for r in range(4): a("v_mul_f32 v%d, v%d, v%d" % (vO + r, vO + r, vT + 2))
    a("v_mul_f32 v%d, v%d, v%d" % (vL, vL, vT + 2))
    a("s_nop 1")
    a("s_setpc_b64 %s" % sp(sRet))
    body1 = a.finish()

    def kernel2_wide():
        c = Asm()
        c("%s:" % K2)
        c("s_cmp_ge_u32 s2, 128")
        c("s_cbranch_scc1 L2_done")
        c("s_load_dwordx2 s[32:33], s[0:1], 72")
        c("s_load_dwordx2 s[4:5], s[0:1], 88")
        c("s_load_dwordx2 s[6:7], s[0:1], 104")
        if stamps: c("s_memrealtime s[36:37]")
        c("s_lshr_b32 s8, s2, 5")
        c("s_and_b32 s9, s2, 31")
        c("v_lshrrev_b32 v1, 2, v0")
        c("v_and_b32 v2, 3, v0")
        c("v_lshlrev_b32 v3, 13, v1")
        c("v_lshl_add_u32 v3, v2, 4, v3")
        c("v_lshlrev_b32 v4, 11, v1")
        c("v_lshl_add_u32 v4, v2, 4, v4")
        c("v_lshlrev_b32 v5, 5, v1")
        c("v_lshlrev_b32 v6, 3, v2")
        c("s_lshl_b32 s11, s9, 6")
        c("s_lshl_b32 s10, s8, 17"); c("s_add_u32 s10, s10, s11")
        c("s_mul_i32 s12, s8, %d" % (NFF * 2048)); c("s_add_u32 s12, s12, s11"); c("s_add_u32 s12, s12, 0x%x" % WS_YF)
        c("s_lshl_b32 s13, s8, 9"); c("s_add_u32 s13, s13, 0x%x" % WS_ML)
        c("s_movk_i32 s24, 4096")
        for k in range(1, 4): c("s_mov_b32 s%d, %d" % (41 + k, 32768 * k))
        c("s_lshl_b32 s31, s8, 3"); c("s_add_u32 s31, s31, 0x%x" % WS_G)
        c("v_mov_b32 v7, s31")
        c("s_lshl_b32 s35, s9, 5")
        c("s_waitcnt lgkmcnt(0)")
        c("s_add_u32 s14, s6, s13"); c("s_addc_u32 s15, s7, 0")
        for k in range(2): c("global_load_dwordx4 %s, v5, s[14:15] offset:%d" % (vr(8 + 4 * k), 16 * k))
        c("s_add_u32 s16, s6, s10"); c("s_addc_u32 s17, s7, 0"); c("s_mov_b32 s18, 0x20000"); c("s_mov_b32 s19, 0x20000")
        for j in range(4):
            c("buffer_load_dwordx4 %s, v3, s[16:19], %s offen offset:%d" % (vr(24 + 4 * j), "0" if j < 2 else "s24", 2048 * (j & 1)))
        c("s_add_u32 s20, s6, s12"); c("s_addc_u32 s21, s7, 0"); c("s_sub_u32 s22, %d, s11" % (NFF * 2048)); c("s_mov_b32 s23, 0x20000")
        for k in range(4):
            c("buffer_load_dwordx4 %s, v4, s[20:23], %s offen" % (vr(40 + 4 * k), "0" if k == 0 else "s%d" % (41 + k)))
        c("global_load_dwordx2 v[56:57], v7, s[6:7]")
        c("s_add_u32 s32, s32, s35"); c("s_addc_u32 s33, s33, 0")
        c("global_load_dwordx2 v[58:59], v6, s[32:33]")
        c("s_lshl_b32 s34, s8, 10"); c("s_add_u32 s34, s34, s35")
        c("s_add_u32 s4, s4, s34"); c("s_addc_u32 s5, s5, 0")
        c("v_cmp_eq_u32 vcc, 0, v1")
        c("s_waitcnt vmcnt(10)")
        for p in range(2):
            r = 8 + 4 * p
            c("v_max_f32 v%d, v%d, v%d" % (60 + p, r, r + 2))
        for p in range(2):
            r = 8 + 4 * p
            c("v_sub_f32 v%d, v%d, v%d" % (r, r, 60 + p)); c("v_sub_f32 v%d, v%d, v%d" % (r + 2, r + 2, 60 + p))
        for p in range(2):
            r = 8 + 4 * p
            c("v_exp_f32 v%d, v%d" % (r, r)); c("v_exp_f32 v%d, v%d" % (r + 2, r + 2))
        for p in range(2):
            r = 8 + 4 * p
            c("v_mul_f32 v%d, v%d, v%d" % (r + 1, r + 1, r))
        for p in range(2):
            r = 8 + 4 * p
            c("v_fmac_f32 v%d, v%d, v%d" % (r + 1, r + 3, r + 2))
        for p in range(2): c("v_rcp_f32 v%d, v%d" % (9 + 4 * p, 9 + 4 * p))
        c("s_nop 0")
        for p in range(2):
            r = 8 + 4 * p
            c("v_mul_f32 v%d, v%d, v%d" % (r, r, r + 1)); c("v_mul_f32 v%d, v%d, v%d" % (r + 2, r + 2, r + 1))
        c("s_waitcnt vmcnt(6)")
        for r in range(4): c("v_mul_f32 v%d, v8, v%d" % (64 + r, 24 + r))
        for j in range(1, 4):
            sc = 8 + 4 * (j // 2) + 2 * (j & 1)
            for r in range(4): c("v_fmac_f32 v%d, v%d, v%d" % (64 + r, sc, 24 + 4 * j + r))
        c("s_waitcnt vmcnt(0)")
        for r in range(4): c("v_add_f32 v%d, v%d, v%d" % (40 + r, 40 + r, 44 + r))
        for r in range(4): c("v_add_f32 v%d, v%d, v%d" % (48 + r, 48 + r, 52 + r))
        c("v_lshlrev_b32 v60, 16, v58"); c("v_and_b32 v61, 0xffff0000, v58"); c("v_lshlrev_b32 v62, 16, v59"); c("v_and_b32 v63, 0xffff0000, v59")
        for r in range(4): c("v_add_f32 v%d, v%d, v%d" % (40 + r, 40 + r, 48 + r))
        for r in range(4): c("v_cndmask_b32 v%d, 0, v%d, vcc" % (60 + r, 60 + r))
        for r in range(4): c("v_add_f32 v%d, v%d, v%d" % (40 + r, 40 + r, 60 + r))
        for r in range(4): c("v_mul_f32 v%d, v56, v%d" % (64 + r, 64 + r))
        for r in range(4): c("v_fmac_f32 v%d, v57, v%d" % (64 + r, 40 + r))
        for m_ in ("row_ror:4", "row_ror:8"):
            for r in range(4): c("v_add_f32_dpp v%d, v%d, v%d %s row_mask:0xf bank_mask:0xf" % (64 + r, 64 + r, 64 + r, m_))
        for sw in ("v_permlane16_swap_b32", "v_permlane32_swap_b32"):
            for r in range(4): c("v_mov_b32 v%d, v%d" % (60 + r, 64 + r))
            for r in range(4): c("%s v%d, v%d" % (sw, 64 + r, 60 + r))
            for r in range(4): c("v_add_f32 v%d, v%d, v%d" % (64 + r, 64 + r, 60 + r))
        c("v_cvt_pk_bf16_f32 v64, v64, v65")
        c("v_cvt_pk_bf16_f32 v65, v66, v67")
        c("s_mov_b64 exec, 0xf")
        c("global_store_dwordx2 v6, v[64:65], s[4:5]")
        if stamps:
            c("s_waitcnt vmcnt(0)")
            c("s_memrealtime s[38:39]")
            c("s_waitcnt lgkmcnt(0)")
            c("s_mov_b64 exec, 0x3")
            c("v_and_b32 v1, 1, v0")
            c("s_lshl_b32 s34, s2, 1")
            c("v_add_u32 v1, s34, v1")
            c("v_lshlrev_b32 v1, 3, v1")
            for k in range(2):
                c("v_add_u32 v2, 0x%x, v1" % (WS_STAMP + 0x10000 + 0x1000 * (5 + k)))
                c("v_mov_b32 v8, s%d" % (36 + 2 * k)); c("v_mov_b32 v9, s%d" % (37 + 2 * k))
                c("global_store_dwordx2 v2, v[8:9], s[6:7]")
                c("s_nop 1")
        c("L2_done:")
        c("s_endpgm")
        return c.finish()
    c = Asm()
    c("%s:" % K2)
    c("s_cmp_ge_u32 s2, 64")
    c("s_cbranch_scc1 L2_done")
    c("s_load_dwordx2 s[4:5], s[0:1], 88")
    c("s_load_dwordx2 s[6:7], s[0:1], 104")
    c("s_load_dwordx2 s[32:33], s[0:1], 72")
    if stamps: c("s_memrealtime s[36:37]")
    c("s_lshr_b32 s8, s2, 4")
    c("s_and_b32 s9, s2, 15")
    c("v_lshrrev_b32 v1, 3, v0")
    c("v_and_b32 v2, 7, v0")
    c("v_lshlrev_b32 v3, 14, v1")
    c("v_lshl_add_u32 v3, v2, 4, v3")
    c("v_lshlrev_b32 v4, 11, v1")
    c("v_lshl_add_u32 v4, v2, 4, v4")
    c("v_lshlrev_b32 v5, 6, v1")
    c("v_lshlrev_b32 v6, 3, v2")
    c("s_lshl_b32 s10, s8, 17"); c("s_lshl_b32 s11, s9, 7"); c("s_add_u32 s10, s10, s11")
    c("s_mul_i32 s12, s8, %d" % (NFF * 2048)); c("s_add_u32 s12, s12, s11"); c("s_add_u32 s12, s12, 0x%x" % WS_YF)
    c("s_lshl_b32 s13, s8, 9"); c("s_add_u32 s13, s13, 0x%x" % WS_ML)
    c("s_movk_i32 s24, 4096"); c("s_movk_i32 s25, 8192"); c("s_movk_i32 s26, 12288")
    for k in range(1, 7): c("s_mov_b32 s%d, %d" % (41 + k, 16384 * k))
    c("s_lshl_b32 s31, s8, 3"); c("s_add_u32 s31, s31, 0x%x" % WS_G)
    c("v_mov_b32 v7, s31")
    c("s_lshl_b32 s35, s9, 6")
    c("s_waitcnt lgkmcnt(0)")
    c("s_add_u32 s14, s6, s13"); c("s_addc_u32 s15, s7, 0")
    for k in range(4): c("global_load_dwordx4 %s, v5, s[14:15] offset:%d" % (vr(8 + 4 * k), 16 * k))
    c("s_add_u32 s16, s6, s10"); c("s_addc_u32 s17, s7, 0"); c("s_mov_b32 s18, 0x20000"); c("s_mov_b32 s19, 0x20000")
    for j in range(8):
        so = "0" if j < 2 else "s%d" % (24 + j // 2 - 1)
        c("buffer_load_dwordx4 %s, v3, s[16:19], %s offen offset:%d" % (vr(24 + 4 * j), so, 2048 * (j & 1)))
    c("s_add_u32 s20, s6, s12"); c("s_addc_u32 s21, s7, 0"); c("s_sub_u32 s22, %d, s11" % (NFF * 2048)); c("s_mov_b32 s23, 0x20000")
    for k in range(7):
        c("buffer_load_dwordx4 %s, v4, s[20:23], %s offen" % (vr(88 + 4 * k), "0" if k == 0 else "s%d" % (41 + k)))
    c("global_load_dwordx2 v[72:73], v7, s[6:7]")
    c("s_add_u32 s32, s32, s35"); c("s_addc_u32 s33, s33, 0")
    c("global_load_dwordx2 v[74:75], v6, s[32:33]")
    c("s_lshl_b32 s34, s8, 10"); c("s_add_u32 s34, s34, s35")
    c("s_add_u32 s4, s4, s34"); c("s_addc_u32 s5, s5, 0")
    c("s_waitcnt vmcnt(17)")
    for p in range(4):
        r = 8 + 4 * p
        c("v_max_f32 v84, v%d, v%d" % (r, r + 2))
        c("v_sub_f32 v%d, v%d, v84" % (r, r)); c("v_sub_f32 v%d, v%d, v84" % (r + 2, r + 2))
        c("v_exp_f32 v%d, v%d" % (r, r)); c("v_exp_f32 v%d, v%d" % (r + 2, r + 2))
        c("v_mul_f32 v%d, v%d, v%d" % (r + 1, r + 1, r))
        c("v_fmac_f32 v%d, v%d, v%d" % (r + 1, r + 3, r + 2))
        c("v_rcp_f32 v%d, v%d" % (r + 1, r + 1))
        c("v_mul_f32 v%d, v%d, v%d" % (r, r, r + 1)); c("v_mul_f32 v%d, v%d, v%d" % (r + 2, r + 2, r + 1))
    c("s_waitcnt vmcnt(9)")
    for r in range(4): c("v_mul_f32 v%d, v8, v%d" % (84 + r, 24 + r))
    for j in range(1, 8):
        sc = 8 + 4 * (j // 2) + 2 * (j & 1)
        for r in range(4): c("v_fmac_f32 v%d, v%d, v%d" % (84 + r, sc, 24 + 4 * j + r))
    c("s_waitcnt vmcnt(0)")
    for r in range(4): c("v_add_f32 v%d, v%d, v%d" % (56 + r, 88 + r, 92 + r))
    for k in range(2, 7):
        for r in range(4): c("v_add_f32 v%d, v%d, v%d" % (56 + r, 56 + r, 88 + 4 * k + r))
    c("v_lshlrev_b32 v76, 16, v74"); c("v_and_b32 v77, 0xffff0000, v74"); c("v_lshlrev_b32 v78, 16, v75"); c("v_and_b32 v79, 0xffff0000, v75")
    c("v_cmp_eq_u32 vcc, 0, v1")
    for r in range(4): c("v_cndmask_b32 v%d, 0, v%d, vcc" % (76 + r, 76 + r))
    for r in range(4): c("v_add_f32 v%d, v%d, v%d" % (56 + r, 56 + r, 76 + r))
    for r in range(4): c("v_mul_f32 v%d, v72, v%d" % (84 + r, 84 + r))
    for r in range(4): c("v_fmac_f32 v%d, v73, v%d" % (84 + r, 56 + r))
    for r in range(4): c("v_add_f32_dpp v%d, v%d, v%d row_ror:8 row_mask:0xf bank_mask:0xf" % (84 + r, 84 + r, 84 + r))
    for sw in ("v_permlane16_swap_b32", "v_permlane32_swap_b32"):
        for r in range(4): c("v_mov_b32 v%d, v%d" % (60 + r, 84 + r))
        for r in range(4): c("%s v%d, v%d" % (sw, 84 + r, 60 + r))
        for r in range(4): c("v_add_f32 v%d, v%d, v%d" % (84 + r, 84 + r, 60 + r))
    c("v_cvt_pk_bf16_f32 v84, v84, v85")
    c("v_cvt_pk_bf16_f32 v85, v86, v87")
    c("s_mov_b64 exec, 0xff")
    c("global_store_dwordx2 v6, v[84:85], s[4:5]")
    if stamps:
        c("s_waitcnt vmcnt(0)")
        c("s_memrealtime s[38:39]")
        c("s_waitcnt lgkmcnt(0)")
        c("s_mov_b64 exec, 0xf")
        c("v_and_b32 v1, 3, v0")
        c("s_lshl_b32 s34, s2, 2")
        c("v_add_u32 v1, s34, v1")
        c("v_lshlrev_b32 v1, 3, v1")
        for k in range(2):
            c("v_add_u32 v2, 0x%x, v1" % (WS_STAMP + 0x10000 + 0x1000 * (5 + k)))
            c("v_mov_b32 v8, s%d" % (36 + 2 * k)); c("v_mov_b32 v9, s%d" % (37 + 2 * k))
            c("global_store_dwordx2 v2, v[8:9], s[6:7]")
            c("s_nop 1")
    c("L2_done:")
    c("s_endpgm")
    body2 = c.finish() if not k2w else kernel2_wide()

    hdr = open("cdna_kernels/%s.s.ref" % NAME).read().split("; Override launch")[0]
    out = hdr
    out += "; @launch kernel=%s grid=(256,1,1) block=(%d,1,1) lds=%d\n" % (K1, 64 * W, L_END)
    out += "; @launch kernel=%s grid=(%d,1,1) block=(64,1,1) lds=0\n" % (K2, 128 if k2w else 64)
    out += '.amdgcn_target "amdgcn-amd-amdhsa--gfx950"\n'
    out += DESCRIPTION
    out += '.text\n'
    for k, body in ((K1, body1), (K2, body2)):
        out += ".globl %s\n.p2align 8\n.type %s,@function\n" % (k, k) + body
    out += '.section .rodata,"a"\n'
    for k, nv, ns in ((K1, NV, 100), (K2, 72 if k2w else 116, 56)):
        out += ".p2align 6\n.amdhsa_kernel %s\n" % k
        out += "  .amdhsa_next_free_vgpr %d\n  .amdhsa_next_free_sgpr %d\n  .amdhsa_accum_offset %d\n" % (nv, ns, (nv + 3) // 4 * 4)
        out += "  .amdhsa_group_segment_fixed_size 0\n  .amdhsa_kernarg_size 112\n  .amdhsa_user_sgpr_count 2\n"
        out += "  .amdhsa_user_sgpr_kernarg_segment_ptr 1\n  .amdhsa_system_sgpr_workgroup_id_x 1\n"
        out += "  .amdhsa_float_denorm_mode_32 3\n"
        out += ".end_amdhsa_kernel\n"
    return out

if __name__ == "__main__":
    import argparse
    ap = argparse.ArgumentParser()
    ap.add_argument("-o", default="cdna_kernels/%s.s" % NAME)
    ap.add_argument("--D", type=int, default=2)
    ap.add_argument("--kvpol", default="nt")
    ap.add_argument("--wqpol", default="")
    ap.add_argument("--wopol", default="")
    ap.add_argument("--fpol", default="")
    ap.add_argument("--stpol", default="")
    ap.add_argument("--stamps", action="store_true")
    ap.add_argument("--noffn", action="store_true")
    ap.add_argument("--abl", default="")
    ap.add_argument("--early", action="store_true")
    ap.add_argument("--touch", action="store_true")
    ap.add_argument("--pretab", default="00000000")
    ap.add_argument("--preidx", default="r")
    ap.add_argument("--nsh", type=int, default=8)
    ap.add_argument("--warm", action="store_true")
    ap.add_argument("--dry", action="store_true")
    ap.add_argument("--pfk2", action="store_true")
    ap.add_argument("--k2w", action="store_true")
    ap.add_argument("--prio", action="store_true")
    ap.add_argument("--kvtouch", action="store_true")
    x = ap.parse_args()
    open(x.o, "w").write(gen(D=x.D, kvpol=x.kvpol, wqpol=x.wqpol, wopol=x.wopol, fpol=x.fpol, stpol=x.stpol,
                             stamps=x.stamps, ffn=not x.noffn, abl=tuple(x.abl.split(",")), early=x.early, touch=x.touch, pretab=tuple(int(ch) for ch in x.pretab), preidx=x.preidx, nsh=x.nsh, warm=x.warm, dry=x.dry, pfk2=x.pfk2, k2w=x.k2w, prio=x.prio, kvtouch=x.kvtouch))
    print("wrote", x.o)
```

```python
import sys, os, struct
sys.path.insert(0, os.path.dirname(os.path.abspath(__file__)))
from asmlib import Asm, VmQueue

NAME = "gated_mix__mha_block_cached__dense_activation_squared_relu__decode"
K1 = NAME + "_kernel"
K2 = "final_reduce_kernel"

def fbits(x): return "0x%08x" % struct.unpack("<I", struct.pack("<f", x))[0]
LOG2E = 1.4426950408889634
CSCALE = LOG2E * (128 ** -0.5)

NFF = 56
WS_Y, WS_YF, WS_ML, WS_G = 0, 0x80000, 0x100000, 0x101000
WS_STAMP = 0x20000000
L_QP, L_PRIV, L_EP, L_ML, L_CLAIM, L_HH, L_HP, L_XS, L_END = 0, 4096, 8192, 12288, 12416, 12544, 13568, 13568 + 8192, 13568 + 8192 + 4096

DESCRIPTION = """; ---------------------------------------------------------------------------------------------------
; ---------------------------------------------------------------------------------------------------
"""

def vr(b, n=4): return "v[%d:%d]" % (b, b + n - 1)
def sp(b): return "s[%d:%d]" % (b, b + 1)
def sq(b): return "s[%d:%d]" % (b, b + 3)

def gen(D=2, kvpol="nt", wqpol="", wopol="", fpol="", stpol="", stamps=False, ffn=True, abl=(), early=False, touch=False, pretab=(0,) * 8, preidx="r", nsh=8, warm=False, dry=False, pfk2=False, k2w=False, prio=False, kvtouch=False, wom=None, wooff=None, claimit=2):
    W = 8
    NT = 4096 // 16 // W
    a = Asm()
    P = lambda p: (" " + p) if p else ""
    MF = "v_mfma_f32_16x16x32_bf16"
    vLane, vG, vI = 1, 2, 3
    vKoff, vVoff, vL, vM, vMC = 4, 5, 6, 7, 8
    vEPa, vPriv, vTmp = 9, 10, 11
    vMask = 12
    vQ = 16; vS = 32; vP = 36; vA = [40, 44]; vO = 48; vT = 52
    vWoff, vYoff, vPrd, vOne = 60, 61, 62, 63
    vChk = vT + 7
    vKV = 64
    vWA = vKV + 32 * D
    NV = max(vWA + 64, 64 + 128 + 32)
    assert NV <= 256
    Kb = lambda d: vKV + 32 * d
    Vb = lambda d: vKV + 32 * d + 16
    vWO = vKV
    vPP = vWO + 128
    vTch = Vb(D - 1)
    sX, sK, sV, sWq, sWo, sBx, sW1, sB1 = 4, 6, 8, 10, 12, 14, 16, 18
    sW2, sB2, sGw, sOut, sDbg, sWs = 20, 22, 24, 26, 28, 30
    sWave, sH, sB, sSp, sRot, sRow = 3, 32, 33, 34, 35, 36
    sOff, sCnt, sC, sGate = 37, 38, 39, 40
    sPriv, sCb, sSig = 41, 42, 43
    sWoT, sPre, sTask = 96, 97, 98
    rK, rV, rWq, rWo = 44, 48, 52, 56
    rW1, rW2 = 44, 48
    sT = 60
    sRet, sRare = 72, 74
    sY = 76
    sX0 = 78
    sStamp = 80
    sXS = 84
    NXS = 6
    vm = VmQueue(a)
    def xs(k):
        if stamps: a("s_memrealtime %s" % sp(sXS + 2 * k))
    def srd(r, base, off, nrec, nrec_sub=None):
        a("s_add_u32 s%d, s%d, s%d" % (r, base, off)); a("s_addc_u32 s%d, s%d, 0" % (r + 1, base + 1))
        if nrec_sub is None: a("s_mov_b32 s%d, 0x%x" % (r + 2, nrec))
        else: a("s_sub_u32 s%d, 0x%x, s%d" % (r + 2, nrec, nrec_sub))
        a("s_mov_b32 s%d, 0x20000" % (r + 3))
    def gemv(nld, Wreg, Preg, acc, waits=None):
        def ands(n):
            for r in range(4): a("v_and_b32 v%d, v%d, v%d" % (vA[n & 1] + r, Preg(n), vMask + r))
        ands(0)
        for n in range(nld):
            if waits: waits(n)
            if n + 1 < nld: ands(n + 1)
            a("%s %s, %s, %s, %s" % (MF, vr(acc), vr(vA[n & 1]), vr(Wreg(n)), "0" if n == 0 else vr(acc)))

    a("%s:" % K1)
    a("s_cmp_ge_u32 s2, 256")
    a("s_cbranch_scc1 L_done")
    a("s_load_dwordx16 s[4:19], s[0:1], 0")
    a("s_load_dwordx8 s[20:27], s[0:1], 64")
    a("s_load_dwordx4 s[28:31], s[0:1], 96")
    if stamps: a("s_memrealtime %s" % sp(sStamp))
    a("v_lshrrev_b32 v%d, 6, v0" % vTmp)
    a("v_and_b32 v%d, 63, v0" % vLane)
    a("v_readfirstlane_b32 s%d, v%d" % (sWave, vTmp))
    a("v_lshrrev_b32 v%d, 4, v%d" % (vG, vLane))
    a("v_and_b32 v%d, 15, v%d" % (vI, vLane))
    a("s_and_b32 s%d, s2, 7" % sT)
    a("s_lshr_b32 s%d, s2, 3" % (sT + 1))
    a("s_and_b32 s%d, s%d, 3" % (sT + 2, sT + 1))
    a("s_lshl_b32 s%d, s%d, 2" % (sH, sT))
    a("s_add_u32 s%d, s%d, s%d" % (sH, sH, sT + 2))
    a("s_lshr_b32 s%d, s%d, 2" % (sRot, sT + 1))
    a("s_lshr_b32 s%d, s%d, 3" % (sB, sT + 1))
    a("s_and_b32 s%d, s%d, 1" % (sSp, sRot))
    a("s_add_u32 s%d, s%d, s%d" % (sT + 3, sWave, sRot)); a("s_and_b32 s%d, s%d, 7" % (sT + 3, sT + 3))
    a("s_lshl_b32 s%d, s%d, 6" % (sT + 4, sT + 3))
    a("v_lshl_add_u32 v%d, v%d, 2, s%d" % (vA[0], vG, sT + 4))
    a("v_lshlrev_b32 v%d, 13, v%d" % (vA[1], vA[0]))
    a("v_lshl_add_u32 v%d, v%d, 4, v%d" % (vA[1], vI, vA[1]))
    a("v_lshlrev_b32 v%d, 1, v%d" % (vTmp, vA[0]))
    a("s_lshl_b32 s%d, s%d, 8" % (sT + 5, sH))
    a("s_lshl_b32 s%d, s%d, 10" % (sT + 6, sB))
    a("s_mov_b32 s%d, 0" % (sT + 8))
    a("s_waitcnt lgkmcnt(0)")
    srd(rWq, sWq, sT + 5, 4194304, sT + 5)
    if "nowq" in abl: a("s_mov_b32 s%d, 0" % (rWq + 2))
    a("s_mov_b32 s%d, s%d" % (sX0, sX)); a("s_mov_b32 s%d, s%d" % (sX0 + 1, sX + 1))
    a("s_add_u32 s%d, s%d, s%d" % (sX, sX, sT + 6)); a("s_addc_u32 s%d, s%d, 0" % (sX + 1, sX + 1))
    for u in range(4):
        vm.issue("gate", "global_load_dwordx2 v[%d:%d], v%d, %s offset:%d" % (vT + 2 * u, vT + 2 * u + 1, vTmp, sp(sX), 32 * u))
    if touch:
        a("s_cmp_lg_u32 s%d, 0" % sWave)
        a("s_cbranch_scc1 L_notouch")
        a("s_lshl_b32 s%d, s%d, 6" % (sT + 9, sRot))
        a("v_add_u32 v%d, s%d, v%d" % (vTch, sT + 9, vLane))
        a("v_lshlrev_b32 v%d, 13, v%d" % (vTch, vTch))
        a("buffer_load_dword v%d, v%d, %s, 0 offen%s" % (vTch + 1, vTch, sq(rWq), P(wqpol)))
        a("buffer_load_dword v%d, v%d, %s, 0 offen offset:128%s" % (vTch + 2, vTch, sq(rWq), P(wqpol)))
        a("L_notouch:")
    a("v_lshlrev_b32 v%d, 8, v%d" % (vKoff, vI))
    a("v_lshl_add_u32 v%d, v%d, 4, v%d" % (vKoff, vG, vKoff))
    a("v_lshlrev_b32 v%d, 10, v%d" % (vVoff, vG))
    a("v_lshl_add_u32 v%d, v%d, 4, v%d" % (vVoff, vI, vVoff))
    a("s_lshl_b32 s%d, s%d, 5" % (sRow, sB))
    a("s_add_u32 s%d, s%d, s%d" % (sRow, sRow, sH))
    a("s_lshl_b32 s%d, s%d, 1" % (sRow, sRow))
    a("s_add_u32 s%d, s%d, s%d" % (sRow, sRow, sSp))
    a("s_lshl_b32 s%d, s%d, 20" % (sT + 3, sRow))
    srd(rK, sK, sT + 3, 0x100000)
    srd(rV, sV, sT + 3, 0x100000)
    pol = P(kvpol)
    if kvtouch:
        a("s_cmp_lg_u32 s%d, 1" % sWave)
        a("s_cbranch_scc1 L_nokvt")
        a("v_mov_b32 v%d, 0" % (vTch + 3))
        a("s_mov_b64 exec, 1")
        a("buffer_load_dword v%d, v%d, %s, 0 offen%s" % (vTch + 4, vTch + 3, sq(rK), pol))
        a("buffer_load_dword v%d, v%d, %s, 0 offen%s" % (vTch + 5, vTch + 3, sq(rV), pol))
        a("s_mov_b64 exec, -1")
        a("L_nokvt:")
    def kload(d):
        for t in range(4):
            vm.issue("K%d" % d, "buffer_load_dwordx4 %s, v%d, %s, s%d offen offset:%d%s" % (vr(Kb(d) + 4 * t), vKoff, sq(rK), sOff, 64 * t, pol))
    def vload(d):
        for t in range(4):
            vm.issue("V%d" % d, "buffer_load_dwordx4 %s, v%d, %s, s%d offen offset:%d%s" % (vr(Vb(d) + 4 * t), vVoff, sq(rV), sOff, 256 * t, pol))
    def kv_prefetch(d0=0, d1=None):
        save = list(vm.q)
        a("s_lshl_b32 s%d, s%d, 12" % (sOff, sWave))
        if d0: a("s_add_u32 s%d, s%d, %d" % (sOff, sOff, 4096 * W * d0))
        for d in range(d0, D if d1 is None else d1):
            kload(d); vload(d)
            a("s_add_u32 s%d, s%d, %d" % (sOff, sOff, 4096 * W))
        vm.q = save
    pack = sum(p << (4 * i) for i, p in enumerate(pretab))
    npre = max(pretab)
    if preidx == "r": a("s_lshl_b32 s%d, s%d, 2" % (sPre, sRot))
    elif preidx == "h":
        a("s_and_b32 s%d, s%d, 7" % (sPre, sH)); a("s_lshl_b32 s%d, s%d, 2" % (sPre, sPre))
    elif preidx == "x":
        a("s_and_b32 s%d, s2, 7" % sPre); a("s_lshl_b32 s%d, s%d, 2" % (sPre, sPre))
    elif preidx == "hs":
        a("s_and_b32 s%d, s%d, 3" % (sPre, sH)); a("s_lshl_b32 s%d, s%d, 1" % (sPre, sPre)); a("s_add_u32 s%d, s%d, s%d" % (sPre, sPre, sSp))
        a("s_lshl_b32 s%d, s%d, 2" % (sPre, sPre))
    a("s_lshr_b32 s%d, 0x%x, s%d" % (sPre, pack, sPre))
    a("s_and_b32 s%d, s%d, 15" % (sPre, sPre))
    a("s_cmp_ge_u32 s%d, 4" % sWave)
    a("s_cselect_b32 s%d, 0, s%d" % (sPre, sPre))
    for d in range(npre):
        a("s_cmp_le_u32 s%d, %d" % (sPre, d))
        a("s_cbranch_scc1 L_pre%d" % d)
        kv_prefetch(d, d + 1)
        a("L_pre%d:" % d)
    for n in range(16):
        u, t = divmod(n, 4)
        vm.issue("wq%d" % u, "buffer_load_dwordx4 %s, v%d, %s, s%d offen%s" % (vr(vWA + 4 * n), vA[1], sq(rWq), sT + 8, P(wqpol)))
        if n < 15: a("s_add_u32 s%d, s%d, %d" % (sT + 8, sT + 8, 8192 if t < 3 else 13 * 8192))
    a("s_barrier")
    def old_prefetch():
        a("s_cmp_ge_u32 s%d, 4" % sWave)
        a("s_cbranch_scc1 L_pf1")
        for d in range(npre):
            a("s_cmp_gt_u32 s%d, %d" % (sPre, d))
            a("s_cbranch_scc1 L_pfs%d" % d)
            kv_prefetch(d, d + 1)
            a("L_pfs%d:" % d)
        if npre < D: kv_prefetch(npre)
        a("L_pf1:")
    if early: old_prefetch()
    xs(0)
    nw = [0]
    def dual_wait(tag):
        n = vm.count(tag)
        if not early:
            vm.wait(tag); return
        a("s_waitcnt vmcnt(%d)" % (n + 8 * D))
        for k in range(1, npre + 1):
            a("s_cmp_lt_u32 s%d, %d" % (sPre, k))
            a("s_cbranch_scc1 L_dx%d_%d" % (nw[0], k))
            a("s_waitcnt vmcnt(%d)" % (n + 8 * (D - k)))
            a("L_dx%d_%d:" % (nw[0], k))
        a("s_cmp_lt_u32 s%d, 4" % sWave)
        a("s_cbranch_scc1 L_dw%d" % nw[0])
        a("s_waitcnt vmcnt(%d)" % n)
        a("L_dw%d:" % nw[0]); nw[0] += 1
        vm.q = vm.q[len(vm.q) - n:] if n else []
    a("s_lshl_b32 s%d, s%d, 17" % (sT + 6, sH))
    srd(rWo, sWo, sT + 6, 131072)
    if "nowo" in abl: a("s_mov_b32 s%d, 0" % (rWo + 2))
    a("s_mov_b32 s%d, %s" % (sC, fbits(CSCALE)))
    a("s_mov_b32 s%d, 0" % sGate)
    a("s_getpc_b64 %s" % sp(sRare))
    a("L_pc:")
    a("s_add_u32 s%d, s%d, L_rare-L_pc" % (sRare, sRare))
    a("s_addc_u32 s%d, s%d, 0" % (sRare + 1, sRare + 1))
    a("v_and_b32 v%d, 7, v%d" % (vTmp, vI))
    a("v_lshrrev_b32 v%d, 1, v%d" % (vA[1] + 1, vTmp))
    a("v_and_b32 v%d, 1, v%d" % (vTmp, vTmp))
    a("v_lshlrev_b32 v%d, 4, v%d" % (vTmp, vTmp))
    a("v_mov_b32 v%d, 0xffff" % (vA[1] + 2))
    a("v_lshlrev_b32 v%d, v%d, v%d" % (vA[1] + 2, vTmp, vA[1] + 2))
    for r in range(4):
        a("v_cmp_eq_u32 vcc, %d, v%d" % (r, vA[1] + 1))
        a("v_cndmask_b32 v%d, 0, v%d, vcc" % (vMask + r, vA[1] + 2))
    a("s_add_u32 s%d, s%d, s%d" % (sCb, sWave, sRot)); a("s_and_b32 s%d, s%d, 3" % (sCb, sCb))
    a("s_lshl_b32 s%d, s%d, 8" % (sT, sCb))
    a("v_lshlrev_b32 v%d, 12, v%d" % (vWoff, vG))
    a("v_lshl_add_u32 v%d, v%d, 4, v%d" % (vWoff, vI, vWoff))
    a("v_add_u32 v%d, s%d, v%d" % (vWoff, sT, vWoff))
    a("v_lshlrev_b32 v%d, 5, v%d" % (vEPa, vI))
    a("v_lshl_add_u32 v%d, v%d, 4, v%d" % (vEPa, vG, vEPa))
    a("s_lshl_b32 s%d, s%d, 9" % (sT, sCb))
    a("v_add_u32 v%d, s%d, v%d" % (vYoff, sT, vEPa))
    a("s_lshl_b32 s%d, s%d, 9" % (sT + 11, sWave))
    a("v_add_u32 v%d, s%d, v%d" % (vEPa, sT + 11, vEPa))
    a("s_add_u32 s%d, s%d, %d" % (sPriv, sT + 11, L_PRIV))
    a("v_lshl_add_u32 v%d, v%d, 4, s%d" % (vPrd, vG, sPriv))
    a("s_lshl_b32 s%d, s%d, 11" % (sT, sRow))
    a("s_add_u32 s%d, s%d, s%d" % (sY, sWs, sT)); a("s_addc_u32 s%d, s%d, 0" % (sY + 1, sWs + 1))
    a("v_mov_b32 v%d, 1" % vOne)
    a("v_mov_b32 v%d, %s" % (vM, fbits(-3.0e38)))
    a("v_mul_f32 v%d, s%d, v%d" % (vMC, sC, vM))
    a("v_mov_b32 v%d, 0" % vL)
    for r in range(4): a("v_mov_b32 v%d, 0" % (vO + r))
    dual_wait("gate")
    a("s_mov_b32 s%d, 0x01000100" % sT); a("s_mov_b32 s%d, 0x03020302" % (sT + 1))
    for u in range(4):
        for t in range(4):
            a("v_perm_b32 v%d, v%d, v%d, s%d" % (vQ + 4 * u + t, vT + 2 * u + t // 2, vT + 2 * u + t // 2, sT + (t & 1)))
    gemv(16, lambda n: vWA + 4 * n, lambda n: vQ + n, vS, waits=lambda n: dual_wait("wq%d" % (n // 4)) if n % 4 == 0 else None)
    a("s_mov_b32 exec_hi, 0")
    a("ds_write_b128 v%d, %s offset:%d" % (vEPa, vr(vS), L_QP))
    a("s_mov_b32 exec_hi, -1")
    a("v_mov_b32 v%d, %d" % (vT + 4, L_CLAIM))
    a("v_mov_b32 v%d, 0" % (vT + 6)); a("v_mov_b32 v%d, 0" % (vT + 7))
    a("s_mov_b64 exec, 1")
    a("ds_write_b64 v%d, v[%d:%d]" % (vT + 4, vT + 6, vT + 7))
    a("s_mov_b64 exec, -1")
    if not early: old_prefetch()
    a("s_waitcnt lgkmcnt(0)")
    a("s_barrier")
    a("s_cmp_lt_u32 s%d, 4" % sWave)
    a("s_cbranch_scc1 L_pf2")
    kv_prefetch()
    a("L_pf2:")
    vm.q = []
    for d in range(D): vm.note("K%d" % d, 4); vm.note("V%d" % d, 4)
    a("v_lshlrev_b32 v%d, 3, v%d" % (vTmp, vLane))
    tq = vQ
    for w in range(8):
        a("ds_read_b64 v[%d:%d], v%d offset:%d" % (tq + 2 * w, tq + 2 * w + 1, vTmp, L_QP + 512 * w))
    a("v_lshlrev_b32 v%d, 2, v%d" % (vPriv, vLane))
    a("v_add_u32 v%d, s%d, v%d" % (vPriv, sPriv, vPriv))
    a("s_waitcnt lgkmcnt(0)")
    for step in (4, 2, 1):
        for w in range(step):
            for k in range(2):
                a("v_add_f32 v%d, v%d, v%d" % (tq + 2 * w + k, tq + 2 * w + k, tq + 2 * (w + step) + k))
    a("v_cvt_pk_bf16_f32 v%d, v%d, v%d" % (vTmp, tq, tq + 1))
    a("ds_write_b32 v%d, v%d" % (vPriv, vTmp))
    a("s_waitcnt lgkmcnt(0)")
    for t in range(4):
        a("ds_read_b128 %s, v%d offset:%d" % (vr(vQ + 4 * t), vPrd, 64 * t))
    a("s_lshl_b32 s%d, s%d, 12" % (sOff, sWave))
    a("s_add_u32 s%d, s%d, %d" % (sOff, sOff, 4096 * W * D))
    a("s_waitcnt lgkmcnt(0)")
    xs(1)
    if prio:
        a("s_cmp_lt_u32 s%d, 4" % sWave)
        a("s_cbranch_scc1 L_noprio")
        a("s_setprio 1")
        a("L_noprio:")

    ntr = [0]; tramps = []
    tail_on = [False]; tail_extra = [0]; ntw = [0]; pending = []
    def kvwait(tag):
        if not tail_extra[0]:
            vm.wait(tag); return
        n = vm.count(tag)
        a("s_waitcnt vmcnt(%d)" % (n + tail_extra[0]))
        a("s_cmp_lg_u32 s%d, 0" % sTask)
        a("s_cbranch_scc1 L_tw%d" % ntw[0])
        a("s_waitcnt vmcnt(%d)" % n)
        a("L_tw%d:" % ntw[0]); ntw[0] += 1
        vm.q = vm.q[len(vm.q) - n:] if n else []
    def slot(k):
        if not tail_on[0] or not pending: return
        a("s_cmp_eq_u32 s%d, 0" % sTask)
        a("s_cbranch_scc1 L_sl%d" % ntw[0])
        for _ in range(min(k, len(pending))):
            for l in pending.pop(0): a(l)
            tail_extra[0] += 1
        a("L_sl%d:" % ntw[0]); ntw[0] += 1
    def tile(d, prefetch):
        kvwait("K%d" % d)
        for t in range(4):
            a("%s %s, %s, %s, %s" % (MF, vr(vS), vr(Kb(d) + 4 * t), vr(vQ + 4 * t), "0" if t == 0 else vr(vS)))
        if prefetch: kload(d)
        elif tail_on[0] and pending:
            slot(4)
            a("s_nop 7")
        a("v_max3_f32 v%d, v%d, v%d, v%d" % (vT, vS, vS + 1, vS + 2))
        a("v_max_f32 v%d, v%d, v%d" % (vT, vT, vS + 3))
        a("v_cmp_gt_f32 vcc, v%d, v%d" % (vT, vM))
        k = ntr[0]; ntr[0] += 1
        a("s_cbranch_vccnz L_tr%d" % k)
        a("L_back%d:" % k)
        tramps.append(k)
        for t in range(4): a("v_fma_f32 v%d, v%d, s%d, -v%d" % (vS + t, vS + t, sC, vMC))
        for t in range(4): a("v_exp_f32 v%d, v%d" % (vS + t, vS + t))
        a("v_add_f32 v%d, v%d, v%d" % (vT, vS, vS + 1))
        a("v_add_f32 v%d, v%d, v%d" % (vT + 1, vS + 2, vS + 3))
        for t in range(4): a("v_cvt_pk_bf16_f32 v%d, v%d, v%d" % (vP + t, vS + t, vS + t))
        a("v_add_f32 v%d, v%d, v%d" % (vT, vT, vT + 1))
        a("v_add_f32 v%d, v%d, v%d" % (vL, vL, vT))
        def ands(t):
            for r in range(4): a("v_and_b32 v%d, v%d, v%d" % (vA[t & 1] + r, vP + t, vMask + r))
        ands(0); ands(1)
        kvwait("V%d" % d)
        for t in range(4):
            a("%s %s, %s, %s, %s" % (MF, vr(vO), vr(vA[t & 1]), vr(Vb(d) + 4 * t), vr(vO)))
            if t + 2 < 4: ands(t + 2)
        if prefetch:
            vload(d)
            a("s_add_u32 s%d, s%d, %d" % (sOff, sOff, 4096 * W))
        else: slot(4)
    nl = (NT - D) // D
    rem = (NT - D) - nl * D
    m = 1
    while 2 * m <= nl - 3: m *= 2
    if wom: m = wom
    a("s_mul_i32 s%d, s%d, 3" % (sWoT, sH)); a("s_and_b32 s%d, s%d, %d" % (sWoT, sWoT, m - 1)); a("s_add_u32 s%d, s%d, %d" % (sWoT, sWoT, wooff if wooff else (4 if D == 2 else 3)))
    a("s_cmp_lt_u32 s%d, 4" % sWave)
    a("s_cselect_b32 s%d, -1, s%d" % (sWoT, sWoT))
    a("s_cmp_eq_u32 s%d, 4" % sWave)
    a("s_cselect_b32 s%d, s%d, -1" % (sWoT, sWoT))
    a("s_cselect_b32 s%d, %d, -1" % (sTask, claimit))
    a("v_mov_b32 v%d, -1" % vChk)
    a("s_mov_b32 s%d, %d" % (sCnt, nl))
    a("L_loop:")
    for it in range(D): tile(it, True)
    a("s_cmp_lg_u32 s%d, s%d" % (sCnt, sWoT))
    a("s_cbranch_scc1 L_norel")
    a("v_mov_b32 v%d, %d" % (vT + 2, L_CLAIM))
    a("s_mov_b64 exec, 1")
    a("ds_write_b32 v%d, v%d offset:4" % (vT + 2, vOne))
    a("s_mov_b64 exec, -1")
    a("L_norel:")
    if ffn:
        a("s_cmp_lg_u32 s%d, s%d" % (sCnt, sTask))
        a("s_cbranch_scc1 L_noclaim")
        a("s_lshr_b32 s%d, s2, 3" % sT)
        a("s_and_b32 s%d, s%d, %d" % (sT, sT, nsh - 1))
        a("s_lshl_b32 s%d, s%d, %d" % (sT + 1, sT, {1: 0, 2: 7, 4: 6, 8: 5}[nsh]))
        a("v_mov_b32 v%d, s%d" % (vT + 2, sT + 1))
        a("s_mov_b64 exec, 1")
        a("global_atomic_add v%d, v%d, v%d, %s sc0" % (vChk, vT + 2, vOne, sp(sDbg)))
        a("s_mov_b64 exec, -1")
        a("L_noclaim:")
    a("s_sub_u32 s%d, s%d, 1" % (sCnt, sCnt))
    a("s_cmp_lg_u32 s%d, 0" % sCnt)
    a("s_cbranch_scc1 L_loop")
    for it in range(rem): tile(it % D, True)
    a("s_mov_b32 s%d, 0" % sTask)
    fW1 = vWA; fW2 = vWA + 32; vB1 = vT + 5
    vF1, vF2, vF3 = vT + 3, vT + 4, vT + 6
    sF = sOff
    ffn_loads = []
    for n in range(8):
        u, t = divmod(n, 4)
        pre = ["s_mov_b32 s%d, %d" % (sF, (16 * u + t) * 3584)]
        ffn_loads.append(pre + ["buffer_load_dwordx4 %s, v%d, %s, s%d offen%s" % (vr(fW1 + 4 * n), vF1, sq(rW1), sF, P(fpol))])
    for n in range(8):
        u, t = divmod(n, 4)
        pre = ["s_mov_b32 s%d, %d" % (sF, 16384 * u)] if t == 0 else []
        ffn_loads.append(pre + ["buffer_load_dwordx4 %s, v%d, %s, s%d offen offset:%d%s" % (vr(fW2 + 4 * n), vF2, sq(rW2), sF, 1024 * t, P(fpol))])
    ffn_loads.append(["global_load_ushort v%d, v%d, %s" % (vB1, vF3, sp(sB1))])
    if ffn:
        a("s_cmp_lt_u32 s%d, 4" % sWave)
        a("s_cbranch_scc1 L_notask")
        a("v_mov_b32 v%d, %d" % (vT + 1, L_CLAIM))
        a("s_cmp_lg_u32 s%d, 4" % sWave)
        a("s_cbranch_scc1 L_spin")
        a("s_waitcnt vmcnt(%d)" % (8 * D))
        a("v_readfirstlane_b32 s%d, v%d" % (sSig, vChk))
        a("s_cmp_lg_u32 s%d, -1" % sSig)
        a("s_cbranch_scc1 L_have")
        a("s_waitcnt vmcnt(0)")
        a("v_readfirstlane_b32 s%d, v%d" % (sSig, vChk))
        a("L_have:")
        a("s_lshr_b32 s%d, s2, 3" % sT)
        a("s_and_b32 s%d, s%d, %d" % (sT, sT, nsh - 1))
        a("s_mul_i32 s%d, s%d, %d" % (sT, sT, NFF // nsh))
        a("s_add_u32 s%d, s%d, s%d" % (sT, sT, sSig))
        a("s_cmp_lt_u32 s%d, %d" % (sSig, NFF // nsh))
        a("s_cselect_b32 s%d, s%d, %d" % (sSig, sT, NFF))
        a("s_add_u32 s%d, s%d, 1" % (sT, sSig))
        a("v_mov_b32 v%d, s%d" % (vT + 2, sT))
        a("s_mov_b64 exec, 1")
        a("ds_write_b32 v%d, v%d" % (vT + 1, vT + 2))
        a("s_mov_b64 exec, -1")
        a("s_branch L_known")
        a("L_spin:")
        a("ds_read_b32 v%d, v%d" % (vT + 2, vT + 1))
        a("s_waitcnt lgkmcnt(0)")
        a("v_readfirstlane_b32 s%d, v%d" % (sSig, vT + 2))
        a("s_cmp_eq_u32 s%d, 0" % sSig)
        a("s_cbranch_scc1 L_spin")
        a("s_sub_u32 s%d, s%d, 1" % (sSig, sSig))
        a("L_known:")
        a("s_cmp_ge_u32 s%d, %d" % (sSig, 0 if "notask" in abl else NFF))
        a("s_cbranch_scc1 L_notask")
        a("s_mov_b32 s%d, 1" % sTask)
        sWy = sT + 9
        a("s_sub_u32 s%d, s%d, 4" % (sWy, sWave))
        a("s_lshl_b32 s%d, s%d, 6" % (sT, sSig))
        srd(rW1, sW1, sT, 1835008, sT)
        a("s_lshl_b32 s%d, s%d, 15" % (sT + 1, sSig))
        srd(rW2, sW2, sT + 1, 32768)
        a("s_add_u32 s%d, s%d, s%d" % (sB1, sB1, sT)); a("s_addc_u32 s%d, s%d, 0" % (sB1 + 1, sB1 + 1))
        a("s_lshl_b32 s%d, s%d, 7" % (sT + 2, sWy))
        a("v_lshrrev_b32 v%d, 2, v%d" % (vT + 1, vI))
        a("v_lshlrev_b32 v%d, 5, v%d" % (vT + 1, vT + 1))
        a("v_lshl_add_u32 v%d, v%d, 2, v%d" % (vT + 1, vG, vT + 1))
        a("v_add_u32 v%d, s%d, v%d" % (vT + 1, sT + 2, vT + 1))
        a("s_movk_i32 s%d, 3584" % (sT + 3))
        a("v_mul_lo_u32 v%d, v%d, s%d" % (vT + 1, vT + 1, sT + 3))
        a("v_and_b32 v%d, 3, v%d" % (vT + 2, vI))
        a("v_lshl_add_u32 v%d, v%d, 4, v%d" % (vT + 1, vT + 2, vT + 1))
        a("v_mov_b32 v%d, v%d" % (vF1, vT + 1))
        a("v_lshlrev_b32 v%d, 12, v%d" % (vF2, vG))
        a("v_lshl_add_u32 v%d, v%d, 4, v%d" % (vF2, vI, vF2))
        a("s_lshl_b32 s%d, s%d, 8" % (sT + 2, sWy))
        a("v_add_u32 v%d, s%d, v%d" % (vF2, sT + 2, vF2))
        a("v_and_b32 v%d, 31, v%d" % (vF3, vLane))
        a("v_lshlrev_b32 v%d, 1, v%d" % (vF3, vF3))
        a("L_notask:")
        if stamps:
            a("s_cmp_lt_u32 s%d, 4" % sWave)
            a("s_cbranch_scc1 L_nosig")
            a("s_mov_b32 s%d, s%d" % (sXS + 4, sSig)); a("s_mov_b32 s%d, 0" % (sXS + 5))
            a("L_nosig:")
    tail_on[0] = ffn
    pending[:] = list(ffn_loads) if ffn else []
    for it in range(D): tile((rem + it) % D, False)
    if ffn and pending: slot(len(pending))
    tail_on[0] = False
    xs(3)

    for k in range(4): a("v_readlane_b32 s%d, v%d, %d" % (sT + k, vL, 16 * k))
    a("s_lshl_b32 s%d, s%d, 3" % (sT + 4, sWave))
    a("v_mov_b32 v%d, s%d" % (vT + 1, sT))
    a("v_mov_b32 v%d, s%d" % (vT + 2, sT + 4))
    for k in range(1, 4): a("v_add_f32 v%d, s%d, v%d" % (vT + 1, sT + k, vT + 1))
    a("v_mov_b32 v%d, v%d" % (vT, vM))
    a("s_mov_b32 exec_hi, 0")
    a("ds_write_b128 v%d, %s offset:%d" % (vEPa, vr(vO), L_EP))
    a("s_mov_b32 exec_lo, 1")
    a("ds_write_b64 v%d, v[%d:%d] offset:%d" % (vT + 2, vT, vT + 1, L_ML))
    a("s_mov_b64 exec, -1")
    a("s_cmp_lt_u32 s%d, 4" % sWave)
    a("s_cbranch_scc1 L_old")
    a("s_waitcnt lgkmcnt(0)")
    a("s_barrier")
    if prio: a("s_setprio 0")
    if not ffn:
        a("s_branch L_fin")
    else:
        a("s_cmp_eq_u32 s%d, 0" % sTask)
        a("s_cbranch_scc1 L_fin")
        fX = vKV; fPl = vQ; fPh = vQ + 8
        sWy = sT + 9
        a("s_sub_u32 s%d, s%d, 4" % (sWy, sWave))
        a("s_lshl_b32 s%d, s%d, 7" % (sT + 2, sWy))
        a("v_lshrrev_b32 v%d, 3, v%d" % (vT, vI))
        a("v_lshlrev_b32 v%d, 5, v%d" % (vT, vT))
        a("v_lshl_add_u32 v%d, v%d, 2, v%d" % (vT, vG, vT))
        a("v_add_u32 v%d, s%d, v%d" % (vT, sT + 2, vT))
        a("v_lshlrev_b32 v%d, 1, v%d" % (vT, vT))
        for b in range(4):
            for hh_ in range(2):
                for u in range(2):
                    r0 = fX + 8 * b + 4 * hh_ + 2 * u
                    a("ds_read_b64 v[%d:%d], v%d offset:%d" % (r0, r0 + 1, vT, L_XS + 1024 * b + 128 * hh_ + 32 * u))
        a("v_lshrrev_b32 v%d, 2, v%d" % (vT + 4, vI))
        a("v_lshlrev_b32 v%d, 7, v%d" % (vT + 4, vT + 4))
        a("v_and_b32 v%d, 3, v%d" % (vT + 6, vI))
        a("v_lshl_add_u32 v%d, v%d, 5, v%d" % (vT + 4, vT + 6, vT + 4))
        a("v_and_b32 v%d, 1, v%d" % (vT + 6, vG))
        a("v_lshl_add_u32 v%d, v%d, 4, v%d" % (vT + 4, vT + 6, vT + 4))
        a("s_lshl_b32 s%d, s%d, 11" % (sT + 2, sWy))
        a("v_add_u32 v%d, s%d, v%d" % (vT + 4, sT + 2, vT + 4))
        a("s_mov_b32 s%d, 0x01000100" % (sT + 6)); a("s_mov_b32 s%d, 0x03020302" % (sT + 7))
        a("s_waitcnt vmcnt(9) lgkmcnt(0)")
        for b in range(4):
            for hh_ in range(2):
                for u in range(2):
                    for t in range(4):
                        src = fX + 8 * b + 4 * hh_ + 2 * u + t // 2
                        a("v_perm_b32 v%d, v%d, v%d, s%d" % (vQ + 8 * hh_ + 4 * u + t, src, src, sT + 6 + (t & 1)))
            gemv(8, lambda n: fW1 + 4 * n, lambda n: fPl + n, vS)
            gemv(8, lambda n: fW1 + 4 * n, lambda n: fPh + n, vP)
            a("s_mov_b32 exec_lo, 0x000f000f"); a("s_mov_b32 exec_hi, 0x00f000f0")
            a("ds_write_b128 v%d, %s offset:%d" % (vT + 4, vr(vS), L_HP + 512 * b))
            a("s_mov_b32 exec_lo, 0x0f000f00"); a("s_mov_b32 exec_hi, 0xf000f000")
            a("ds_write_b128 v%d, %s offset:%d" % (vT + 4, vr(vP), L_HP + 512 * b))
            a("s_mov_b64 exec, -1")
        a("s_waitcnt lgkmcnt(0)")
        a("s_barrier")
        a("v_and_b32 v%d, 31, v%d" % (vT + 4, vLane))
        a("v_lshlrev_b32 v%d, 2, v%d" % (vT + 4, vT + 4))
        a("v_lshrrev_b32 v%d, 5, v%d" % (vT + 6, vLane))
        a("v_lshl_add_u32 v%d, v%d, 8, v%d" % (vT + 6, vT + 6, vT + 4))
        a("s_lshl_b32 s%d, s%d, 9" % (sT + 2, sWy))
        a("v_add_u32 v%d, s%d, v%d" % (vT + 6, sT + 2, vT + 6))
        a("v_add_u32 v%d, %d, v%d" % (vT + 6, L_HP, vT + 6))
        for w in range(4):
            a("ds_read2_b32 v[%d:%d], v%d offset0:%d offset1:%d" % (vQ + 2 * w, vQ + 2 * w + 1, vT + 6, 0, 32) if w == 0 else
              "v_add_u32 v%d, 2048, v%d\nds_read2_b32 v[%d:%d], v%d offset0:0 offset1:32" % (vT + 6, vT + 6, vQ + 2 * w, vQ + 2 * w + 1, vT + 6))
        a("s_waitcnt vmcnt(0) lgkmcnt(0)")
        for w in range(4): a("v_add_f32 v%d, v%d, v%d" % (vQ + 2 * w, vQ + 2 * w, vQ + 2 * w + 1))
        a("v_add_f32 v%d, v%d, v%d" % (vQ, vQ, vQ + 2)); a("v_add_f32 v%d, v%d, v%d" % (vQ + 4, vQ + 4, vQ + 6))
        r = vQ
        a("v_add_f32 v%d, v%d, v%d" % (r, vQ, vQ + 4))
        a("v_mov_b32 v%d, v%d" % (r + 1, r))
        a("v_permlane32_swap_b32 v%d, v%d" % (r, r + 1))
        a("v_add_f32 v%d, v%d, v%d" % (r, r, r + 1))
        a("v_cvt_pk_bf16_f32 v%d, v%d, v%d" % (r, r, r))
        a("v_and_b32 v%d, 0xffff0000, v%d" % (r, r))
        a("v_lshlrev_b32 v%d, 16, v%d" % (vB1, vB1))
        a("v_add_f32 v%d, v%d, v%d" % (r, r, vB1))
        a("v_cvt_pk_bf16_f32 v%d, v%d, v%d" % (r, r, r))
        a("v_and_b32 v%d, 0xffff0000, v%d" % (r, r))
        a("v_max_f32 v%d, 0, v%d" % (r, r))
        a("v_mul_f32 v%d, v%d, v%d" % (r, r, r))
        a("v_cvt_pk_bf16_f32 v%d, v%d, v%d" % (r, r, r))
        a("s_lshl_b32 s%d, s%d, 7" % (sT + 2, sWy))
        a("v_add_u32 v%d, s%d, v%d" % (vT + 4, sT + 2, vT + 4))
        a("s_mov_b32 exec_hi, 0")
        a("ds_write_b32 v%d, v%d offset:%d" % (vT + 4, r, L_HH))
        a("s_mov_b32 exec_hi, -1")
        a("s_waitcnt lgkmcnt(0)")
        a("s_barrier")
        a("v_lshlrev_b32 v%d, 4, v%d" % (vT + 4, vG))
        for b in range(4):
            for u in range(2): a("ds_read_b128 %s, v%d offset:%d" % (vr(fX + 8 * b + 4 * u), vT + 4, L_HH + 128 * b + 64 * u))
        a("v_lshlrev_b32 v%d, 5, v%d" % (vT + 6, vI))
        a("v_lshl_add_u32 v%d, v%d, 4, v%d" % (vT + 6, vG, vT + 6))
        a("s_lshl_b32 s%d, s%d, 9" % (sT + 2, sWy))
        a("v_add_u32 v%d, s%d, v%d" % (vT + 6, sT + 2, vT + 6))
        a("s_lshl_b32 s%d, s%d, 11" % (sT + 2, sSig)); a("s_add_u32 s%d, s%d, 0x%x" % (sT + 2, sT + 2, WS_YF))
        a("s_add_u32 s%d, s%d, s%d" % (sY, sWs, sT + 2)); a("s_addc_u32 s%d, s%d, 0" % (sY + 1, sWs + 1))
        a("s_waitcnt lgkmcnt(0)")
        for b in range(4):
            acc = vS if b & 1 == 0 else vP
            gemv(8, lambda n: fW2 + 4 * n, lambda n: fX + 8 * b + n, acc)
            a("s_mov_b32 exec_hi, 0")
            a("global_store_dwordx4 v%d, %s, %s%s" % (vT + 6, vr(acc), sp(sY), P(stpol)))
            a("s_mov_b32 exec_hi, -1")
            if b < 3:
                a("s_add_u32 s%d, s%d, %d" % (sY, sY, NFF * 2048)); a("s_addc_u32 s%d, s%d, 0" % (sY + 1, sY + 1))
        a("s_branch L_fin")

    a("L_old:")
    a("s_and_b32 s%d, s%d, 63" % (sT, sRow))
    a("s_or_b32 s%d, s%d, s%d" % (sT, sT, sWave))
    a("s_cmp_lg_u32 s%d, 0" % sT)
    a("s_cbranch_scc1 L_nogate")
    a("v_lshlrev_b32 v%d, 4, v%d" % (vT, vLane))
    a("global_load_dwordx4 %s, v%d, %s" % (vr(vS), vT, sp(sX)))
    a("global_load_dwordx4 %s, v%d, %s" % (vr(vP), vT, sp(sGw)))
    a("s_waitcnt vmcnt(0)")
    a("v_mov_b32 v%d, 0" % vTmp)
    for r in range(4): a("v_dot2c_f32_bf16 v%d, v%d, v%d" % (vTmp, vS + r, vP + r))
    for m_ in ("quad_perm:[1,0,3,2]", "quad_perm:[2,3,0,1]", "row_half_mirror", "row_mirror"):
        a("v_add_f32_dpp v%d, v%d, v%d %s row_mask:0xf bank_mask:0xf" % (vTmp, vTmp, vTmp, m_))
    for k in range(4): a("v_readlane_b32 s%d, v%d, %d" % (sT + k, vTmp, 16 * k))
    a("v_mov_b32 v%d, s%d" % (vTmp, sT))
    for k in range(1, 4): a("v_add_f32 v%d, s%d, v%d" % (vTmp, sT + k, vTmp))
    a("v_mul_f32 v%d, %s, v%d" % (vTmp, fbits(-LOG2E), vTmp))
    a("v_exp_f32 v%d, v%d" % (vTmp, vTmp))
    a("v_add_f32 v%d, 1.0, v%d" % (vTmp, vTmp))
    a("v_rcp_f32 v%d, v%d" % (vTmp, vTmp))
    a("v_readfirstlane_b32 s%d, v%d" % (sGate, vTmp))
    a("L_nogate:")
    if warm:
        a("s_cmp_lg_u32 s%d, 0" % sWave)
        a("s_cbranch_scc1 L_nowarm")
        a("v_mov_b32 v%d, 0" % vT)
        a("global_load_dword v%d, v%d, %s" % (vKV + 0, vT, sp(sDbg)))
        a("global_load_dword v%d, v%d, %s" % (vKV + 1, vT, sp(sY)))
        a("v_mov_b32 v%d, 0x%x" % (vT + 1, WS_ML))
        a("global_load_dword v%d, v%d, %s" % (vKV + 2, vT + 1, sp(sWs)))
        a("v_mov_b32 v%d, 0x%x" % (vT + 2, WS_YF))
        a("global_load_dword v%d, v%d, %s" % (vKV + 3, vT + 2, sp(sWs)))
        a("global_load_dword v%d, v%d, %s" % (vKV + 4, vT, sp(sW1)))
        a("global_load_dword v%d, v%d, %s" % (vKV + 5, vT, sp(sW2)))
        a("global_load_dword v%d, v%d, %s" % (vKV + 6, vT, sp(sB1)))
        a("global_load_dword v%d, v%d, %s" % (vKV + 7, vT, sp(sWo)))
        a("s_waitcnt vmcnt(0)")
        a("L_nowarm:")
    if ffn:
        a("s_lshl_b32 s%d, s%d, 10" % (sT, sWave))
        a("v_lshl_add_u32 v%d, v%d, 4, s%d" % (vT, vLane, sT))
        a("global_load_dwordx4 %s, v%d, %s" % (vr(vS), vT, sp(sX0)))
        a("s_waitcnt vmcnt(0)")
        a("ds_write_b128 v%d, %s offset:%d" % (vT, vr(vS), L_XS))
        a("s_waitcnt lgkmcnt(0)")
    a("v_mov_b32 v%d, %d" % (vT + 1, L_CLAIM))
    a("L_worel:")
    a("ds_read_b32 v%d, v%d offset:4" % (vT + 2, vT + 1))
    a("s_waitcnt lgkmcnt(0)")
    a("v_readfirstlane_b32 s%d, v%d" % (sT, vT + 2))
    a("s_cmp_eq_u32 s%d, 0" % sT)
    a("s_cbranch_scc1 L_worel")
    a("s_mov_b32 s%d, 0" % (sT + 8))
    for n in range(32):
        u, t = divmod(n, 4)
        a("buffer_load_dwordx4 %s, v%d, %s, s%d offen offset:%d%s" % (vr(vWO + 4 * n), vWoff, sq(rWo), sT + 8, 1024 * t, P(wopol)))
        if t == 3 and n < 31: a("s_add_u32 s%d, s%d, 16384" % (sT + 8, sT + 8))
    if pfk2:
        a("s_getpc_b64 %s" % sp(sT + 2))
        a("L_pc2:")
        a("s_add_u32 s%d, s%d, %s-L_pc2" % (sT + 2, sT + 2, K2))
        a("s_addc_u32 s%d, s%d, 0" % (sT + 3, sT + 3))
        a("v_lshlrev_b32 v%d, 6, v%d" % (vT + 2, vLane))
        a("s_mov_b32 s%d, L2_done-%s" % (sT + 4, K2))
        a("v_min_u32 v%d, s%d, v%d" % (vT + 2, sT + 4, vT + 2))
        a("global_load_dword v%d, v%d, %s" % (vT + 3, vT + 2, sp(sT + 2)))
    if dry:
        a("s_mov_b32 s%d, 1" % sTask)
        a("s_branch L_epi")
        a("L_epi_wait:")
        a("s_mov_b32 s%d, 0" % sTask)
    a("s_waitcnt vmcnt(0) lgkmcnt(0)")
    if prio: a("s_setprio 2")
    a("s_barrier")
    xs(2)
    a("L_epi:")
    a("v_mov_b32 v%d, 0" % vT)
    a("v_lshlrev_b32 v%d, 2, v%d" % (vT + 1, vLane))
    tm = vQ; to = vPP
    for k in range(4): a("ds_read_b128 %s, v%d offset:%d" % (vr(tm + 4 * k), vT, L_ML + 16 * k))
    for w in range(8):
        a("ds_read2st64_b32 v[%d:%d], v%d offset0:%d offset1:%d" % (to + 2 * w, to + 2 * w + 1, vT + 1, L_EP // 256 + 2 * w, L_EP // 256 + 2 * w + 1))
    a("s_waitcnt lgkmcnt(8)")
    a("v_max3_f32 v%d, v%d, v%d, v%d" % (vM, tm, tm + 2, tm + 4))
    a("v_max3_f32 v%d, v%d, v%d, v%d" % (vM, vM, tm + 6, tm + 8))
    a("v_max3_f32 v%d, v%d, v%d, v%d" % (vM, vM, tm + 10, tm + 12))
    a("v_max_f32 v%d, v%d, v%d" % (vM, vM, tm + 14))
    a("v_mul_f32 v%d, s%d, v%d" % (vMC, sC, vM))
    for w in range(8): a("v_fma_f32 v%d, v%d, s%d, -v%d" % (tm + 2 * w, tm + 2 * w, sC, vMC))
    for w in range(8): a("v_exp_f32 v%d, v%d" % (tm + 2 * w, tm + 2 * w))
    a("s_waitcnt lgkmcnt(0)")
    for k in range(2): a("v_mul_f32 v%d, v%d, v%d" % (vT + 2 + k, tm, to + k))
    for w in range(1, 8):
        for k in range(2): a("v_fmac_f32 v%d, v%d, v%d" % (vT + 2 + k, tm + 2 * w, to + 2 * w + k))
    for k in range(2): a("v_cvt_pk_bf16_f32 v%d, v%d, v%d" % (vT + 2 + k, vT + 2 + k, vT + 2 + k))
    a("ds_write2st64_b32 v%d, v%d, v%d offset0:0 offset1:1" % (vPriv, vT + 2, vT + 3))
    a("v_mul_f32 v%d, v%d, v%d" % (vL, tm, tm + 1))
    for w in range(1, 8): a("v_fmac_f32 v%d, v%d, v%d" % (vL, tm + 2 * w, tm + 2 * w + 1))
    a("s_waitcnt lgkmcnt(0)")
    for u in range(8): a("ds_read_b128 %s, v%d offset:%d" % (vr(vPP + 4 * u), vPrd, 64 * u))
    a("s_waitcnt lgkmcnt(7)")
    gemv(32, lambda n: vWO + 4 * n, lambda n: vPP + n, vS,
         waits=lambda n: a("s_waitcnt lgkmcnt(%d)" % max(0, 7 - (n + 1) // 4)) if (n + 1) % 4 == 0 and n < 31 else None)
    if dry:
        a("s_cmp_lg_u32 s%d, 0" % sTask)
        a("s_cbranch_scc1 L_epi_wait")
    a("s_mov_b32 exec_hi, 0")
    xs(4)
    a("global_store_dwordx4 v%d, %s, %s%s" % (vYoff, vr(vS), sp(sY), P(stpol)))
    a("s_mov_b64 exec, -1")
    a("s_cmp_lg_u32 s%d, 0" % sWave)
    a("s_cbranch_scc1 L_w0done")
    a("v_mov_b32 v%d, v%d" % (vT + 2, vMC))
    a("v_mov_b32 v%d, v%d" % (vT + 3, vL))
    a("v_mov_b32 v%d, s%d" % (vT + 4, sGate))
    a("v_sub_f32 v%d, 1.0, v%d" % (vT + 5, vT + 4))
    a("s_lshl_b32 s%d, s%d, 3" % (sT + 2, sRow)); a("s_add_u32 s%d, s%d, 0x%x" % (sT + 2, sT + 2, WS_ML))
    a("v_mov_b32 v%d, s%d" % (vT + 6, sT + 2))
    a("s_mov_b64 exec, 1")
    a("global_store_dwordx2 v%d, v[%d:%d], %s%s" % (vT + 6, vT + 2, vT + 3, sp(sWs), P(stpol)))
    a("s_and_b32 s%d, s%d, 63" % (sT + 3, sRow))
    a("s_cmp_lg_u32 s%d, 0" % (sT + 3))
    a("s_cbranch_scc1 L_nog")
    a("s_lshl_b32 s%d, s%d, 3" % (sT + 2, sB)); a("s_add_u32 s%d, s%d, 0x%x" % (sT + 2, sT + 2, WS_G))
    a("v_mov_b32 v%d, s%d" % (vT + 7, sT + 2))
    a("global_store_dwordx2 v%d, v[%d:%d], %s%s" % (vT + 7, vT + 4, vT + 5, sp(sWs), P(stpol)))
    a("L_nog:")
    a("s_mov_b64 exec, -1")
    a("L_w0done:")
    if stamps:
        a("s_cmp_lg_u32 s%d, 0" % sWave)
        a("s_cbranch_scc1 L_nost")
        a("s_mov_b64 exec, 1")
        a("s_memrealtime %s" % sp(sStamp + 2))
        a("s_waitcnt lgkmcnt(0)")
        for k in range(4): a("v_mov_b32 v%d, s%d" % (vQ + k, sStamp + k))
        a("s_lshl_b32 s%d, s2, 4" % sT); a("s_add_u32 s%d, s%d, 0x%x" % (sT, sT, WS_STAMP))
        a("v_mov_b32 v%d, s%d" % (vT + 2, sT))
        a("global_store_dwordx4 v%d, %s, %s" % (vT + 2, vr(vQ), sp(sWs)))
        a("s_mov_b64 exec, -1")
        a("L_nost:")
    a("L_fin:")
    if stamps:
        a("s_mov_b64 exec, 1")
        xs(5)
        a("s_waitcnt lgkmcnt(0)")
        for k in range(NXS):
            a("s_lshl_b32 s%d, s2, 3" % sT); a("s_add_u32 s%d, s%d, s%d" % (sT, sT, sWave)); a("s_lshl_b32 s%d, s%d, 3" % (sT, sT))
            a("s_add_u32 s%d, s%d, 0x%x" % (sT, sT, WS_STAMP + 0x40000 + 0x4000 * k))
            a("v_mov_b32 v%d, s%d" % (vT + 2, sT))
            a("v_mov_b32 v%d, s%d" % (vQ + 4, sXS + 2 * k)); a("v_mov_b32 v%d, s%d" % (vQ + 5, sXS + 2 * k + 1))
            a("global_store_dwordx2 v%d, v[%d:%d], %s" % (vT + 2, vQ + 4, vQ + 5, sp(sWs)))
            a("s_nop 1")
    a("L_done:")
    a("s_endpgm")
    for k in tramps:
        a("L_tr%d:" % k)
        a("s_swappc_b64 %s, %s" % (sp(sRet), sp(sRare)))
        a("s_branch L_back%d" % k)
    a("L_rare:")
    for k in range(4): a("v_readlane_b32 s%d, v%d, %d" % (sT + k, vT, 16 * k))
    a("v_mov_b32 v%d, s%d" % (vT + 1, sT))
    for k in range(1, 4): a("v_max_f32 v%d, s%d, v%d" % (vT + 1, sT + k, vT + 1))
    a("v_max_f32 v%d, v%d, v%d" % (vT + 1, vT + 1, vM))
    a("v_sub_f32 v%d, v%d, v%d" % (vT + 2, vM, vT + 1))
    a("v_mul_f32 v%d, s%d, v%d" % (vT + 2, sC, vT + 2))
    a("v_exp_f32 v%d, v%d" % (vT + 2, vT + 2))
    a("v_mov_b32 v%d, v%d" % (vM, vT + 1))
    a("v_mul_f32 v%d, s%d, v%d" % (vMC, sC, vT + 1))
    for r in range(4): a("v_mul_f32 v%d, v%d, v%d" % (vO + r, vO + r, vT + 2))
    a("v_mul_f32 v%d, v%d, v%d" % (vL, vL, vT + 2))
    a("s_nop 1")
    a("s_setpc_b64 %s" % sp(sRet))
    body1 = a.finish()

    def kernel2_wide():
        c = Asm()
        c("%s:" % K2)
        c("s_cmp_ge_u32 s2, 128")
        c("s_cbranch_scc1 L2_done")
        c("s_load_dwordx2 s[32:33], s[0:1], 72")
        c("s_load_dwordx2 s[4:5], s[0:1], 88")
        c("s_load_dwordx2 s[6:7], s[0:1], 104")
        if stamps: c("s_memrealtime s[36:37]")
        c("s_lshr_b32 s8, s2, 5")
        c("s_and_b32 s9, s2, 31")
        c("v_lshrrev_b32 v1, 2, v0")
        c("v_and_b32 v2, 3, v0")
        c("v_lshlrev_b32 v3, 13, v1")
        c("v_lshl_add_u32 v3, v2, 4, v3")
        c("v_lshlrev_b32 v4, 11, v1")
        c("v_lshl_add_u32 v4, v2, 4, v4")
        c("v_lshlrev_b32 v5, 5, v1")
        c("v_lshlrev_b32 v6, 3, v2")
        c("s_lshl_b32 s11, s9, 6")
        c("s_lshl_b32 s10, s8, 17"); c("s_add_u32 s10, s10, s11")
        c("s_mul_i32 s12, s8, %d" % (NFF * 2048)); c("s_add_u32 s12, s12, s11"); c("s_add_u32 s12, s12, 0x%x" % WS_YF)
        c("s_lshl_b32 s13, s8, 9"); c("s_add_u32 s13, s13, 0x%x" % WS_ML)
        c("s_movk_i32 s24, 4096")
        for k in range(1, 4): c("s_mov_b32 s%d, %d" % (41 + k, 32768 * k))
        c("s_lshl_b32 s31, s8, 3"); c("s_add_u32 s31, s31, 0x%x" % WS_G)
        c("v_mov_b32 v7, s31")
        c("s_lshl_b32 s35, s9, 5")
        c("s_waitcnt lgkmcnt(0)")
        c("s_add_u32 s14, s6, s13"); c("s_addc_u32 s15, s7, 0")
        for k in range(2): c("global_load_dwordx4 %s, v5, s[14:15] offset:%d" % (vr(8 + 4 * k), 16 * k))
        c("s_add_u32 s16, s6, s10"); c("s_addc_u32 s17, s7, 0"); c("s_mov_b32 s18, 0x20000"); c("s_mov_b32 s19, 0x20000")
        for j in range(4):
            c("buffer_load_dwordx4 %s, v3, s[16:19], %s offen offset:%d" % (vr(24 + 4 * j), "0" if j < 2 else "s24", 2048 * (j & 1)))
        c("s_add_u32 s20, s6, s12"); c("s_addc_u32 s21, s7, 0"); c("s_sub_u32 s22, %d, s11" % (NFF * 2048)); c("s_mov_b32 s23, 0x20000")
        for k in range(4):
            c("buffer_load_dwordx4 %s, v4, s[20:23], %s offen" % (vr(40 + 4 * k), "0" if k == 0 else "s%d" % (41 + k)))
        c("global_load_dwordx2 v[56:57], v7, s[6:7]")
        c("s_add_u32 s32, s32, s35"); c("s_addc_u32 s33, s33, 0")
        c("global_load_dwordx2 v[58:59], v6, s[32:33]")
        c("s_lshl_b32 s34, s8, 10"); c("s_add_u32 s34, s34, s35")
        c("s_add_u32 s4, s4, s34"); c("s_addc_u32 s5, s5, 0")
        c("v_cmp_eq_u32 vcc, 0, v1")
        c("s_waitcnt vmcnt(10)")
        for p in range(2):
            r = 8 + 4 * p
            c("v_max_f32 v%d, v%d, v%d" % (60 + p, r, r + 2))
        for p in range(2):
            r = 8 + 4 * p
            c("v_sub_f32 v%d, v%d, v%d" % (r, r, 60 + p)); c("v_sub_f32 v%d, v%d, v%d" % (r + 2, r + 2, 60 + p))
        for p in range(2):
            r = 8 + 4 * p
            c("v_exp_f32 v%d, v%d" % (r, r)); c("v_exp_f32 v%d, v%d" % (r + 2, r + 2))
        for p in range(2):
            r = 8 + 4 * p
            c("v_mul_f32 v%d, v%d, v%d" % (r + 1, r + 1, r))
        for p in range(2):
            r = 8 + 4 * p
            c("v_fmac_f32 v%d, v%d, v%d" % (r + 1, r + 3, r + 2))
        for p in range(2): c("v_rcp_f32 v%d, v%d" % (9 + 4 * p, 9 + 4 * p))
        c("s_nop 0")
        for p in range(2):
            r = 8 + 4 * p
            c("v_mul_f32 v%d, v%d, v%d" % (r, r, r + 1)); c("v_mul_f32 v%d, v%d, v%d" % (r + 2, r + 2, r + 1))
        c("s_waitcnt vmcnt(6)")
        for r in range(4): c("v_mul_f32 v%d, v8, v%d" % (64 + r, 24 + r))
        for j in range(1, 4):
            sc = 8 + 4 * (j // 2) + 2 * (j & 1)
            for r in range(4): c("v_fmac_f32 v%d, v%d, v%d" % (64 + r, sc, 24 + 4 * j + r))
        c("s_waitcnt vmcnt(0)")
        for r in range(4): c("v_add_f32 v%d, v%d, v%d" % (40 + r, 40 + r, 44 + r))
        for r in range(4): c("v_add_f32 v%d, v%d, v%d" % (48 + r, 48 + r, 52 + r))
        c("v_lshlrev_b32 v60, 16, v58"); c("v_and_b32 v61, 0xffff0000, v58"); c("v_lshlrev_b32 v62, 16, v59"); c("v_and_b32 v63, 0xffff0000, v59")
        for r in range(4): c("v_add_f32 v%d, v%d, v%d" % (40 + r, 40 + r, 48 + r))
        for r in range(4): c("v_cndmask_b32 v%d, 0, v%d, vcc" % (60 + r, 60 + r))
        for r in range(4): c("v_add_f32 v%d, v%d, v%d" % (40 + r, 40 + r, 60 + r))
        for r in range(4): c("v_mul_f32 v%d, v56, v%d" % (64 + r, 64 + r))
        for r in range(4): c("v_fmac_f32 v%d, v57, v%d" % (64 + r, 40 + r))
        for m_ in ("row_ror:4", "row_ror:8"):
            for r in range(4): c("v_add_f32_dpp v%d, v%d, v%d %s row_mask:0xf bank_mask:0xf" % (64 + r, 64 + r, 64 + r, m_))
        for sw in ("v_permlane16_swap_b32", "v_permlane32_swap_b32"):
            for r in range(4): c("v_mov_b32 v%d, v%d" % (60 + r, 64 + r))
            for r in range(4): c("%s v%d, v%d" % (sw, 64 + r, 60 + r))
            for r in range(4): c("v_add_f32 v%d, v%d, v%d" % (64 + r, 64 + r, 60 + r))
        c("v_cvt_pk_bf16_f32 v64, v64, v65")
        c("v_cvt_pk_bf16_f32 v65, v66, v67")
        c("s_mov_b64 exec, 0xf")
        c("global_store_dwordx2 v6, v[64:65], s[4:5]")
        if stamps:
            c("s_waitcnt vmcnt(0)")
            c("s_memrealtime s[38:39]")
            c("s_waitcnt lgkmcnt(0)")
            c("s_mov_b64 exec, 0x3")
            c("v_and_b32 v1, 1, v0")
            c("s_lshl_b32 s34, s2, 1")
            c("v_add_u32 v1, s34, v1")
            c("v_lshlrev_b32 v1, 3, v1")
            for k in range(2):
                c("v_add_u32 v2, 0x%x, v1" % (WS_STAMP + 0x10000 + 0x1000 * (5 + k)))
                c("v_mov_b32 v8, s%d" % (36 + 2 * k)); c("v_mov_b32 v9, s%d" % (37 + 2 * k))
                c("global_store_dwordx2 v2, v[8:9], s[6:7]")
                c("s_nop 1")
        c("L2_done:")
        c("s_endpgm")
        return c.finish()
    c = Asm()
    c("%s:" % K2)
    c("s_cmp_ge_u32 s2, 64")
    c("s_cbranch_scc1 L2_done")
    c("s_load_dwordx2 s[4:5], s[0:1], 88")
    c("s_load_dwordx2 s[6:7], s[0:1], 104")
    c("s_load_dwordx2 s[32:33], s[0:1], 72")
    if stamps: c("s_memrealtime s[36:37]")
    c("s_lshr_b32 s8, s2, 4")
    c("s_and_b32 s9, s2, 15")
    c("v_lshrrev_b32 v1, 3, v0")
    c("v_and_b32 v2, 7, v0")
    c("v_lshlrev_b32 v3, 14, v1")
    c("v_lshl_add_u32 v3, v2, 4, v3")
    c("v_lshlrev_b32 v4, 11, v1")
    c("v_lshl_add_u32 v4, v2, 4, v4")
    c("v_lshlrev_b32 v5, 6, v1")
    c("v_lshlrev_b32 v6, 3, v2")
    c("s_lshl_b32 s10, s8, 17"); c("s_lshl_b32 s11, s9, 7"); c("s_add_u32 s10, s10, s11")
    c("s_mul_i32 s12, s8, %d" % (NFF * 2048)); c("s_add_u32 s12, s12, s11"); c("s_add_u32 s12, s12, 0x%x" % WS_YF)
    c("s_lshl_b32 s13, s8, 9"); c("s_add_u32 s13, s13, 0x%x" % WS_ML)
    c("s_movk_i32 s24, 4096"); c("s_movk_i32 s25, 8192"); c("s_movk_i32 s26, 12288")
    for k in range(1, 7): c("s_mov_b32 s%d, %d" % (41 + k, 16384 * k))
    c("s_lshl_b32 s31, s8, 3"); c("s_add_u32 s31, s31, 0x%x" % WS_G)
    c("v_mov_b32 v7, s31")
    c("s_lshl_b32 s35, s9, 6")
    c("s_waitcnt lgkmcnt(0)")
    c("s_add_u32 s14, s6, s13"); c("s_addc_u32 s15, s7, 0")
    for k in range(4): c("global_load_dwordx4 %s, v5, s[14:15] offset:%d" % (vr(8 + 4 * k), 16 * k))
    c("s_add_u32 s16, s6, s10"); c("s_addc_u32 s17, s7, 0"); c("s_mov_b32 s18, 0x20000"); c("s_mov_b32 s19, 0x20000")
    for j in range(8):
        so = "0" if j < 2 else "s%d" % (24 + j // 2 - 1)
        c("buffer_load_dwordx4 %s, v3, s[16:19], %s offen offset:%d" % (vr(24 + 4 * j), so, 2048 * (j & 1)))
    c("s_add_u32 s20, s6, s12"); c("s_addc_u32 s21, s7, 0"); c("s_sub_u32 s22, %d, s11" % (NFF * 2048)); c("s_mov_b32 s23, 0x20000")
    for k in range(7):
        c("buffer_load_dwordx4 %s, v4, s[20:23], %s offen" % (vr(88 + 4 * k), "0" if k == 0 else "s%d" % (41 + k)))
    c("global_load_dwordx2 v[72:73], v7, s[6:7]")
    c("s_add_u32 s32, s32, s35"); c("s_addc_u32 s33, s33, 0")
    c("global_load_dwordx2 v[74:75], v6, s[32:33]")
    c("s_lshl_b32 s34, s8, 10"); c("s_add_u32 s34, s34, s35")
    c("s_add_u32 s4, s4, s34"); c("s_addc_u32 s5, s5, 0")
    c("s_waitcnt vmcnt(17)")
    for p in range(4):
        r = 8 + 4 * p
        c("v_max_f32 v84, v%d, v%d" % (r, r + 2))
        c("v_sub_f32 v%d, v%d, v84" % (r, r)); c("v_sub_f32 v%d, v%d, v84" % (r + 2, r + 2))
        c("v_exp_f32 v%d, v%d" % (r, r)); c("v_exp_f32 v%d, v%d" % (r + 2, r + 2))
        c("v_mul_f32 v%d, v%d, v%d" % (r + 1, r + 1, r))
        c("v_fmac_f32 v%d, v%d, v%d" % (r + 1, r + 3, r + 2))
        c("v_rcp_f32 v%d, v%d" % (r + 1, r + 1))
        c("v_mul_f32 v%d, v%d, v%d" % (r, r, r + 1)); c("v_mul_f32 v%d, v%d, v%d" % (r + 2, r + 2, r + 1))
    c("s_waitcnt vmcnt(9)")
    for r in range(4): c("v_mul_f32 v%d, v8, v%d" % (84 + r, 24 + r))
    for j in range(1, 8):
        sc = 8 + 4 * (j // 2) + 2 * (j & 1)
        for r in range(4): c("v_fmac_f32 v%d, v%d, v%d" % (84 + r, sc, 24 + 4 * j + r))
    c("s_waitcnt vmcnt(0)")
    for r in range(4): c("v_add_f32 v%d, v%d, v%d" % (56 + r, 88 + r, 92 + r))
    for k in range(2, 7):
        for r in range(4): c("v_add_f32 v%d, v%d, v%d" % (56 + r, 56 + r, 88 + 4 * k + r))
    c("v_lshlrev_b32 v76, 16, v74"); c("v_and_b32 v77, 0xffff0000, v74"); c("v_lshlrev_b32 v78, 16, v75"); c("v_and_b32 v79, 0xffff0000, v75")
    c("v_cmp_eq_u32 vcc, 0, v1")
    for r in range(4): c("v_cndmask_b32 v%d, 0, v%d, vcc" % (76 + r, 76 + r))
    for r in range(4): c("v_add_f32 v%d, v%d, v%d" % (56 + r, 56 + r, 76 + r))
    for r in range(4): c("v_mul_f32 v%d, v72, v%d" % (84 + r, 84 + r))
    for r in range(4): c("v_fmac_f32 v%d, v73, v%d" % (84 + r, 56 + r))
    for r in range(4): c("v_add_f32_dpp v%d, v%d, v%d row_ror:8 row_mask:0xf bank_mask:0xf" % (84 + r, 84 + r, 84 + r))
    for sw in ("v_permlane16_swap_b32", "v_permlane32_swap_b32"):
        for r in range(4): c("v_mov_b32 v%d, v%d" % (60 + r, 84 + r))
        for r in range(4): c("%s v%d, v%d" % (sw, 84 + r, 60 + r))
        for r in range(4): c("v_add_f32 v%d, v%d, v%d" % (84 + r, 84 + r, 60 + r))
    c("v_cvt_pk_bf16_f32 v84, v84, v85")
    c("v_cvt_pk_bf16_f32 v85, v86, v87")
    c("s_mov_b64 exec, 0xff")
    c("global_store_dwordx2 v6, v[84:85], s[4:5]")
    if stamps:
        c("s_waitcnt vmcnt(0)")
        c("s_memrealtime s[38:39]")
        c("s_waitcnt lgkmcnt(0)")
        c("s_mov_b64 exec, 0xf")
        c("v_and_b32 v1, 3, v0")
        c("s_lshl_b32 s34, s2, 2")
        c("v_add_u32 v1, s34, v1")
        c("v_lshlrev_b32 v1, 3, v1")
        for k in range(2):
            c("v_add_u32 v2, 0x%x, v1" % (WS_STAMP + 0x10000 + 0x1000 * (5 + k)))
            c("v_mov_b32 v8, s%d" % (36 + 2 * k)); c("v_mov_b32 v9, s%d" % (37 + 2 * k))
            c("global_store_dwordx2 v2, v[8:9], s[6:7]")
            c("s_nop 1")
    c("L2_done:")
    c("s_endpgm")
    body2 = c.finish() if not k2w else kernel2_wide()

    hdr = open("cdna_kernels/%s.s.ref" % NAME).read().split("; Override launch")[0]
    out = hdr
    out += "; @launch kernel=%s grid=(256,1,1) block=(%d,1,1) lds=%d\n" % (K1, 64 * W, L_END)
    out += "; @launch kernel=%s grid=(%d,1,1) block=(64,1,1) lds=0\n" % (K2, 128 if k2w else 64)
    out += '.amdgcn_target "amdgcn-amd-amdhsa--gfx950"\n'
    out += DESCRIPTION
    out += '.text\n'
    for k, body in ((K1, body1), (K2, body2)):
        out += ".globl %s\n.p2align 8\n.type %s,@function\n" % (k, k) + body
    out += '.section .rodata,"a"\n'
    for k, nv, ns in ((K1, NV, 100), (K2, 72 if k2w else 116, 56)):
        out += ".p2align 6\n.amdhsa_kernel %s\n" % k
        out += "  .amdhsa_next_free_vgpr %d\n  .amdhsa_next_free_sgpr %d\n  .amdhsa_accum_offset %d\n" % (nv, ns, (nv + 3) // 4 * 4)
        out += "  .amdhsa_group_segment_fixed_size 0\n  .amdhsa_kernarg_size 112\n  .amdhsa_user_sgpr_count 2\n"
        out += "  .amdhsa_user_sgpr_kernarg_segment_ptr 1\n  .amdhsa_system_sgpr_workgroup_id_x 1\n"
        out += "  .amdhsa_float_denorm_mode_32 3\n"
        out += ".end_amdhsa_kernel\n"
    return out

if __name__ == "__main__":
    import argparse
    ap = argparse.ArgumentParser()
    ap.add_argument("-o", default="cdna_kernels/%s.s" % NAME)
    ap.add_argument("--D", type=int, default=2)
    ap.add_argument("--kvpol", default="nt")
    ap.add_argument("--wqpol", default="")
    ap.add_argument("--wopol", default="")
    ap.add_argument("--fpol", default="")
    ap.add_argument("--stpol", default="")
    ap.add_argument("--stamps", action="store_true")
    ap.add_argument("--noffn", action="store_true")
    ap.add_argument("--abl", default="")
    ap.add_argument("--early", action="store_true")
    ap.add_argument("--touch", action="store_true")
    ap.add_argument("--pretab", default="00000000")
    ap.add_argument("--preidx", default="r")
    ap.add_argument("--nsh", type=int, default=8)
    ap.add_argument("--warm", action="store_true")
    ap.add_argument("--dry", action="store_true")
    ap.add_argument("--pfk2", action="store_true")
    ap.add_argument("--k2w", action="store_true")
    ap.add_argument("--prio", action="store_true")
    ap.add_argument("--kvtouch", action="store_true")
    ap.add_argument("--wom", type=int, default=None)
    ap.add_argument("--wooff", type=int, default=None)
    ap.add_argument("--claimit", type=int, default=2)
    x = ap.parse_args()
    open(x.o, "w").write(gen(D=x.D, kvpol=x.kvpol, wqpol=x.wqpol, wopol=x.wopol, fpol=x.fpol, stpol=x.stpol,
                             stamps=x.stamps, ffn=not x.noffn, abl=tuple(x.abl.split(",")), early=x.early, touch=x.touch, pretab=tuple(int(ch) for ch in x.pretab), preidx=x.preidx, nsh=x.nsh, warm=x.warm, dry=x.dry, pfk2=x.pfk2, k2w=x.k2w, prio=x.prio, kvtouch=x.kvtouch, wom=x.wom, wooff=x.wooff, claimit=x.claimit))
    print("wrote", x.o)
```
